```python
import torch

def _softmax(x, axis=-1):
    return torch.softmax(x, dim=axis)

def _gelu(x):
    return torch.nn.functional.gelu(x, approximate='tanh')

def _silu(x):
    return torch.nn.functional.silu(x)

def _sigmoid(x):
    return torch.sigmoid(x)

def _layernorm(x, axis=-1, eps=1e-05):
    m = x.mean(dim=axis, keepdim=True)
    v = x.var(dim=axis, keepdim=True, unbiased=False)
    return (x - m) / torch.sqrt(v + eps)

def _scatter_add(tgt, idx, src, axis=0):
    return tgt.clone().index_add_(axis, idx, src)

def _segment_sum(src, seg, n):
    out = torch.zeros((n,) + src.shape[1:], dtype=src.dtype)
    return out.index_add_(0, seg, src)

def _pad(x, pw):
    flat = tuple((v for pair in reversed(pw) for v in pair))
    return torch.nn.functional.pad(x, flat)
kernel_name = 'adaLN_cond__gqa_block_cached__mixer_channel_mlp__decode'

def setup_inputs():

    _w = lambda a: (lambda t: t.to(torch.bfloat16) if t.is_floating_point() else t)(torch.as_tensor(a))

    def _A_setup():
        B, Sq, D = (1, 1, 1024)
        Hq, Hkv, Sk, Dh = (32, 4, 65536, 128)
        assert Hq % Hkv == 0, (Hq, Hkv)
        return {'x': _w((lambda *s: torch.randn(*s, dtype=torch.bfloat16) * 0.1)(B, Sq, D)), 'k_cache': _w((lambda *s: torch.randn(*s, dtype=torch.bfloat16) * 0.8)(B, Hkv, Sk, Dh)), 'v_cache': _w((lambda *s: torch.randn(*s, dtype=torch.bfloat16) * 0.8)(B, Hkv, Sk, Dh)), 'wq': _w((lambda *s: torch.randn(*s, dtype=torch.bfloat16) * 0.8)(D, Hq * Dh) * D ** (-0.5)), 'wo': _w((lambda *s: torch.randn(*s, dtype=torch.bfloat16) * 0.8)(Hq * Dh, D) * (Hq * Dh) ** (-0.5))}
    _A_in = _A_setup()

    def _B_setup():
        B, S, D, F = (1, 1, 1024, 3584)
        return {'x': _w((lambda *s: torch.randn(*s, dtype=torch.bfloat16) * 0.1)(B, S, D)), 'w1': _w((lambda *s: torch.randn(*s, dtype=torch.bfloat16) * 3.2)(D, F) * D ** (-0.5)), 'b1': _w((lambda *s: torch.randn(*s, dtype=torch.bfloat16) * 3.2)(F)), 'w2': _w((lambda *s: torch.randn(*s, dtype=torch.bfloat16) * 3.2)(F, D) * F ** (-0.5)), 'b2': _w((lambda *s: torch.randn(*s, dtype=torch.bfloat16) * 3.2)(D))}
    _B_in = _B_setup()
    return {'A_x': _A_in['x'], 'A_k_cache': _A_in['k_cache'], 'A_v_cache': _A_in['v_cache'], 'A_wq': _A_in['wq'], 'A_wo': _A_in['wo'], 'B_x': _B_in['x'], 'B_w1': _B_in['w1'], 'B_b1': _B_in['b1'], 'B_w2': _B_in['w2'], 'B_b2': _B_in['b2'], 'c': _w((lambda *s: torch.randn(*s, dtype=torch.bfloat16) * 0.4)(1, 1024) * 8.0), 'w_mod': _w((lambda *s: torch.randn(*s, dtype=torch.bfloat16) * 0.4)(1024, 6 * 1024) * 1024 ** (-0.5) * 8.0)}

def reference(A_x, A_k_cache, A_v_cache, A_wq, A_wo, B_x, B_w1, B_b1, B_w2, B_b2, c, w_mod):

    def _A_ref(x, k_cache, v_cache, wq, wo):
        B, Sq, D = x.shape
        Hq, Dh = (32, 128)
        Hkv = k_cache.shape[1]
        rep = Hq // Hkv
        q = (lambda x, *d: x.permute(*d))((x @ wq).reshape(B, Sq, Hq, Dh), 0, 2, 1, 3)
        k = (lambda x, n, axis: torch.repeat_interleave(x, n, dim=axis))(k_cache, rep, axis=1)
        v = (lambda x, n, axis: torch.repeat_interleave(x, n, dim=axis))(v_cache, rep, axis=1)
        scores = torch.einsum('bhqd,bhkd->bhqk', q, k) * Dh ** (-0.5)
        p = _softmax(scores, axis=-1)
        o = torch.einsum('bhqk,bhkd->bhqd', p, v)
        return (lambda x, *d: x.permute(*d))(o, 0, 2, 1, 3).reshape(B, Sq, Hq * Dh) @ wo

    def _B_ref(x, w1, b1, w2, b2):
        y = _layernorm(x, axis=-1)
        h = _gelu(torch.einsum('bsd,df->bsf', y, w1) + b1)
        return torch.einsum('bsf,fd->bsd', h, w2) + b2
    x = A_x
    mod = (_silu(c) @ w_mod).reshape(c.shape[0], 6, 1, -1)
    sa, ca, ga, sb, cb, gb = (mod[:, 0].clone(), mod[:, 1].clone(), mod[:, 2].clone(), mod[:, 3].clone(), mod[:, 4].clone(), mod[:, 5].clone())
    h = _layernorm(x, axis=-1) * (1 + ca) + sa
    x = x + ga * _A_ref(h, A_k_cache, A_v_cache, A_wq, A_wo)
    h = _layernorm(x, axis=-1) * (1 + cb) + sb
    x = x + gb * _B_ref(h, B_w1, B_b1, B_w2, B_b2)
    return x
```

```python
import re
_R = re.compile(r'^(-?)(abs\()?([vsa])(\d+)\)?$')
_RR = re.compile(r'^(-?)([vsa])\[(\d+):(\d+)\]$')
def regs(o):
    o = o.strip()
    m = _R.match(o)
    if m: return {(m.group(3), int(m.group(4)))}
    m = _RR.match(o)
    if m: return {(m.group(2), i) for i in range(int(m.group(3)), int(m.group(4)) + 1)}
    if o == 'vcc': return {('s', 106), ('s', 107)}
    if o == 'exec': return {('s', 126), ('s', 127)}
    if o == 'm0': return {('s', 124)}
    return set()
TRANS = ('v_exp_f32', 'v_rcp_f32', 'v_rsq_f32', 'v_sqrt_f32', 'v_log_f32', 'v_sin_f32', 'v_cos_f32')
class Ins:
    def __init__(s, op, ops, mod):
        s.op, s.ops, s.mod = op, ops, mod
        s.mfma = op.startswith('v_mfma')
        s.valu = op.startswith('v_') and not s.mfma
        s.trans = op in TRANS
        s.dpp = op.endswith('_dpp')
        s.perml = op.startswith('v_permlane')
        s.vmem = op.startswith('buffer_') or op.startswith('global_')
        s.ds = op.startswith('ds_')
        s.branch = op.startswith('s_cbranch') or op == 's_branch'
        s.uncond = op in ('s_branch', 's_endpgm', 's_setpc_b64')
        s.rdlane = op.startswith('v_readfirstlane') or op.startswith('v_readlane')
        R = [regs(o) for o in ops]
        allr = set().union(*R) if R else set()
        rest = set().union(*R[1:]) if len(R) > 1 else set()
        s.srcC = set(); s.srcAB = set(); s.stdata = set()
        if s.mfma:
            s.dst = R[0]; s.src = rest; s.srcC = R[3]; s.srcAB = R[1] | R[2]
        elif s.perml:
            s.dst = allr; s.src = allr
        elif s.valu:
            s.dst = R[0]; s.src = rest
            if s.dpp or op.startswith('v_fmac') or op.startswith('v_mac'): s.src = allr
            if op.startswith('v_cndmask') and len(ops) == 3: s.src = s.src | regs('vcc')
        elif s.ds:
            if op.startswith('ds_read') or '_rtn' in op or 'permute' in op or 'swizzle' in op:
                s.dst = R[0]; s.src = rest
            else:
                s.dst = set(); s.src = allr
        elif s.vmem:
            if '_load' in op:
                s.dst = R[0]; s.src = rest
            else:
                s.dst = set(); s.src = allr
                if 'x4' in op or 'x3' in op:
                    s.stdata = R[0] if op.startswith('buffer_') else R[1]
        elif op.startswith('s_cmp') or op.startswith('s_bitcmp') or s.branch or op in ('s_waitcnt', 's_nop', 's_barrier', 's_sleep', 's_setprio', 's_endpgm'):
            s.dst = set(); s.src = allr
        else:
            s.dst = R[0] if R else set(); s.src = rest
            if 'saveexec' in op: s.dst = s.dst | regs('exec')
        s.slots = (int(ops[0]) + 1) if op == 's_nop' else 1
    def text(s):
        t = '  ' + s.op
        if s.ops: t += ' ' + ', '.join(s.ops)
        if s.mod: t += ' ' + s.mod
        return t
def need(p, c):
    n = 0
    pv = {r for r in p.dst if r[0] in 'va'}
    ps = {r for r in p.dst if r[0] == 's'}
    if p.valu:
        if pv & c.src:
            if c.mfma: n = max(n, 2)
            if c.dpp or c.perml: n = max(n, 2)
            if c.rdlane: n = max(n, 1)
            if p.trans and c.valu and not c.trans: n = max(n, 1)
            if p.trans: n = max(n, 1)
        if ps & c.src:
            if c.valu or c.mfma: n = max(n, 2)
            if c.vmem: n = max(n, 5)
            if c.rdlane: n = max(n, 4)
            if not (c.valu or c.vmem or c.mfma): n = max(n, 1)
    if p.mfma:
        if c.mfma:
            if pv & c.srcAB: n = max(n, 8)
            if pv & c.srcC and c.srcC != p.dst: n = max(n, 6)
            if (pv & c.dst) and not (c.srcC == p.dst and c.dst == p.dst): n = max(n, 6)
        else:
            if pv & (c.src | c.dst): n = max(n, 8)
        if c.valu and (p.srcC & c.dst): n = max(n, 3)
    if p.stdata and (p.stdata & c.dst):
        n = max(n, 2)
    return n
class Asm:
    def __init__(s):
        s.items = []
        s.uid = 0
    def raw(s, t): s.items.append(('raw', t))
    def c(s, t): s.items.append(('raw', '  ; ' + t))
    def label(s, n): s.items.append(('label', n))
    def newlabel(s, base):
        s.uid += 1
        return 'L_%s_%d' % (base, s.uid)
    def I(s, op, *ops, mod=''):
        ops = [str(o) for o in ops]
        s.items.append(('ins', Ins(op, ops, mod)))
    def __call__(s, line):
        line = line.strip()
        parts = line.split(None, 1)
        op = parts[0]
        rest = parts[1] if len(parts) > 1 else ''
        ops = []; mod = ''
        if op in ('s_waitcnt',):
            s.items.append(('ins', Ins(op, [], rest))); return
        cur = ''; depth = 0; toks = []
        for ch in rest:
            if ch in '[(': depth += 1
            if ch in '])': depth -= 1
            if ch == ',' and depth == 0:
                toks.append(cur.strip()); cur = ''
            else: cur += ch
        if cur.strip(): toks.append(cur.strip())
        if toks:
            last = toks[-1].split(None, 1)
            toks[-1] = last[0]
            if len(last) > 1: mod = last[1]
        s.items.append(('ins', Ins(op, toks, mod)))
    def finish(s):
        W = 12
        snaps = {}
        for it in range(4):
            out = []
            hist = [[]]
            newsnaps = {}
            def advance(k):
                for h in hist:
                    for i in range(len(h)): h[i] = (h[i][0], h[i][1] + k)
                    while h and h[0][1] > W: h.pop(0)
            for kind, x in s.items:
                if kind == 'raw': out.append(x); continue
                if kind == 'label':
                    out.append(x + ':')
                    for sn in snaps.get(x, []): hist.append(list(sn))
                    continue
                n = 0
                for h in hist:
                    for p, age in h:
                        n = max(n, need(p, x) - age)
                if n > 0:
                    out.append('  s_nop %d' % (n - 1)); advance(n)
                out.append(x.text())
                advance(x.slots)
                merged = {}
                for h in hist:
                    for p, age in h:
                        if id(p) not in merged or merged[id(p)][1] > age: merged[id(p)] = (p, age)
                h = sorted(merged.values(), key=lambda t: -t[1])
                h.append((x, 0))
                hist = [h]
                if x.branch:
                    newsnaps.setdefault(x.ops[0], []).append(list(h))
                if x.uncond: hist = [[]]
            same = (len(snaps) == len(newsnaps) and it > 0 and out == prev)
            prev = out
            snaps = newsnaps
            if same: break
        return '\n'.join(out) + '\n'
```

```python
import sys, math
sys.path.insert(0, 'work')
from asmlib import Asm
NAME = 'adaLN_cond__gqa_block_cached__mixer_channel_mlp__decode'

OFF_MOD, OFF_Q, OFF_SBCB, OFF_G, OFF_ML = 0x010000, 0x100000, 0x200000, 0x280000, 0x290000
OFF_O, OFF_A, OFF_X1, OFF_HH, OFF_TS = 0x300000, 0x500000, 0x580000, 0x600000, 0x8000000
CNT_Q, CNT_ATT, CNT_R1, CNT_R2, CNT_R3, CNT_X, CNT_S = 0, 4, 8, 12, 16, 20, 24
L_ZERO, L_Q, L_X, L_RED, L_ML, L_ST, L_X1, L_G, L_OB = 64, 256, 2304, 9472, 11520, 12032, 12096, 12160, 12288
LDS_BYTES = L_OB + 8 * 4096
sWG, sWAVE, sTAG = 's2', 's3', 's4'
sR = 's5'
sJ = 's6'
SRD_K, SRD_V, SRD_WS, SRD_W, SRD_OUT = 's[8:11]', 's[12:15]', 's[16:19]', 's[20:23]', 's[28:31]'
P_X, P_K, P_V, P_WQ, P_WO, P_W1, P_B1, P_W2, P_B2, P_C, P_WM, P_OUT, P_DBG, P_WS = 32, 34, 36, 38, 40, 44, 46, 48, 50, 52, 54, 56, 58, 60
sSELLO, sSELHI = 's62', 's63'
sT0, sT1, sT2, sT3, sTO = 's64', 's65', 's66', 's67', 's68'
sACC = 's[70:71]'
sM0, sM1, sM2 = 's[72:73]', 's[74:75]', 's[76:77]'
sC0, sC1, sC2, sC3 = 's78', 's79', 's80', 's81'
TS0 = 84
NSTAMP = 8
LOG2E = 0x3fb8aa3b
def f32(x):
    import struct
    return '0x%08x' % struct.unpack('<I', struct.pack('<f', x))[0]

def v(i, n=1): return 'v%d' % i if n == 1 else 'v[%d:%d]' % (i, i + n - 1)
def sp(i): return 's[%d:%d]' % (i, i + 1)

class Gen:
    def __init__(s, W=4, stamps=False, qsleep=8, nt=True):
        s.a = Asm(); s.W = W; s.stamps = stamps; s.qsleep = qsleep
        s.nt = 'nt' if nt else ''
    def stamp(s, i):
        if s.stamps:
            s.a('s_memrealtime %s' % sp(TS0 + 2 * i))
    def srd(s, srd, ptr, nbytes):
        a = s.a; b = int(srd[2:srd.index(':')])
        a('s_mov_b32 s%d, s%d' % (b, ptr)); a('s_and_b32 s%d, s%d, 0xffff' % (b + 1, ptr + 1))
        a('s_mov_b32 s%d, 0x%x' % (b + 2, nbytes)); a('s_mov_b32 s%d, 0x20000' % (b + 3))
    def signal(s, cnt, vz='v3', vone='v4'):
        a = s.a
        a('v_mov_b32 %s, 1' % vone)
        a('s_waitcnt lgkmcnt(0)')
        a('s_mov_b64 exec, 1')
        a('ds_add_u32 %s, %s offset:%d' % (vz, vone, cnt))
        a('s_mov_b64 exec, -1')
    def wait_lds(s, cnt, target, vz='v3', vt='v4', sleep=0):
        a = s.a; L = a.newlabel('w')
        a('s_mov_b32 %s, 0' % sTO)
        a.label(L)
        if sleep: a('s_sleep %d' % sleep)
        a('s_add_u32 %s, %s, 1' % (sTO, sTO))
        a('s_cmp_gt_u32 %s, 0x400000' % sTO)
        a('s_cbranch_scc1 L_fail')
        a('ds_read_b32 %s, %s offset:%d' % (vt, vz, cnt))
        a('s_waitcnt lgkmcnt(0)')
        a('v_readfirstlane_b32 %s, %s' % (sT3, vt))
        a('s_cmp_ge_u32 %s, %d' % (sT3, target))
        a('s_cbranch_scc0 %s' % L)
    def poll(s, loads, sleep=0):
        a = s.a; L = a.newlabel('p'); n = len(loads)
        a('s_mov_b32 %s, 0' % sTO)
        a.label(L)
        a('s_add_u32 %s, %s, 1' % (sTO, sTO))
        a('s_cmp_gt_u32 %s, 0x40000' % sTO)
        a('s_cbranch_scc1 L_fail')
        for d, vo, so, imm in loads:
            a('buffer_load_dwordx4 %s, %s, %s, %s offen offset:%d sc1' % (v(d, 4), vo, SRD_WS, so, imm))
        a('s_mov_b64 %s, -1' % sACC)
        for i, (d, vo, so, imm) in enumerate(loads):
            a('s_waitcnt vmcnt(%d)' % (n - 1 - i))
            a('v_cmp_eq_u32 vcc, %s, %s' % (sTAG, v(d + 1)))
            a('v_cmp_eq_u32 %s, %s, %s' % (sM2, sTAG, v(d + 3)))
            a('s_and_b64 %s, %s, vcc' % (sACC, sACC))
            a('s_and_b64 %s, %s, %s' % (sACC, sACC, sM2))
        a('s_cmp_eq_u64 %s, -1' % sACC)
        if sleep:
            L2 = a.newlabel('pd')
            a('s_cbranch_scc1 %s' % L2)
            a('s_sleep %d' % sleep)
            a('s_branch %s' % L)
            a.label(L2)
        else:
            a('s_cbranch_scc0 %s' % L)
    def bfly(s, op, regs, tmps, steps):
        a = s.a
        for st in steps:
            if st in (1, 2, 4, 8):
                mod = {1: 'quad_perm:[1,0,3,2]', 2: 'quad_perm:[2,3,0,1]', 4: None, 8: 'row_ror:8'}[st]
                for r, t in zip(regs, tmps):
                    if st == 4:
                        a('%s_dpp %s, %s, %s row_half_mirror row_mask:0xf bank_mask:0xf' % (op, v(r), v(r), v(r)))
                    else:
                        a('%s_dpp %s, %s, %s %s row_mask:0xf bank_mask:0xf' % (op, v(r), v(r), v(r), mod))
            else:
                sw = 'v_permlane16_swap_b32' if st == 16 else 'v_permlane32_swap_b32'
                for r, t in zip(regs, tmps): a('v_mov_b32 %s, %s' % (v(t), v(r)))
                for r, t in zip(regs, tmps): a('%s %s, %s' % (sw, v(r), v(t)))
                for r, t in zip(regs, tmps): a('%s %s, %s, %s' % (op, v(r), v(r), v(t)))
    def rnd2(s, x, y, t):
        a = s.a
        a('v_cvt_pk_bf16_f32 %s, %s, %s' % (v(t), v(x), v(y)))
        a('v_lshlrev_b32 %s, 16, %s' % (v(x), v(t)))
        a('v_and_b32 %s, 0xffff0000, %s' % (v(y), v(t)))
    def rnd1(s, x):
        a = s.a
        a('v_cvt_pk_bf16_f32 %s, %s, %s' % (v(x), v(x), v(x)))
        a('v_and_b32 %s, 0xffff0000, %s' % (v(x), v(x)))
    def unpack(s, src, lo, hi):
        a = s.a
        a('v_lshlrev_b32 %s, 16, %s' % (v(lo), v(src)))
        a('v_and_b32 %s, 0xffff0000, %s' % (v(hi), v(src)))
    def div(s, xs, d, r, t):
        a = s.a
        for x in xs:
            a('v_mul_f32 %s, %s, %s' % (v(t[0]), v(x), v(r)))
            a('v_fma_f32 %s, -%s, %s, %s' % (v(t[1]), v(t[0]), v(d), v(x)))
            a('v_fma_f32 %s, %s, %s, %s' % (v(x), v(t[1]), v(r), v(t[0])))
    def ln_stats(s, s1, s2, mean, d, r, t):
        a = s.a
        a('v_mul_f32 %s, %s, %s' % (v(mean), f32(1.0 / 1024), v(s1)))
        a('v_mul_f32 %s, %s, %s' % (v(d), f32(1.0 / 1024), v(s2)))
        a('v_fma_f32 %s, -%s, %s, %s' % (v(d), v(mean), v(mean), v(d)))
        a('v_max_f32 %s, 0, %s' % (v(d), v(d)))
        s.rnd2(mean, d, t)
        a('v_add_f32 %s, %s, %s' % (v(d), f32(1e-5), v(d)))
        s.rnd1(d)
        a('v_sqrt_f32 %s, %s' % (v(d), v(d)))
        s.rnd1(d)
        a('v_rcp_f32 %s, %s' % (v(r), v(d)))
    def ln_apply(s, xs, mean, d, r, t):
        a = s.a
        for x in xs: a('v_sub_f32 %s, %s, %s' % (v(x), v(x), v(mean)))
        for i in range(0, len(xs), 2): s.rnd2(xs[i], xs[i + 1], t[0])
        s.div(xs, d, r, t)
        for i in range(0, len(xs), 2): s.rnd2(xs[i], xs[i + 1], t[0])
    R = [8, 40, 72, 104]; X = 136
    def tile_load(s, nblk, voff, sbase, step_blk, step_t):
        a = s.a
        for b in range(nblk):
            for t in range(8):
                a('s_add_u32 %s, %s, 0x%x' % (sT0, sbase, b * step_blk + t * step_t))
                a('buffer_load_dwordx4 %s, %s, %s, %s offen %s' % (v(s.R[b] + 4 * t, 4), voff, SRD_W, sT0, s.nt))
    def tile_transpose(s, nblk, later=0):
        a = s.a
        TB = [s.X] + s.R[:3]
        for b in range(nblk):
            a('s_waitcnt vmcnt(%d)' % ((nblk - 1 - b) * 8 + later))
            for e in range(8):
                for j in range(4):
                    a('v_perm_b32 %s, %s, %s, %s' % (v(TB[b] + 4 * e + j), v(s.R[b] + 4 * (2 * j + 1) + (e >> 1)),
                                                     v(s.R[b] + 4 * (2 * j) + (e >> 1)), sSELHI if e & 1 else sSELLO))
    def tile_mfma(s, nblk, vaddr, step):
        a = s.a
        TB = [s.X] + s.R[:3]
        F = s.R[3]
        AF = F + 16
        for b in range(nblk):
            a('ds_read_b128 %s, %s offset:%d' % (v(AF + 4 * b, 4), vaddr, b * step))
        acc = [F + 4 * e for e in range(4)] + [TB[0] + 4 * e for e in range(4)]
        for half in range(2):
            for b in range(nblk):
                if half == 0: a('s_waitcnt lgkmcnt(%d)' % (nblk - 1 - b))
                for e in range(4 * half, 4 * half + 4):
                    c = '0' if b == 0 else v(acc[e], 4)
                    a('v_mfma_f32_16x16x32_bf16 %s, %s, %s, %s' % (v(acc[e], 4), v(AF + 4 * b, 4), v(TB[b] + 4 * e, 4), c))
        return acc
    def gemvC_partial(s, acc, slot_sgpr):
        a = s.a
        AF = s.R[3] + 16
        for e in range(8):
            a('v_add_f32_dpp %s, %s, %s row_ror:8 row_mask:0xf bank_mask:0xf' % (v(AF + e), v(acc[e] + 1), v(acc[e])))
        a('s_lshl_b32 %s, %s, 8' % (sT0, slot_sgpr))
        a('v_lshlrev_b32 v5, 5, v0')
        a('v_add_u32 v5, %s, v5' % sT0)
        a('s_mov_b64 exec, 0xff')
        a('ds_write_b128 v5, %s offset:%d' % (v(AF, 4), L_RED))
        a('ds_write_b128 v5, %s offset:%d' % (v(AF + 4, 4), L_RED + 16))
        a('s_mov_b64 exec, -1')
    def gemvC_gather(s, nsrc, dst, tmp):
        a = s.a
        a('v_and_b32 v5, 15, v0')
        a('v_lshlrev_b32 v5, 4, v5')
        for w in range(nsrc):
            a('ds_read_b128 %s, v5 offset:%d' % (v(tmp + 4 * w, 4), L_RED + 256 * w))
        for w in range(1, nsrc):
            a('s_waitcnt lgkmcnt(%d)' % (nsrc - 1 - w))
            for c in range(4):
                a('v_add_f32 %s, %s, %s' % (v(dst + c), v(tmp + c) if w == 1 else v(dst + c), v(tmp + 4 * w + c)))
    def mk_granule(s, g, x):
        a = s.a
        a('v_cvt_pk_bf16_f32 %s, %s, %s' % (v(g), v(x), v(x + 1)))
        a('v_cvt_pk_bf16_f32 %s, %s, %s' % (v(g + 2), v(x + 2), v(x + 3)))
        a('v_mov_b32 %s, %s' % (v(g + 1), sTAG))
        a('v_mov_b32 %s, %s' % (v(g + 3), sTAG))
    def st_ws(s, g, voff, soff, imm=0):
        s.a('buffer_store_dwordx4 %s, %s, %s, %s offen offset:%d sc1' % (v(g, 4), voff, SRD_WS, soff, imm))

    def build(s):
        a = s.a
        a.raw('; @launch grid=(256,1,1) block=(768,1,1) lds=%d' % LDS_BYTES)
        if s.stamps: a.raw('; TS 0x%x:%d:%d' % (OFF_TS, 256 * 12, NSTAMP))
        a.raw('.amdgcn_target "amdgcn-amd-amdhsa--gfx950"')
        a.raw('.text')
        a.raw('.globl %s_kernel' % NAME)
        a.raw('.p2align 8')
        a.raw('.type %s_kernel,@function' % NAME)
        a.raw('%s_kernel:' % NAME)
        a('s_cmp_ge_u32 s2, 256')
        a('s_cbranch_scc1 L_exit')
        if s.stamps:
            for i in range(NSTAMP): a('s_mov_b64 %s, 0' % sp(TS0 + 2 * i))
        s.stamp(0)
        a('s_load_dwordx16 s[32:47], s[0:1], 0')
        a('s_load_dwordx8 s[48:55], s[0:1], 64')
        a('s_load_dwordx4 s[56:59], s[0:1], 96')
        a('s_load_dwordx2 s[60:61], s[0:1], 112')
        a('v_lshrrev_b32 v1, 6, v0')
        a('v_and_b32 v0, 63, v0')
        a('v_mov_b32 v3, 0')
        a('v_readfirstlane_b32 s3, v1')
        a('v_lshlrev_b32 v2, 4, v0')
        a('s_mov_b32 %s, 0x05040100' % sSELLO)
        a('s_mov_b32 %s, 0x07060302' % sSELHI)
        a('s_waitcnt lgkmcnt(0)')
        a('s_load_dword %s, %s, 0' % (sTAG, sp(P_WS)))
        s.srd(SRD_WS, P_WS, 0x10000000)
        s.srd(SRD_OUT, P_OUT, 2048)
        a('s_cmp_ge_u32 s3, 8')
        a('s_cbranch_scc1 L_role')
        s.stream()
        a.label('L_role')
        s.role()
        a.label('L_fail')
        a('v_mov_b32 v4, 0xdead')
        a('v_mov_b32 v5, 0')
        a('s_mov_b64 exec, 1')
        a('global_store_dword v5, v4, %s' % sp(P_DBG))
        a('s_mov_b64 exec, -1')
        a.label('L_end')
        if s.stamps:
            s.stamp(NSTAMP - 1)
            a('s_mul_i32 %s, s2, 12' % sT0)
            a('s_add_u32 %s, %s, s3' % (sT0, sT0))
            a('s_mul_i32 %s, %s, %d' % (sT0, sT0, NSTAMP * 8))
            a('s_add_u32 %s, %s, 0x%x' % (sT0, sT0, OFF_TS))
            a('v_mov_b32 v5, 0')
            a('s_waitcnt lgkmcnt(0)')
            a('s_mov_b64 exec, 1')
            for i in range(0, NSTAMP, 2):
                for k in range(4): a('v_mov_b32 v%d, s%d' % (8 + k, TS0 + 2 * i + k))
                a('buffer_store_dwordx4 v[8:11], v5, %s, %s offen offset:%d' % (SRD_WS, sT0, 8 * i))
        a.label('L_exit')
        a('s_endpgm')
        a.raw('.section .rodata,"a"')
        a.raw('.p2align 6')
        a.raw('.amdhsa_kernel %s_kernel' % NAME)
        a.raw('  .amdhsa_next_free_vgpr 168')
        a.raw('  .amdhsa_next_free_sgpr 102')
        a.raw('  .amdhsa_accum_offset 168')
        a.raw('  .amdhsa_group_segment_fixed_size 0')
        a.raw('  .amdhsa_kernarg_size 120')
        a.raw('  .amdhsa_user_sgpr_count 2')
        a.raw('  .amdhsa_user_sgpr_kernarg_segment_ptr 1')
        a.raw('  .amdhsa_system_sgpr_workgroup_id_x 1')
        a.raw('.end_amdhsa_kernel')
        return a.finish()

    def stream(s):
        a = s.a; W = s.W
        SP, O, T, BUF, NB = 8, 24, 56, 72, 24
        QF = T; TU = 64
        a.c('---------------- stream wave')
        s.srd(SRD_K, P_K, 0x4000000)
        s.srd(SRD_V, P_V, 0x4000000)
        a('s_mov_b32 %s, s3' % sR)
        a('s_lshl_b32 s7, s2, 18')
        a('s_lshl_b32 %s, s3, 12' % sT0)
        a('s_add_u32 s7, s7, %s' % sT0)
        a('v_bfe_u32 v1, v0, 2, 2')
        a('v_lshlrev_b32 v1, 8, v1')
        a('v_lshrrev_b32 v4, 4, v0')
        a('v_lshl_add_u32 v1, v4, 6, v1')
        a('v_and_b32 v4, 3, v0')
        a('v_lshl_add_u32 v1, v4, 4, v1')
        issued = [0]
        def slot(j): return BUF + 4 * (j % NB)
        def issue():
            j = issued[0]
            if j >= 64: return
            blk = j & 31
            off = (blk >> 2) * 32768
            a('s_add_u32 %s, s7, 0x%x' % (sT0, off))
            a('buffer_load_dwordx4 %s, %s, %s, %s offen offset:%d %s' % (v(slot(j), 4), 'v1' if j < 32 else 'v2',
                                                                        SRD_K if j < 32 else SRD_V, sT0, (blk & 3) * 1024, s.nt))
            issued[0] += 1
        def landed(j):
            a('s_waitcnt vmcnt(%d)' % (issued[0] - 1 - j))
        for j in range(W): issue()
        a('s_waitcnt lgkmcnt(0)')
        a('s_add_u32 %s, %s, 1' % (sTAG, sTAG))
        a('s_barrier')
        for j in range(W, NB):
            a('s_waitcnt vmcnt(%d)' % (W - 1))
            issue()
        s.stamp(1)
        a('v_and_b32 v5, 7, v0')
        a('v_lshlrev_b32 v5, 8, v5')
        a('v_lshrrev_b32 v6, 4, v0')
        a('v_lshl_add_u32 v5, v6, 6, v5')
        a('v_bfe_u32 v6, v0, 3, 1')
        a('v_lshl_add_u32 v5, v6, 4, v5')
        s.wait_lds(CNT_Q, 4, sleep=2)
        s.stamp(2)
        a('ds_read_b128 %s, v5 offset:%d' % (v(QF, 4), L_Q))
        a('ds_read_b128 %s, v5 offset:%d' % (v(QF + 4, 4), L_Q + 32))
        a('s_waitcnt lgkmcnt(0)')
        def qk_post(n):
            D = O + 16 * (n & 1)
            for bb in range(2):
                d0 = D + 8 * bb; d1 = d0 + 4
                t, u = TU + 2 * bb, TU + 2 * bb + 1
                a('v_add_f32 %s, %s, %s' % (v(t), v(d0), v(d1 + 2)))
                a('v_add_f32 %s, %s, %s' % (v(u), v(d0 + 1), v(d1 + 3)))
            a('v_add_f32_dpp %s, %s, %s row_ror:8 row_mask:0xf bank_mask:0x3' % (v(SP + n), v(TU + 1), v(TU)))
            a('v_add_f32_dpp %s, %s, %s row_ror:8 row_mask:0xf bank_mask:0xc' % (v(SP + n), v(TU + 2), v(TU + 3)))
        for n in range(16):
            landed(2 * n + 1)
            D = O + 16 * (n & 1)
            for bb in range(2):
                for m in range(2):
                    a('v_mfma_f32_16x16x32_bf16 %s, %s, %s, 0' % (v(D + 8 * bb + 4 * m, 4), v(slot(2 * n + bb), 4), v(QF + 4 * m, 4)))
            issue(); issue()
            if n > 0: qk_post(n - 1)
        qk_post(15)
        s.stamp(3)
        a('s_mov_b32 %s, %s' % (sC0, f32(128 ** -0.5)))
        a('s_mov_b32 %s, 0x%x' % (sC1, LOG2E))
        for n in range(0, 16, 2):
            t = O + (n >> 1)
            s.rnd2(SP + n, SP + n + 1, t)
            a('v_mul_f32 %s, %s, %s' % (v(SP + n), sC0, v(SP + n)))
            a('v_mul_f32 %s, %s, %s' % (v(SP + n + 1), sC0, v(SP + n + 1)))
            s.rnd2(SP + n, SP + n + 1, t)
        a('v_max3_f32 v6, %s, %s, %s' % (v(SP), v(SP + 1), v(SP + 2)))
        for n in range(3, 15, 2):
            a('v_max3_f32 v6, v6, %s, %s' % (v(SP + n), v(SP + n + 1)))
        a('v_max_f32 v6, v6, %s' % v(SP + 15))
        s.bfly('v_max_f32', [6], [5], [8, 16, 32])
        a('v_mul_f32 v5, %s, v6' % sC1)
        for n in range(16):
            a('v_fma_f32 %s, %s, %s, -v5' % (v(SP + n), v(SP + n), sC1))
        for n in range(16):
            a('v_exp_f32 %s, %s' % (v(SP + n), v(SP + n)))
        a('v_add_f32 v7, %s, %s' % (v(SP), v(SP + 1)))
        for n in range(2, 16):
            a('v_add_f32 v7, v7, %s' % v(SP + n))
        for G in range(4):
            p = SP + 4 * G
            a('v_cvt_pk_bf16_f32 %s, %s, %s' % (v(p), v(p), v(p + 1)))
            a('v_cvt_pk_bf16_f32 %s, %s, %s' % (v(p + 1), v(p + 2), v(p + 3)))
        for G in range(4):
            p = SP + 4 * G
            a('v_mov_b32_dpp %s, %s row_ror:8 row_mask:0xf bank_mask:0xf' % (v(p + 2), v(p)))
            a('v_mov_b32_dpp %s, %s row_ror:8 row_mask:0xf bank_mask:0xf' % (v(p + 3), v(p + 1)))
        s.bfly('v_add_f32', [7], [5], [8, 16, 32])
        s.stamp(4)
        beta = [0, 2, 4, 6, 1, 3, 5, 7]
        for G in range(4):
            landed(32 + 8 * G + 7)
            src = [slot(32 + 8 * G + beta[t]) for t in range(8)]
            for half in range(2):
                for e in range(4 * half, 4 * half + 4):
                    for j in range(4):
                        a('v_perm_b32 %s, %s, %s, %s' % (v(T + 4 * (e & 3) + j), v(src[2 * j + 1] + (e >> 1)), v(src[2 * j] + (e >> 1)),
                                                         sSELHI if e & 1 else sSELLO))
                for e in range(4 * half, 4 * half + 4):
                    c = '0' if G == 0 else v(O + 4 * e, 4)
                    a('v_mfma_f32_16x16x32_bf16 %s, %s, %s, %s' % (v(O + 4 * e, 4), v(SP + 4 * G, 4), v(T + 4 * (e & 3), 4), c))
            for k in range(8): issue()
        s.stamp(5)
        a('s_lshl_b32 %s, s3, 12' % sT0)
        a('v_add_u32 v5, %s, v2' % sT0)
        a('v_lshlrev_b32 v4, 6, v0')
        a('s_lshl_b32 %s, s3, 3' % sT1)
        a('v_add_u32 v4, %s, v4' % sT1)
        a('s_mov_b64 exec, 0xff')
        a('ds_write_b64 v4, v[6:7] offset:%d' % L_ML)
        a('s_mov_b32 exec_lo, -1'); a('s_mov_b32 exec_hi, 0')
        for e in range(8):
            a('ds_write_b128 v5, %s offset:%d' % (v(O + 4 * e, 4), L_OB + 512 * e))
        a('s_mov_b64 exec, -1')
        s.signal(CNT_ATT)
        a('v_and_b32 v7, 3, v0')
        a('v_lshlrev_b32 v7, 10, v7')
        a('v_lshrrev_b32 v4, 2, v0')
        a('v_lshl_add_u32 v7, v4, 4, v7')
        a('s_lshr_b32 %s, s3, 2' % sT0)
        a('s_lshl_b32 %s, %s, 8' % (sT0, sT0))
        a('s_and_b32 %s, s3, 3' % sT1)
        a('s_lshl_b32 %s, %s, 2' % (sT1, sT1))
        a('s_add_u32 %s, %s, %s' % (sT0, sT0, sT1))
        a('s_add_u32 %s, %s, %d' % (sT0, sT0, L_OB))
        a('v_add_u32 v7, %s, v7' % sT0)
        a('s_lshl_b32 %s, s3, 6' % sT0)
        a('v_mov_b32 v6, %s' % sT0)
        a('v_lshrrev_b32 v5, 5, v0')
        a('v_lshlrev_b32 v1, 10, v5')
        a('v_lshlrev_b32 v5, 15, v5')
        a('v_bfe_u32 v4, v0, 3, 2')
        a('v_lshl_add_u32 v5, v4, 13, v5')
        a('v_and_b32 v4, 7, v0')
        a('v_lshl_add_u32 v5, v4, 4, v5')
        a('s_lshr_b32 %s, s2, 6' % sT0)
        a('s_lshl_b32 %s, %s, 3' % (sT0, sT0))
        a('s_add_u32 %s, %s, s3' % (sT0, sT0))
        a('s_and_b32 %s, s2, 63' % sT1)
        a('s_lshl_b32 %s, %s, 16' % (sC2, sT0))
        a('s_lshl_b32 %s, %s, 7' % (sT2, sT1))
        a('s_add_u32 %s, %s, %s' % (sC2, sC2, sT2))
        a('s_add_u32 %s, %s, 0x%x' % (sC2, sC2, OFF_O))
        a('s_lshl_b32 %s, %s, 11' % (sC3, sT0))
        a('s_lshl_b32 %s, %s, 4' % (sT2, sT1))
        a('s_add_u32 %s, %s, %s' % (sC3, sC3, sT2))
        a('s_add_u32 %s, %s, 0x%x' % (sC3, sC3, OFF_ML))
        s.wait_lds(CNT_ATT, 8)
        ML = 8; OB = 24; F = 40; G_ = 48
        for k in range(4):
            a('ds_read_b128 %s, v6 offset:%d' % (v(ML + 4 * k, 4), L_ML + 16 * k))
        for w in range(8):
            a('ds_read2st64_b32 %s, v7 offset0:%d offset1:%d' % (v(OB + 2 * w, 2), 16 * w, 16 * w + 2))
        a('s_waitcnt lgkmcnt(8)')
        M = G_ + 4
        a('v_max3_f32 %s, %s, %s, %s' % (v(M), v(ML), v(ML + 2), v(ML + 4)))
        a('v_max3_f32 %s, %s, %s, %s' % (v(M), v(M), v(ML + 6), v(ML + 8)))
        a('v_max3_f32 %s, %s, %s, %s' % (v(M), v(M), v(ML + 10), v(ML + 12)))
        a('v_max_f32 %s, %s, %s' % (v(M), v(M), v(ML + 14)))
        for w in range(8): a('v_sub_f32 %s, %s, %s' % (v(F + w), v(ML + 2 * w), v(M)))
        for w in range(8): a('v_mul_f32 %s, %s, %s' % (v(F + w), sC1, v(F + w)))
        for w in range(8): a('v_exp_f32 %s, %s' % (v(F + w), v(F + w)))
        Ls = G_ + 6
        a('v_mul_f32 %s, %s, %s' % (v(Ls), v(F), v(ML + 1)))
        for w in range(1, 8): a('v_fmac_f32 %s, %s, %s' % (v(Ls), v(F + w), v(ML + 2 * w + 1)))
        a('s_waitcnt lgkmcnt(0)')
        a('v_mul_f32 %s, %s, %s' % (v(G_), v(F), v(OB)))
        a('v_mul_f32 %s, %s, %s' % (v(G_ + 2), v(F), v(OB + 1)))
        for w in range(1, 8):
            a('v_fmac_f32 %s, %s, %s' % (v(G_), v(F + w), v(OB + 2 * w)))
            a('v_fmac_f32 %s, %s, %s' % (v(G_ + 2), v(F + w), v(OB + 2 * w + 1)))
        for k in (1, 3, 5, 7): a('v_mov_b32 %s, %s' % (v(G_ + k), sTAG))
        s.st_ws(G_, 'v5', sC2)
        a('s_mov_b32 %s, 1' % sT0); a('s_mov_b32 %s, 1' % sT1)
        a('s_mov_b64 exec, s[64:65]')
        s.st_ws(G_ + 4, 'v1', sC3)
        a('s_mov_b64 exec, -1')
        s.stamp(6)
        a('s_cmp_ge_u32 s2, 224')
        a('s_cbranch_scc1 L_s4_stream')
        a('s_cmp_lt_u32 s2, 128')
        a('s_cbranch_scc1 L_end')
        a('s_cmp_ge_u32 s2, 184')
        a('s_cbranch_scc1 L_end')
        s.s3_stream()
        a.label('L_s4_stream')
        s.s4_stream()

    def s3_stream(s):
        a = s.a
        a.c('---------------- S3: hh slice = gelu(y @ w1[:, 64 cols] + b1) on stream waves (2 blocks of 64 rows each)')
        s.srd(SRD_W, P_W1, 1024 * 7168)
        a('s_sub_u32 %s, s2, 128' % sJ)
        a('v_lshrrev_b32 v1, 3, v0')
        a('v_mul_u32_u24 v1, %d, v1' % (8 * 7168))
        a('v_and_b32 v4, 7, v0')
        a('v_lshl_add_u32 v1, v4, 4, v1')
        a('s_mul_i32 s7, s3, %d' % (128 * 7168))
        a('s_lshl_b32 %s, %s, 7' % (sT1, sJ))
        a('s_add_u32 s7, s7, %s' % sT1)
        s.tile_load(2, 'v1', 's7', 64 * 7168, 7168)
        a('v_and_b32 v4, 15, v0')
        a('v_lshlrev_b32 v4, 3, v4')
        a('v_add_u32 v4, %s, v4' % sT1)
        a('global_load_dwordx2 v[6:7], v4, %s' % sp(P_B1))
        s.tile_transpose(2, later=1)
        a('v_lshrrev_b32 v1, 4, v0')
        a('v_lshlrev_b32 v1, 5, v1')
        a('v_and_b32 v4, 1, v0')
        a('v_lshl_add_u32 v1, v4, 4, v1')
        a('s_lshl_b32 %s, s3, 8' % sT0)
        a('s_add_u32 %s, %s, %d' % (sT0, sT0, L_X))
        a('v_add_u32 v1, %s, v1' % sT0)
        a('v_lshrrev_b32 v2, 4, v0')
        a('v_mul_u32_u24 v2, 14336, v2')
        a('v_and_b32 v4, 15, v0')
        a('v_lshl_add_u32 v2, v4, 4, v2')
        a('s_mul_i32 %s, s3, %d' % (sC2, 4 * 14336))
        a('s_lshl_b32 %s, %s, 8' % (sT1, sJ))
        a('s_add_u32 %s, %s, %s' % (sC2, sC2, sT1))
        a('s_add_u32 %s, %s, 0x%x' % (sC2, sC2, OFF_HH))
        a('s_mov_b32 %s, %s' % (sC0, f32(0.044715)))
        a('s_mov_b32 %s, %s' % (sC1, f32(-2.0 * math.sqrt(2.0 / math.pi) * math.log2(math.e))))
        a('s_waitcnt vmcnt(0)')
        B1 = 72
        s.unpack(6, B1, B1 + 1); s.unpack(7, B1 + 2, B1 + 3)
        s.wait_lds(CNT_X, 4)
        acc = s.tile_mfma(2, 'v1', 128)
        s.gemvC_partial(acc, 's3')
        s.signal(CNT_S)
        s.wait_lds(CNT_S, 8)
        D = 76; TMP = 8; T = 80; G = 84
        s.gemvC_gather(8, D, TMP)
        s.rnd2(D, D + 1, T); s.rnd2(D + 2, D + 3, T)
        for c in range(4): a('v_add_f32 %s, %s, %s' % (v(D + c), v(D + c), v(B1 + c)))
        s.rnd2(D, D + 1, T); s.rnd2(D + 2, D + 3, T)
        for c in range(4): a('v_mul_f32 %s, %s, %s' % (v(T + c), v(D + c), v(D + c)))
        for c in range(4): a('v_mul_f32 %s, %s, %s' % (v(T + c), v(T + c), v(D + c)))
        for c in range(4): a('v_fma_f32 %s, %s, %s, %s' % (v(T + c), v(T + c), sC0, v(D + c)))
        for c in range(4): a('v_mul_f32 %s, %s, %s' % (v(T + c), sC1, v(T + c)))
        for c in range(4): a('v_exp_f32 %s, %s' % (v(T + c), v(T + c)))
        for c in range(4): a('v_add_f32 %s, 1.0, %s' % (v(T + c), v(T + c)))
        for c in range(4): a('v_rcp_f32 %s, %s' % (v(T + c), v(T + c)))
        for c in range(4): a('v_mul_f32 %s, %s, %s' % (v(D + c), v(D + c), v(T + c)))
        s.mk_granule(G, D)
        s.st_ws(G, 'v2', sC2)
        a('s_branch L_end')

    def s4_stream(s):
        a = s.a
        a.c('---------------- S4: out slice (32 cols) = x1 + gb*(hh @ w2[:, 32 cols] + b2); waves 0..6, 4 blocks of 128 rows')
        a('s_cmp_eq_u32 s3, 7')
        a('s_cbranch_scc1 L_end')
        s.srd(SRD_W, P_W2, 3584 * 2048)
        a('s_sub_u32 %s, s2, 224' % sJ)
        a('v_lshrrev_b32 v1, 2, v0')
        a('v_lshlrev_b32 v1, 14, v1')
        a('v_and_b32 v4, 3, v0')
        a('v_lshl_add_u32 v1, v4, 4, v1')
        a('s_lshl_b32 s7, s3, 20')
        a('s_lshl_b32 %s, %s, 6' % (sT1, sJ))
        a('s_add_u32 s7, s7, %s' % sT1)
        s.tile_load(4, 'v1', 's7', 128 * 2048, 2048)
        a('v_and_b32 v4, 31, v0')
        a('v_lshlrev_b32 v4, 1, v4')
        a('v_add_u32 v2, %s, v4' % sT1)
        a('global_load_ushort v6, v2, %s' % sp(P_B2))
        s.tile_transpose(4, later=1)
        a('v_lshrrev_b32 v1, 4, v0')
        a('v_lshlrev_b32 v1, 6, v1')
        a('v_and_b32 v4, 3, v0')
        a('v_lshl_add_u32 v1, v4, 4, v1')
        a('s_lshl_b32 %s, s3, 10' % sT0)
        a('s_add_u32 %s, %s, %d' % (sT0, sT0, L_X))
        a('v_add_u32 v1, %s, v1' % sT0)
        a('s_waitcnt vmcnt(0)')
        a('v_lshlrev_b32 v6, 16, v6')
        s.wait_lds(CNT_X, 4)
        acc = s.tile_mfma(4, 'v1', 256)
        AF = s.R[3] + 16
        for e in range(8):
            a('v_add_f32_dpp %s, %s, %s row_ror:8 row_mask:0xf bank_mask:0xf' % (v(acc[e]), v(acc[e] + 2), v(acc[e])))
            a('v_add_f32_dpp %s, %s, %s row_ror:8 row_mask:0xf bank_mask:0xf' % (v(acc[e] + 1), v(acc[e] + 3), v(acc[e] + 1)))
        for e in range(8):
            a('v_add_f32_dpp %s, %s, %s row_shl:4 row_mask:0xf bank_mask:0xf' % (v(AF + e), v(acc[e] + 1), v(acc[e])))
        a('s_lshl_b32 %s, s3, 8' % sT0)
        a('v_lshlrev_b32 v5, 5, v0')
        a('v_add_u32 v5, %s, v5' % sT0)
        a('s_mov_b64 exec, 0xf')
        a('ds_write_b128 v5, %s offset:%d' % (v(AF, 4), L_RED))
        a('ds_write_b128 v5, %s offset:%d' % (v(AF + 4, 4), L_RED + 16))
        a('s_mov_b64 exec, -1')
        s.signal(CNT_S)
        a('s_cmp_lg_u32 s3, 0')
        a('s_cbranch_scc1 L_end')
        s.wait_lds(CNT_S, 7)
        a('v_and_b32 v4, 31, v0')
        a('v_lshlrev_b32 v5, 2, v4')
        a('v_lshlrev_b32 v4, 1, v4')
        for w in range(7): a('ds_read_b32 %s, v5 offset:%d' % (v(8 + w), L_RED + 256 * w))
        a('ds_read_u16 v16, v4 offset:%d' % (L_G + 64))
        a('ds_read_u16 v17, v4 offset:%d' % L_X1)
        a('s_waitcnt lgkmcnt(0)')
        for w in range(1, 7): a('v_add_f32 v8, v8, %s' % v(8 + w))
        a('v_lshlrev_b32 v16, 16, v16')
        a('v_lshlrev_b32 v17, 16, v17')
        s.rnd1(8)
        a('v_add_f32 v8, v8, v6')
        s.rnd1(8)
        a('v_mul_f32 v8, v8, v16')
        s.rnd1(8)
        a('v_add_f32 v8, v8, v17')
        a('v_cvt_pk_bf16_f32 v8, v8, v8')
        a('s_mov_b32 exec_lo, -1'); a('s_mov_b32 exec_hi, 0')
        a('buffer_store_short v8, v2, %s, 0 offen' % SRD_OUT)
        a('s_mov_b64 exec, -1')
        a('s_cmp_lg_u32 s2, 224')
        a('s_cbranch_scc1 L_end')
        a('v_mov_b32 v4, %s' % sTAG)
        a('s_mov_b64 exec, 1')
        a('buffer_store_dword v4, v3, %s, 0 offen sc1' % SRD_WS)
        a('s_mov_b64 exec, -1')
        a('s_branch L_end')

    def role(s):
        a = s.a
        a.c('---------------- role wave')
        a('s_setprio 2')
        a('s_sub_u32 %s, s3, 8' % sR)
        a('v_lshlrev_b32 v4, 2, v0')
        a('ds_write_b32 v4, v3')
        a('s_waitcnt lgkmcnt(0)')
        a('s_add_u32 %s, %s, 1' % (sTAG, sTAG))
        a('s_barrier')
        a('s_cmp_lt_u32 s2, 64')
        a('s_cbranch_scc1 L_p2')
        a('s_cmp_lt_u32 s2, 128')
        a('s_cbranch_scc1 L_s1')
        a('s_cmp_ge_u32 s2, 224')
        a('s_cbranch_scc1 L_s2')
        s.mod_role()
        a.label('L_p2'); s.p2_role()
        a.label('L_s1'); s.s1_role()
        a.label('L_s2'); s.s2_role()

    def gemvC_setup(s, ptr, pitch, nbytes, colbyte_sgpr):
        a = s.a
        s.srd(SRD_W, ptr, nbytes)
        a('v_lshrrev_b32 v1, 3, v0')
        a('v_mul_u32_u24 v1, %d, v1' % (8 * pitch))
        a('v_and_b32 v4, 7, v0')
        a('v_lshl_add_u32 v1, v4, 4, v1')
        a('s_mul_i32 s7, %s, %d' % (sR, 256 * pitch))
        a('s_add_u32 s7, s7, %s' % colbyte_sgpr)
        s.tile_load(4, 'v1', 's7', 64 * pitch, pitch)
    def afragC_addr(s):
        a = s.a
        a('v_lshrrev_b32 v1, 4, v0')
        a('v_lshlrev_b32 v1, 5, v1')
        a('v_and_b32 v4, 1, v0')
        a('v_lshl_add_u32 v1, v4, 4, v1')
        a('s_lshl_b32 %s, %s, 9' % (sT0, sR))
        a('s_add_u32 %s, %s, %d' % (sT0, sT0, L_X))
        a('v_add_u32 v1, %s, v1' % sT0)
    def xw_addr(s, dst):
        a = s.a
        a('s_lshl_b32 %s, %s, 9' % (sT0, sR))
        a('s_add_u32 %s, %s, %d' % (sT0, sT0, L_X))
        a('v_lshlrev_b32 %s, 3, v0' % dst)
        a('v_add_u32 %s, %s, %s' % (dst, sT0, dst))
    def q_wait(s):
        a = s.a
        F = s.R[3]
        a('s_lshl_b32 %s, s2, 12' % sC2)
        a('s_lshl_b32 %s, %s, 10' % (sT0, sR))
        a('s_add_u32 %s, %s, %s' % (sC2, sC2, sT0))
        a('s_add_u32 %s, %s, 0x%x' % (sC2, sC2, OFF_Q))
        s.poll([(F, 'v2', sC2, 0)], sleep=s.qsleep)
        a('v_mov_b32 %s, %s' % (v(F + 1), v(F + 2)))
        a('s_lshl_b32 %s, %s, 9' % (sT0, sR))
        a('v_lshlrev_b32 v4, 3, v0')
        a('v_add_u32 v4, %s, v4' % sT0)
        a('ds_write_b64 v4, %s offset:%d' % (v(F, 2), L_Q))
        s.signal(CNT_Q)
        s.stamp(3)

    def mod_role(s):
        a = s.a
        a.c('---------------- P1 (wg 192..223: sa/ca) and M2 (wg 128..191: ga,sb,cb,gb): mod slice = silu(c) @ w_mod[:, 64 cols]')
        a('s_mov_b32 %s, 96' % sT0)
        a('s_cmp_ge_u32 s2, 192')
        a('s_cselect_b32 %s, 192, %s' % (sT0, sT0))
        a('s_sub_u32 %s, s2, %s' % (sJ, sT0))
        a('s_lshl_b32 %s, %s, 9' % (sT0, sR))
        a('v_lshlrev_b32 v4, 3, v0')
        a('v_add_u32 v4, %s, v4' % sT0)
        a('global_load_dwordx2 v[6:7], v4, %s' % sp(P_C))
        a('s_lshl_b32 %s, %s, 7' % (sT1, sJ))
        s.gemvC_setup(P_WM, 12288, 1024 * 12288, sT1)
        X = s.X
        a('s_waitcnt vmcnt(32)')
        s.unpack(6, X, X + 1); s.unpack(7, X + 2, X + 3)
        a('s_mov_b32 %s, 0x%x' % (sC1, LOG2E))
        for c in range(4): a('v_mul_f32 %s, %s, -%s' % (v(X + 4 + c), sC1, v(X + c)))
        for c in range(4): a('v_min_f32 %s, %s, %s' % (v(X + 4 + c), f32(120.0), v(X + 4 + c)))
        for c in range(4): a('v_exp_f32 %s, %s' % (v(X + 4 + c), v(X + 4 + c)))
        for c in range(4): a('v_add_f32 %s, 1.0, %s' % (v(X + 4 + c), v(X + 4 + c)))
        for c in range(4): a('v_rcp_f32 %s, %s' % (v(X + 8 + c), v(X + 4 + c)))
        for c in range(4): s.div([X + c], X + 4 + c, X + 8 + c, [X + 12, X + 13])
        a('v_cvt_pk_bf16_f32 v6, %s, %s' % (v(X), v(X + 1)))
        a('v_cvt_pk_bf16_f32 v7, %s, %s' % (v(X + 2), v(X + 3)))
        s.xw_addr('v4')
        a('ds_write_b64 v4, v[6:7]')
        s.afragC_addr()
        s.tile_transpose(4)
        s.stamp(1)
        acc = s.tile_mfma(4, 'v1', 128)
        s.gemvC_partial(acc, sR)
        s.signal(CNT_R1)
        s.wait_lds(CNT_R1, 4)
        D = 8; TMP = 16; G = 12
        s.gemvC_gather(4, D, TMP)
        s.mk_granule(G, D)
        a('v_and_b32 v5, 15, v0')
        a('v_lshlrev_b32 v5, 4, v5')
        a('v_lshrrev_b32 v6, 4, v0')
        a('s_lshl_b32 %s, %s, 4' % (sT0, sR))
        a('v_add_u32 v6, %s, v6' % sT0)
        a('s_cmp_lt_u32 %s, 32' % sJ)
        a('s_cbranch_scc1 L_pub_p1')
        a('s_cmp_lt_u32 %s, 48' % sJ)
        a('s_cbranch_scc1 L_pub_g')
        a('s_cmp_ge_u32 %s, 80' % sJ)
        a('s_cbranch_scc1 L_pub_g')
        a('s_sub_u32 %s, %s, 48' % (sT0, sJ))
        a('s_lshl_b32 %s, %s, 8' % (sT0, sT0))
        a('s_add_u32 %s, %s, 0x%x' % (sT0, sT0, OFF_SBCB))
        for k in range(4):
            a('v_add_u32 v7, %d, v6' % (4 * k))
            a('v_min_u32 v7, 55, v7')
            a('v_lshl_add_u32 v7, v7, 13, v5')
            s.st_ws(G, 'v7', sT0)
        a('s_branch L_pub_done')
        a.label('L_pub_g')
        a('s_cmp_lg_u32 %s, 0' % sR)
        a('s_cbranch_scc1 L_pub_done')
        a('s_and_b32 %s, %s, 15' % (sT0, sJ))
        a('s_lshl_b32 %s, %s, 9' % (sT0, sT0))
        a('s_cmp_ge_u32 %s, 80' % sJ)
        a('s_cselect_b32 %s, 128, 0' % sT1)
        a('s_add_u32 %s, %s, %s' % (sT0, sT0, sT1))
        a('s_add_u32 %s, %s, 0x%x' % (sT0, sT0, OFF_G))
        a('v_bfe_u32 v7, v0, 3, 1')
        a('v_lshlrev_b32 v7, 8, v7')
        a('v_and_b32 v6, 7, v0')
        a('v_lshl_add_u32 v7, v6, 4, v7')
        a('s_mov_b64 exec, 0xffff')
        s.st_ws(G, 'v7', sT0)
        a('s_mov_b64 exec, -1')
        a('s_branch L_pub_done')
        a.label('L_pub_p1')
        a('s_lshl_b32 %s, %s, 8' % (sT0, sJ))
        a('s_add_u32 %s, %s, 0x%x' % (sT0, sT0, OFF_MOD))
        a('v_lshl_add_u32 v7, v6, 13, v5')
        for k in range(4):
            a('s_add_u32 %s, %s, 0x%x' % (sT1, sT0, 4 * k * 8192))
            s.st_ws(G, 'v7', sT1)
        a.label('L_pub_done')
        s.stamp(2)
        s.q_wait()
        a('s_cmp_ge_u32 s2, 184')
        a('s_cbranch_scc1 L_end')
        s.s3_role()

    def p2_role(s):
        a = s.a
        a.c('---------------- P2 (wg 0..63): q slice = h @ wq[:, 64 cols]')
        F = s.R[3]; X = s.X
        a('s_mov_b32 %s, s2' % sJ)
        a('v_lshlrev_b32 v4, 5, v0')
        a('global_load_dwordx4 %s, v4, %s' % (v(X, 4), sp(P_X)))
        a('global_load_dwordx4 %s, v4, %s offset:16' % (v(X + 4, 4), sp(P_X)))
        a('s_lshl_b32 %s, %s, 9' % (sT0, sR))
        a('v_lshlrev_b32 v4, 3, v0')
        a('v_add_u32 v4, %s, v4' % sT0)
        a('global_load_dwordx2 v[6:7], v4, %s' % sp(P_X))
        a('s_lshl_b32 %s, %s, 7' % (sT1, sJ))
        s.gemvC_setup(P_WQ, 8192, 1024 * 8192, sT1)
        a('s_waitcnt vmcnt(32)')
        U = X + 8; S1 = X + 24; S2 = X + 25
        for k in range(8): s.unpack(X + k, U + 2 * k, U + 2 * k + 1)
        a('v_add_f32 %s, %s, %s' % (v(S1), v(U), v(U + 1)))
        a('v_mul_f32 %s, %s, %s' % (v(S2), v(U), v(U)))
        a('v_fmac_f32 %s, %s, %s' % (v(S2), v(U + 1), v(U + 1)))
        for k in range(2, 16):
            a('v_add_f32 %s, %s, %s' % (v(S1), v(S1), v(U + k)))
            a('v_fmac_f32 %s, %s, %s' % (v(S2), v(U + k), v(U + k)))
        s.bfly('v_add_f32', [S1, S2], [X + 26, X + 27], [1, 2, 4, 8, 16, 32])
        MEAN, DD, RR = X + 28, X + 29, X + 30
        s.ln_stats(S1, S2, MEAN, DD, RR, X + 31)
        s.unpack(6, X, X + 1); s.unpack(7, X + 2, X + 3)
        s.ln_apply([X, X + 1, X + 2, X + 3], MEAN, DD, RR, [X + 4, X + 5])
        a('v_cvt_pk_bf16_f32 v6, %s, %s' % (v(X), v(X + 1)))
        a('v_cvt_pk_bf16_f32 v7, %s, %s' % (v(X + 2), v(X + 3)))
        s.afragC_addr()
        s.tile_transpose(4)
        s.stamp(1)
        a('s_lshl_b32 %s, %s, 13' % (sC2, sJ))
        a('s_lshl_b32 %s, %s, 10' % (sT0, sR))
        a('s_add_u32 %s, %s, %s' % (sC2, sC2, sT0))
        a('s_add_u32 %s, %s, 0x%x' % (sC2, sC2, OFF_MOD))
        a('s_add_u32 %s, %s, 4096' % (sC3, sC2))
        s.xw_addr('v5')
        XN = F + 8; SA = F + 12; CA = F + 16; T = F + 20
        s.unpack(6, XN, XN + 1); s.unpack(7, XN + 2, XN + 3)
        s.poll([(F, 'v2', sC2, 0), (F + 4, 'v2', sC3, 0)])
        s.stamp(4)
        s.unpack(F, SA, SA + 1); s.unpack(F + 2, SA + 2, SA + 3)
        s.unpack(F + 4, CA, CA + 1); s.unpack(F + 6, CA + 2, CA + 3)
        for c in range(4): a('v_add_f32 %s, 1.0, %s' % (v(CA + c), v(CA + c)))
        s.rnd2(CA, CA + 1, T); s.rnd2(CA + 2, CA + 3, T + 1)
        for c in range(4): a('v_mul_f32 %s, %s, %s' % (v(XN + c), v(XN + c), v(CA + c)))
        s.rnd2(XN, XN + 1, T); s.rnd2(XN + 2, XN + 3, T + 1)
        for c in range(4): a('v_add_f32 %s, %s, %s' % (v(XN + c), v(XN + c), v(SA + c)))
        a('v_cvt_pk_bf16_f32 v6, %s, %s' % (v(XN), v(XN + 1)))
        a('v_cvt_pk_bf16_f32 v7, %s, %s' % (v(XN + 2), v(XN + 3)))
        a('ds_write_b64 v5, v[6:7]')
        acc = s.tile_mfma(4, 'v1', 128)
        s.gemvC_partial(acc, sR)
        s.signal(CNT_R1)
        s.wait_lds(CNT_R1, 4)
        D = 8; TMP = 16; G = 12
        s.gemvC_gather(4, D, TMP)
        s.mk_granule(G, D)
        a('v_and_b32 v5, 15, v0')
        a('v_lshlrev_b32 v5, 4, v5')
        a('v_lshrrev_b32 v6, 4, v0')
        a('v_lshl_add_u32 v7, v6, 12, v5')
        a('s_lshr_b32 %s, %s, 4' % (sT0, sJ))
        a('s_lshl_b32 %s, %s, 18' % (sT0, sT0))
        a('s_lshl_b32 %s, %s, 16' % (sT1, sR))
        a('s_add_u32 %s, %s, %s' % (sT0, sT0, sT1))
        a('s_and_b32 %s, %s, 15' % (sT1, sJ))
        a('s_lshl_b32 %s, %s, 8' % (sT1, sT1))
        a('s_add_u32 %s, %s, %s' % (sT0, sT0, sT1))
        a('s_add_u32 %s, %s, 0x%x' % (sT0, sT0, OFF_Q))
        for k in range(4):
            a('s_add_u32 %s, %s, 0x%x' % (sT1, sT0, 4 * k * 4096))
            s.st_ws(G, 'v7', sT1)
        s.stamp(2)
        s.q_wait()
        a('s_branch L_end')

    def s1_role(s):
        a = s.a
        a.c('---------------- S1 (wg 64..127): combine half a head over 64 WGs, partial attn = o_slice @ wo[64 rows, :]')
        F = s.R[3]
        a('s_sub_u32 %s, s2, 64' % sJ)
        s.srd(SRD_W, P_WO, 4096 * 2048)
        a('v_lshrrev_b32 v1, 5, v0')
        a('v_lshlrev_b32 v1, 14, v1')
        a('v_and_b32 v4, 31, v0')
        a('v_lshl_add_u32 v1, v4, 4, v1')
        a('s_lshl_b32 s7, %s, 17' % sJ)
        a('s_lshl_b32 %s, %s, 9' % (sT0, sR))
        a('s_add_u32 s7, s7, %s' % sT0)
        s.tile_load(4, 'v1', 's7', 16 * 2048, 2048)
        s.tile_transpose(4)
        s.stamp(1)
        s.q_wait()
        a('v_lshrrev_b32 v1, 5, v0')
        a('v_lshlrev_b32 v1, 4, v1')
        a('v_add_u32 v1, %d, v1' % L_X)
        a('v_lshrrev_b32 v4, 4, v0')
        a('v_xor_b32 v4, v4, v0')
        a('v_and_b32 v4, 1, v4')
        a('v_cmp_eq_u32 vcc, 0, v4')
        a('v_mov_b32 v4, %d' % L_ZERO)
        a('v_cndmask_b32 v1, v4, v1, vcc')
        a('v_lshrrev_b32 v4, 4, v0')
        a('v_cmp_eq_u32 %s, 1, v4' % sM0)
        a('v_cmp_eq_u32 %s, 2, v4' % sM1)
        a('v_cmp_eq_u32 s[82:83], 3, v4')
        a('s_lshl_b32 %s, %s, 15' % (sC2, sJ))
        a('s_lshl_b32 %s, %s, 13' % (sT0, sR))
        a('s_add_u32 %s, %s, %s' % (sC2, sC2, sT0))
        a('s_add_u32 %s, %s, 0x%x' % (sC2, sC2, OFF_O))
        a('s_add_u32 %s, %s, 4096' % (sC3, sC2))
        a('s_lshl_b32 %s, %s, 10' % (sC0, sJ))
        a('s_add_u32 %s, %s, 0x%x' % (sC0, sC0, OFF_ML))
        a('s_mov_b32 %s, 0x%x' % (sC1, LOG2E))
        s.wait_lds(CNT_ATT, 8, sleep=1)
        s.stamp(4)
        s.poll([(4, 'v2', sC0, 0)] + [(F + 4 * k, 'v2', sC2 if k < 4 else sC3, (k & 3) * 1024) for k in range(8)])
        s.stamp(5)
        a('v_mov_b32 v5, v4')
        s.bfly('v_max_f32', [5], [7], [1, 2, 4, 8, 16, 32])
        a('v_sub_f32 v4, v4, v5')
        a('v_mul_f32 v4, %s, v4' % sC1)
        a('v_exp_f32 v4, v4')
        a('v_mul_f32 v6, v6, v4')
        a('v_lshrrev_b32 v5, 3, v0')
        a('v_lshlrev_b32 v5, 2, v5')
        for k in range(8):
            a('ds_bpermute_b32 %s, v5, v4 offset:%d' % (v(F + 4 * k + 1), 32 * k))
        s.bfly('v_add_f32', [6], [7], [1, 2, 4, 8, 16, 32])
        a('v_rcp_f32 v7, v6')
        a('s_waitcnt lgkmcnt(0)')
        a('v_mul_f32 v4, %s, %s' % (v(F), v(F + 1)))
        a('v_mul_f32 v5, %s, %s' % (v(F + 2), v(F + 1)))
        for k in range(1, 8):
            a('v_fmac_f32 v4, %s, %s' % (v(F + 4 * k), v(F + 4 * k + 1)))
            a('v_fmac_f32 v5, %s, %s' % (v(F + 4 * k + 2), v(F + 4 * k + 1)))
        s.bfly('v_add_f32', [4, 5], [F, F + 1], [8, 16, 32])
        s.div([4, 5], 6, 7, [F, F + 1])
        a('v_cvt_pk_bf16_f32 v4, v4, v5')
        a('v_lshlrev_b32 v5, 2, v0')
        a('s_lshl_b32 %s, %s, 5' % (sT0, sR))
        a('v_add_u32 v5, %s, v5' % sT0)
        a('s_mov_b64 exec, 0xff')
        a('ds_write_b32 v5, v4 offset:%d' % L_X)
        a('s_mov_b64 exec, -1')
        s.signal(CNT_R2)
        a('v_bfe_u32 v5, v0, 2, 2')
        a('v_lshlrev_b32 v5, 14, v5')
        a('v_and_b32 v6, 3, v0')
        a('v_lshl_add_u32 v5, v6, 12, v5')
        a('v_lshrrev_b32 v6, 4, v0')
        a('v_lshl_add_u32 v5, v6, 4, v5')
        a('s_lshl_b32 %s, %s, 17' % (sC2, sR))
        a('s_lshl_b32 %s, %s, 6' % (sT0, sJ))
        a('s_add_u32 %s, %s, %s' % (sC2, sC2, sT0))
        a('s_add_u32 %s, %s, 0x%x' % (sC2, sC2, OFF_A))
        a('s_add_u32 %s, %s, 0x10000' % (sC3, sC2))
        s.wait_lds(CNT_R2, 4)
        acc = s.tile_mfma(4, 'v1', 32)
        G = F + 16
        for mu in range(2):
            for k in range(2):
                d = G + 4 * mu + 2 * k
                a('v_cndmask_b32 %s, %s, %s, %s' % (v(d), v(acc[k] + mu), v(acc[2 + k] + mu), sM0))
                a('v_cndmask_b32 %s, %s, %s, %s' % (v(d), v(d), v(acc[4 + k] + mu), sM1))
                a('v_cndmask_b32 %s, %s, %s, %s' % (v(d), v(d), v(acc[6 + k] + mu), 's[82:83]'))
                a('v_mov_b32 %s, %s' % (v(d + 1), sTAG))
        s.st_ws(G, 'v5', sC2)
        s.st_ws(G + 4, 'v5', sC3)
        s.stamp(6)
        a('s_branch L_end')

    def s2_role(s):
        a = s.a
        a.c("---------------- S2' (wg 224..255): x1 slice; then gather hh for S4")
        a('s_sub_u32 %s, s2, 224' % sJ)
        a('v_and_b32 v1, 3, v0')
        a('v_lshlrev_b32 v1, 2, v1')
        a('s_lshl_b32 %s, %s, 4' % (sT0, sR))
        a('v_add_u32 v1, %s, v1' % sT0)
        a('s_lshl_b32 %s, %s, 6' % (sT1, sJ))
        a('v_add_u32 v4, %s, v1' % sT1)
        a('global_load_dword v8, v4, %s' % sp(P_X))
        s.q_wait()
        a('v_and_b32 v5, 15, v0')
        a('v_lshlrev_b32 v6, 4, v5')
        a('s_lshl_b32 %s, %s, 8' % (sC2, sJ))
        a('s_add_u32 %s, %s, 0x%x' % (sC2, sC2, OFF_G))
        s.poll([(12, 'v6', sC2, 0)], sleep=s.qsleep)
        a('v_mov_b32 v13, v14')
        a('v_lshlrev_b32 v5, 3, v5')
        a('ds_write_b64 v5, v[12:13] offset:%d' % L_G)
        a('ds_read_b32 v9, v1 offset:%d' % L_G)
        a('s_waitcnt lgkmcnt(0)')
        s.unpack(8, 10, 11)
        s.unpack(9, 12, 13)
        a('s_lshl_b32 %s, %s, 14' % (sC2, sJ))
        a('s_lshl_b32 %s, %s, 12' % (sT0, sR))
        a('s_add_u32 %s, %s, %s' % (sC2, sC2, sT0))
        a('s_add_u32 %s, %s, 0x%x' % (sC2, sC2, OFF_A))
        a('v_lshrrev_b32 v5, 1, v0')
        a('v_and_b32 v6, 1, v0')
        a('v_lshlrev_b32 v6, 4, v6')
        a('v_add_u32 v7, 32, v5')
        a('v_min_u32 v7, 55, v7')
        a('v_lshl_add_u32 v5, v5, 12, v6')
        a('v_lshl_add_u32 v7, v7, 12, v6')
        a('s_lshl_b32 %s, %s, 7' % (sC3, sJ))
        a('s_lshl_b32 %s, %s, 5' % (sT0, sR))
        a('s_add_u32 %s, %s, %s' % (sC3, sC3, sT0))
        a('s_add_u32 %s, %s, 0x%x' % (sC3, sC3, OFF_X1))
        a('s_mul_i32 %s, %s, 14336' % (sC0, sJ))
        a('s_mul_i32 %s, %s, 3584' % (sT0, sR))
        a('s_add_u32 %s, %s, %s' % (sC0, sC0, sT0))
        a('s_add_u32 %s, %s, 0x%x' % (sC0, sC0, OFF_HH))
        a('v_add_u32 v14, 192, v0')
        a('v_min_u32 v14, 223, v14')
        a('v_lshlrev_b32 v15, 3, v14')
        a('v_lshlrev_b32 v14, 4, v14')
        a('s_mul_i32 %s, %s, 1792' % (sT0, sR))
        a('s_add_u32 %s, %s, %d' % (sT0, sT0, L_X))
        a('v_add_u32 v15, %s, v15' % sT0)
        a('v_lshlrev_b32 v16, 3, v0')
        a('v_add_u32 v16, %s, v16' % sT0)
        s.wait_lds(CNT_ATT, 8, sleep=1)
        s.stamp(4)
        P = 24
        s.poll([(P + 4 * k, 'v2', sC2, 1024 * k) for k in range(4)])
        s.stamp(5)
        a('v_add_f32 %s, %s, %s' % (v(P), v(P), v(P + 4)))
        a('v_add_f32 %s, %s, %s' % (v(P + 2), v(P + 2), v(P + 6)))
        a('v_add_f32 %s, %s, %s' % (v(P + 8), v(P + 8), v(P + 12)))
        a('v_add_f32 %s, %s, %s' % (v(P + 10), v(P + 10), v(P + 14)))
        a('v_add_f32 %s, %s, %s' % (v(P), v(P), v(P + 8)))
        a('v_add_f32 %s, %s, %s' % (v(P + 1), v(P + 2), v(P + 10)))
        for st in (4, 8):
            for r in (P, P + 1):
                a('v_add_f32_dpp %s, %s, %s row_ror:%d row_mask:0xf bank_mask:0xf' % (v(r), v(r), v(r), st))
        s.bfly('v_add_f32', [P, P + 1], [P + 2, P + 3], [16, 32])
        s.rnd2(P, P + 1, P + 2)
        a('v_mul_f32 %s, %s, v12' % (v(P), v(P)))
        a('v_mul_f32 %s, %s, v13' % (v(P + 1), v(P + 1)))
        s.rnd2(P, P + 1, P + 2)
        a('v_add_f32 %s, %s, v10' % (v(P), v(P)))
        a('v_add_f32 %s, %s, v11' % (v(P + 1), v(P + 1)))
        a('v_cvt_pk_bf16_f32 %s, %s, %s' % (v(P + 2), v(P), v(P + 1)))
        G = P + 4
        a('v_mov_b32 %s, %s' % (v(G + 1), sTAG))
        a('v_mov_b32 %s, %s' % (v(G + 3), sTAG))
        a('v_mov_b32_dpp %s, %s quad_perm:[0,2,0,2] row_mask:0xf bank_mask:0xf' % (v(G), v(P + 2)))
        a('v_mov_b32_dpp %s, %s quad_perm:[1,3,1,3] row_mask:0xf bank_mask:0xf' % (v(G + 2), v(P + 2)))
        s.st_ws(G, 'v5', sC3)
        s.st_ws(G, 'v7', sC3)
        a('s_mov_b64 exec, 0xf')
        a('ds_write_b32 v1, %s offset:%d' % (v(P + 2), L_X1))
        a('s_mov_b64 exec, -1')
        s.stamp(6)
        H = 40
        s.poll([(H + 4 * k, 'v2', sC0, 1024 * k) for k in range(3)] + [(H + 12, 'v14', sC0, 0)])
        for k in range(4): a('v_mov_b32 %s, %s' % (v(H + 4 * k + 1), v(H + 4 * k + 2)))
        for k in range(3): a('ds_write_b64 v16, %s offset:%d' % (v(H + 4 * k, 2), 512 * k))
        a('ds_write_b64 v15, %s' % v(H + 12, 2))
        s.signal(CNT_X)
        a('s_branch L_end')

    def s3_role(s):
        a = s.a
        a.c('---------------- S3 role part (wg 128..183): x1 -> LN -> modulate -> LN -> y in LDS')
        a('s_sub_u32 %s, s2, 128' % sJ)
        a('s_lshl_b32 %s, %s, 13' % (sC2, sJ))
        a('s_lshl_b32 %s, %s, 10' % (sT0, sR))
        a('s_add_u32 %s, %s, %s' % (sC2, sC2, sT0))
        a('s_add_u32 %s, %s, 0x%x' % (sC2, sC2, OFF_SBCB))
        a('s_add_u32 %s, %s, 4096' % (sC3, sC2))
        s.poll([(8, 'v2', sC2, 0), (12, 'v2', sC3, 0)], sleep=s.qsleep)
        SB, CB, XX, T = 16, 20, 24, 28
        s.unpack(8, SB, SB + 1); s.unpack(10, SB + 2, SB + 3)
        s.unpack(12, CB, CB + 1); s.unpack(14, CB + 2, CB + 3)
        for c in range(4): a('v_add_f32 %s, 1.0, %s' % (v(CB + c), v(CB + c)))
        s.rnd2(CB, CB + 1, T); s.rnd2(CB + 2, CB + 3, T)
        a('s_lshl_b32 %s, %s, 12' % (sC2, sJ))
        a('s_lshl_b32 %s, %s, 10' % (sT0, sR))
        a('s_add_u32 %s, %s, %s' % (sC2, sC2, sT0))
        a('s_add_u32 %s, %s, 0x%x' % (sC2, sC2, OFF_X1))
        s.xw_addr('v5')
        a('s_lshl_b32 %s, %s, 3' % (sT0, sR))
        a('v_mov_b32 v6, %s' % sT0)
        s.wait_lds(CNT_ATT, 8, sleep=1)
        s.stamp(4)
        s.poll([(8, 'v2', sC2, 0)])
        s.stamp(5)
        s.unpack(8, XX, XX + 1); s.unpack(10, XX + 2, XX + 3)
        S1, S2, MEAN, DD, RR, RD = 32, 33, 34, 35, 36, 40
        xs = [XX, XX + 1, XX + 2, XX + 3]
        for rnd, cnt in ((0, CNT_R2), (1, CNT_R3)):
            a('v_add_f32 %s, %s, %s' % (v(S1), v(XX), v(XX + 1)))
            a('v_mul_f32 %s, %s, %s' % (v(S2), v(XX), v(XX)))
            a('v_fmac_f32 %s, %s, %s' % (v(S2), v(XX + 1), v(XX + 1)))
            for k in (2, 3):
                a('v_add_f32 %s, %s, %s' % (v(S1), v(S1), v(XX + k)))
                a('v_fmac_f32 %s, %s, %s' % (v(S2), v(XX + k), v(XX + k)))
            s.bfly('v_add_f32', [S1, S2], [T, T + 1], [1, 2, 4, 8, 16, 32])
            a('s_mov_b64 exec, 1')
            a('ds_write_b64 v6, %s offset:%d' % (v(S1, 2), L_ST + 32 * rnd))
            a('s_mov_b64 exec, -1')
            s.signal(cnt)
            s.wait_lds(cnt, 4)
            a('ds_read_b128 %s, v3 offset:%d' % (v(RD, 4), L_ST + 32 * rnd))
            a('ds_read_b128 %s, v3 offset:%d' % (v(RD + 4, 4), L_ST + 32 * rnd + 16))
            a('s_waitcnt lgkmcnt(0)')
            a('v_add_f32 %s, %s, %s' % (v(S1), v(RD), v(RD + 2)))
            a('v_add_f32 %s, %s, %s' % (v(S2), v(RD + 1), v(RD + 3)))
            a('v_add_f32 %s, %s, %s' % (v(RD), v(RD + 4), v(RD + 6)))
            a('v_add_f32 %s, %s, %s' % (v(RD + 1), v(RD + 5), v(RD + 7)))
            a('v_add_f32 %s, %s, %s' % (v(S1), v(S1), v(RD)))
            a('v_add_f32 %s, %s, %s' % (v(S2), v(S2), v(RD + 1)))
            s.ln_stats(S1, S2, MEAN, DD, RR, T)
            s.ln_apply(xs, MEAN, DD, RR, [T, T + 1])
            if rnd == 0:
                for c in range(4): a('v_mul_f32 %s, %s, %s' % (v(XX + c), v(XX + c), v(CB + c)))
                s.rnd2(XX, XX + 1, T); s.rnd2(XX + 2, XX + 3, T + 1)
                for c in range(4): a('v_add_f32 %s, %s, %s' % (v(XX + c), v(XX + c), v(SB + c)))
                s.rnd2(XX, XX + 1, T); s.rnd2(XX + 2, XX + 3, T + 1)
        a('v_cvt_pk_bf16_f32 %s, %s, %s' % (v(T), v(XX), v(XX + 1)))
        a('v_cvt_pk_bf16_f32 %s, %s, %s' % (v(T + 1), v(XX + 2), v(XX + 3)))
        a('ds_write_b64 v5, %s' % v(T, 2))
        s.signal(CNT_X)
        s.stamp(6)
        a('s_branch L_end')

if __name__ == '__main__':
    import argparse
    ap = argparse.ArgumentParser()
    ap.add_argument('-o', default='k.s')
    ap.add_argument('--W', type=int, default=4)
    ap.add_argument('--stamps', action='store_true')
    ap.add_argument('--qsleep', type=int, default=8)
    args = ap.parse_args()
    g = Gen(W=args.W, stamps=args.stamps, qsleep=args.qsleep)
    open(args.o, 'w').write(g.build())
```

```python
import re
_R = re.compile(r'^(-?)(abs\()?([vsa])(\d+)\)?$')
_RR = re.compile(r'^(-?)([vsa])\[(\d+):(\d+)\]$')
def regs(o):
    o = o.strip()
    m = _R.match(o)
    if m: return {(m.group(3), int(m.group(4)))}
    m = _RR.match(o)
    if m: return {(m.group(2), i) for i in range(int(m.group(3)), int(m.group(4)) + 1)}
    if o == 'vcc': return {('s', 106), ('s', 107)}
    if o == 'exec': return {('s', 126), ('s', 127)}
    if o == 'm0': return {('s', 124)}
    return set()
TRANS = ('v_exp_f32', 'v_rcp_f32', 'v_rsq_f32', 'v_sqrt_f32', 'v_log_f32', 'v_sin_f32', 'v_cos_f32')
class Ins:
    def __init__(s, op, ops, mod):
        s.op, s.ops, s.mod = op, ops, mod
        s.mfma = op.startswith('v_mfma')
        s.valu = op.startswith('v_') and not s.mfma
        s.trans = op in TRANS
        s.dpp = op.endswith('_dpp')
        s.perml = op.startswith('v_permlane')
        s.vmem = op.startswith('buffer_') or op.startswith('global_')
        s.ds = op.startswith('ds_')
        s.branch = op.startswith('s_cbranch') or op == 's_branch'
        s.uncond = op in ('s_branch', 's_endpgm', 's_setpc_b64')
        s.rdlane = op.startswith('v_readfirstlane') or op.startswith('v_readlane')
        R = [regs(o) for o in ops]
        allr = set().union(*R) if R else set()
        rest = set().union(*R[1:]) if len(R) > 1 else set()
        s.srcC = set(); s.srcAB = set(); s.stdata = set()
        if s.mfma:
            s.dst = R[0]; s.src = rest; s.srcC = R[3]; s.srcAB = R[1] | R[2]
        elif s.perml:
            s.dst = allr; s.src = allr
        elif s.valu:
            s.dst = R[0]; s.src = rest
            if s.dpp or op.startswith('v_fmac') or op.startswith('v_mac'): s.src = allr
            if op.startswith('v_cndmask') and len(ops) == 3: s.src = s.src | regs('vcc')
        elif s.ds:
            if op.startswith('ds_read') or '_rtn' in op or 'permute' in op or 'swizzle' in op:
                s.dst = R[0]; s.src = rest
            else:
                s.dst = set(); s.src = allr
        elif s.vmem:
            if '_load' in op and ' lds' in (' ' + mod):
                s.dst = set(); s.src = allr | regs('m0')
            elif '_load' in op:
                s.dst = R[0]; s.src = rest
            elif '_atomic' in op:
                s.dst = R[0]; s.src = allr
            else:
                s.dst = set(); s.src = allr
                if 'x4' in op or 'x3' in op:
                    s.stdata = R[0] if op.startswith('buffer_') else R[1]
        elif op.startswith('s_cmp') or op.startswith('s_bitcmp') or s.branch or op in ('s_waitcnt', 's_nop', 's_barrier', 's_sleep', 's_setprio', 's_endpgm'):
            s.dst = set(); s.src = allr
        else:
            s.dst = R[0] if R else set(); s.src = rest
            if 'saveexec' in op: s.dst = s.dst | regs('exec')
        s.slots = (int(ops[0]) + 1) if op == 's_nop' else 1
    def text(s):
        t = '  ' + s.op
        if s.ops: t += ' ' + ', '.join(s.ops)
        if s.mod: t += ' ' + s.mod
        return t
def need(p, c):
    n = 0
    pv = {r for r in p.dst if r[0] in 'va'}
    ps = {r for r in p.dst if r[0] == 's'}
    if p.valu:
        if pv & c.src:
            if c.mfma: n = max(n, 2)
            if c.dpp or c.perml: n = max(n, 2)
            if c.rdlane: n = max(n, 1)
            if p.trans and c.valu and not c.trans: n = max(n, 1)
            if p.trans: n = max(n, 1)
        if ps & c.src:
            if c.valu or c.mfma: n = max(n, 2)
            if c.vmem: n = max(n, 5)
            if c.rdlane: n = max(n, 4)
            if not (c.valu or c.vmem or c.mfma): n = max(n, 1)
    if p.mfma:
        if c.mfma:
            if pv & c.srcAB: n = max(n, 8)
            if pv & c.srcC and c.srcC != p.dst: n = max(n, 6)
            if (pv & c.dst) and not (c.srcC == p.dst and c.dst == p.dst): n = max(n, 6)
        else:
            if pv & (c.src | c.dst): n = max(n, 8)
        if c.valu and (p.srcC & c.dst): n = max(n, 3)
    if (('s', 124) in p.dst) and c.vmem and (('s', 124) in c.src): n = max(n, 1)
    if p.stdata and (p.stdata & c.dst):
        n = max(n, 2)
    return n
class Asm:
    def __init__(s):
        s.items = []
        s.uid = 0
    def raw(s, t): s.items.append(('raw', t))
    def c(s, t): s.items.append(('raw', '  ; ' + t))
    def label(s, n): s.items.append(('label', n))
    def newlabel(s, base):
        s.uid += 1
        return 'L_%s_%d' % (base, s.uid)
    def I(s, op, *ops, mod=''):
        ops = [str(o) for o in ops]
        s.items.append(('ins', Ins(op, ops, mod)))
    def __call__(s, line):
        line = line.strip()
        parts = line.split(None, 1)
        op = parts[0]
        rest = parts[1] if len(parts) > 1 else ''
        ops = []; mod = ''
        if op in ('s_waitcnt',):
            s.items.append(('ins', Ins(op, [], rest))); return
        cur = ''; depth = 0; toks = []
        for ch in rest:
            if ch in '[(': depth += 1
            if ch in '])': depth -= 1
            if ch == ',' and depth == 0:
                toks.append(cur.strip()); cur = ''
            else: cur += ch
        if cur.strip(): toks.append(cur.strip())
        if toks:
            last = toks[-1].split(None, 1)
            toks[-1] = last[0]
            if len(last) > 1: mod = last[1]
        s.items.append(('ins', Ins(op, toks, mod)))
    def finish(s):
        W = 12
        snaps = {}
        for it in range(4):
            out = []
            hist = [[]]
            newsnaps = {}
            def advance(k):
                for h in hist:
                    for i in range(len(h)): h[i] = (h[i][0], h[i][1] + k)
                    while h and h[0][1] > W: h.pop(0)
            for kind, x in s.items:
                if kind == 'raw': out.append(x); continue
                if kind == 'label':
                    out.append(x + ':')
                    for sn in snaps.get(x, []): hist.append(list(sn))
                    continue
                n = 0
                for h in hist:
                    for p, age in h:
                        n = max(n, need(p, x) - age)
                if n > 0:
                    out.append('  s_nop %d' % (n - 1)); advance(n)
                out.append(x.text())
                advance(x.slots)
                merged = {}
                for h in hist:
                    for p, age in h:
                        if id(p) not in merged or merged[id(p)][1] > age: merged[id(p)] = (p, age)
                h = sorted(merged.values(), key=lambda t: -t[1])
                h.append((x, 0))
                hist = [h]
                if x.branch:
                    newsnaps.setdefault(x.ops[0], []).append(list(h))
                if x.uncond: hist = [[]]
            same = (len(snaps) == len(newsnaps) and it > 0 and out == prev)
            prev = out
            snaps = newsnaps
            if same: break
        return '\n'.join(out) + '\n'
```

```python
import sys, math
sys.path.insert(0, 'work')
from asmlib import Asm
NAME = 'adaLN_cond__gqa_block_cached__mixer_channel_mlp__decode'

OFF_MOD, OFF_Q, OFF_SBCB, OFF_G, OFF_ML = 0x010000, 0x100000, 0x200000, 0x280000, 0x290000
OFF_O, OFF_A, OFF_X1, OFF_HH, OFF_TS = 0x300000, 0x500000, 0x580000, 0x600000, 0x8000000
OFF_P = 0x2a0000
OFF_H = OFF_MOD
CNT_Q, CNT_ATT, CNT_R1, CNT_R2, CNT_R3, CNT_X, CNT_S, CNT_T, CNT_W, CNT_K = 0, 4, 8, 12, 16, 20, 24, 28, 32, 36
L_ZERO, L_Q, L_X, L_RED, L_ML, L_ST, L_X1, L_G, L_B1, L_H, L_OB = 64, 256, 2304, 4352, 6400, 6912, 6976, 7040, 7168, 7296, 8192
L_W2 = L_OB + 8 * 4096
LDS_BYTES = L_W2 + 15 * 8192
assert LDS_BYTES <= 163840
CLASSES = [(0, 8, 35), (8, 14, 25), (22, 2, 37), (24, 8, 34), (32, 16, 34), (48, 16, 33)]
sWG, sWAVE, sTAG = 's2', 's3', 's4'
sR = 's5'
sJ = 's6'
sU, sG = 's24', 's25'
sLIVE = 's[26:27]'
sRET, sPASS = 's69', 's100'
sLAST, sH2 = 's100', 's101'
SRD_K, SRD_V, SRD_WS, SRD_W, SRD_OUT = 's[8:11]', 's[12:15]', 's[16:19]', 's[20:23]', 's[28:31]'
P_X, P_K, P_V, P_WQ, P_WO, P_W1, P_B1, P_W2, P_B2, P_C, P_WM, P_OUT, P_DBG, P_WS = 32, 34, 36, 38, 40, 44, 46, 48, 50, 52, 54, 56, 58, 60
sSELLO, sSELHI = 's62', 's63'
sT0, sT1, sT2, sT3, sTO = 's64', 's65', 's66', 's67', 's68'
sACC = 's[70:71]'
sM0, sM1, sM2 = 's[72:73]', 's[74:75]', 's[76:77]'
sC0, sC1, sC2, sC3 = 's78', 's79', 's80', 's81'
TS0 = 84
NSTAMP = 8
LOG2E = 0x3fb8aa3b
def f32(x):
    import struct
    return '0x%08x' % struct.unpack('<I', struct.pack('<f', x))[0]

def v(i, n=1): return 'v%d' % i if n == 1 else 'v[%d:%d]' % (i, i + n - 1)
def sp(i): return 's[%d:%d]' % (i, i + 1)

class Gen:
    def __init__(s, W=4, W2=8, slow=3, stamps=False, qsleep=8, nt=True):
        s.a = Asm(); s.W = W; s.W2 = W2; s.slow = slow; s.stamps = stamps; s.qsleep = qsleep
        s.nt = 'nt' if nt else ''
        s.skip = set(); s.rets = []; s.dry = True; s.kq = 22; s.kqn = 8; s.Wt = 4; s.NL = 15; s.nsleep = 64; s.psleep = 0
    def stamp(s, i):
        if s.stamps:
            s.a('s_memrealtime %s' % sp(TS0 + 2 * i))
    def srd(s, srd, ptr, nbytes):
        a = s.a; b = int(srd[2:srd.index(':')])
        a('s_mov_b32 s%d, s%d' % (b, ptr)); a('s_and_b32 s%d, s%d, 0xffff' % (b + 1, ptr + 1))
        a('s_mov_b32 s%d, 0x%x' % (b + 2, nbytes)); a('s_mov_b32 s%d, 0x20000' % (b + 3))
    def ex(s, m):
        a = s.a
        if m == -1: a('s_mov_b64 exec, %s' % sLIVE)
        elif m == 'lo32': a('s_mov_b32 exec_lo, s26'); a('s_mov_b32 exec_hi, 0')
        elif isinstance(m, str): a('s_and_b64 exec, %s, %s' % (sLIVE, m))
        else: a('s_and_b64 exec, %s, 0x%x' % (sLIVE, m))
    def dry_call(s, seg, rid):
        a = s.a
        a('s_mov_b32 %s, %d' % (sRET, rid))
        a('s_mov_b64 %s, 0' % sLIVE)
        a('s_mov_b64 exec, 0')
        a('s_branch %s' % seg)
        a.label('L_dret%d' % rid)
        a('s_mov_b64 %s, -1' % sLIVE)
        a('s_mov_b64 exec, -1')
        s.rets.append(rid)
    def seg_end(s):
        s.a('s_cbranch_execz L_dryret')
    def vmwait(s, n):
        a = s.a; L = a.newlabel('vw')
        a('s_cbranch_execz %s' % L)
        a('s_waitcnt vmcnt(%d)' % n)
        a.label(L)
    def signal(s, cnt, vz='v3', vone='v4'):
        a = s.a
        a('v_mov_b32 %s, 1' % vone)
        a('s_waitcnt lgkmcnt(0)')
        s.ex(1)
        a('ds_add_u32 %s, %s offset:%d' % (vz, vone, cnt))
        s.ex(-1)
    def wait_lds(s, cnt, target, vz='v3', vt='v4', sleep=0):
        a = s.a; L = a.newlabel('w'); LD = a.newlabel('wd')
        a('s_mov_b32 %s, 0' % sTO)
        a.label(L)
        if sleep: a('s_sleep %d' % sleep)
        a('s_add_u32 %s, %s, 1' % (sTO, sTO))
        a('s_cmp_gt_u32 %s, 0x400000' % sTO)
        a('s_cbranch_scc1 L_fail')
        a('ds_read_b32 %s, %s offset:%d' % (vt, vz, cnt))
        a('s_waitcnt lgkmcnt(0)')
        a('v_readfirstlane_b32 %s, %s' % (sT3, vt))
        a('s_cmp_ge_u32 %s, %s' % (sT3, target))
        a('s_cbranch_execz %s' % LD)
        a('s_cbranch_scc0 %s' % L)
        a.label(LD)
    def poll(s, loads, sleep=0):
        a = s.a; L = a.newlabel('p'); n = len(loads)
        a('s_mov_b32 %s, 0' % sTO)
        a.label(L)
        a('s_add_u32 %s, %s, 1' % (sTO, sTO))
        a('s_cmp_gt_u32 %s, 0x40000' % sTO)
        a('s_cbranch_scc1 L_fail')
        LS = a.newlabel('ps')
        a('s_cbranch_execz %s' % LS)
        for d, vo, so, imm in loads:
            a('buffer_load_dwordx4 %s, %s, %s, %s offen offset:%d sc1' % (v(d, 4), vo, SRD_WS, so, imm))
        a('s_waitcnt vmcnt(%d)' % (n - 1))
        a.label(LS)
        a('s_mov_b64 %s, -1' % sACC)
        for i, (d, vo, so, imm) in enumerate(loads):
            if i: s.vmwait(n - 1 - i)
            a('v_cmp_eq_u32 vcc, %s, %s' % (sTAG, v(d + 1)))
            a('v_cmp_eq_u32 %s, %s, %s' % (sM2, sTAG, v(d + 3)))
            a('s_and_b64 %s, %s, vcc' % (sACC, sACC))
            a('s_and_b64 %s, %s, %s' % (sACC, sACC, sM2))
        a('s_cmp_eq_u64 %s, -1' % sACC)
        L2 = a.newlabel('pd')
        a('s_cbranch_execz %s' % L2)
        if sleep:
            a('s_cbranch_scc1 %s' % L2)
            a('s_sleep %d' % sleep)
            a('s_branch %s' % L)
        else:
            a('s_cbranch_scc0 %s' % L)
        a.label(L2)
    def bfly(s, op, regs, tmps, steps):
        a = s.a
        for st in steps:
            if st in (1, 2, 4, 8):
                mod = {1: 'quad_perm:[1,0,3,2]', 2: 'quad_perm:[2,3,0,1]', 4: None, 8: 'row_ror:8'}[st]
                for r, t in zip(regs, tmps):
                    if st == 4:
                        a('%s_dpp %s, %s, %s row_half_mirror row_mask:0xf bank_mask:0xf' % (op, v(r), v(r), v(r)))
                    else:
                        a('%s_dpp %s, %s, %s %s row_mask:0xf bank_mask:0xf' % (op, v(r), v(r), v(r), mod))
            else:
                sw = 'v_permlane16_swap_b32' if st == 16 else 'v_permlane32_swap_b32'
                for r, t in zip(regs, tmps): a('v_mov_b32 %s, %s' % (v(t), v(r)))
                for r, t in zip(regs, tmps): a('%s %s, %s' % (sw, v(r), v(t)))
                for r, t in zip(regs, tmps): a('%s %s, %s, %s' % (op, v(r), v(r), v(t)))
    def rnd2(s, x, y, t):
        a = s.a
        a('v_cvt_pk_bf16_f32 %s, %s, %s' % (v(t), v(x), v(y)))
        a('v_lshlrev_b32 %s, 16, %s' % (v(x), v(t)))
        a('v_and_b32 %s, 0xffff0000, %s' % (v(y), v(t)))
    def rnd1(s, x):
        a = s.a
        a('v_cvt_pk_bf16_f32 %s, %s, %s' % (v(x), v(x), v(x)))
        a('v_and_b32 %s, 0xffff0000, %s' % (v(x), v(x)))
    def unpack(s, src, lo, hi):
        a = s.a
        a('v_lshlrev_b32 %s, 16, %s' % (v(lo), v(src)))
        a('v_and_b32 %s, 0xffff0000, %s' % (v(hi), v(src)))
    def div(s, xs, d, r, t):
        a = s.a
        for x in xs:
            a('v_mul_f32 %s, %s, %s' % (v(t[0]), v(x), v(r)))
            a('v_fma_f32 %s, -%s, %s, %s' % (v(t[1]), v(t[0]), v(d), v(x)))
            a('v_fma_f32 %s, %s, %s, %s' % (v(x), v(t[1]), v(r), v(t[0])))
    def ln_stats(s, s1, s2, mean, d, r, t):
        a = s.a
        a('v_mul_f32 %s, %s, %s' % (v(mean), f32(1.0 / 1024), v(s1)))
        a('v_mul_f32 %s, %s, %s' % (v(d), f32(1.0 / 1024), v(s2)))
        a('v_fma_f32 %s, -%s, %s, %s' % (v(d), v(mean), v(mean), v(d)))
        a('v_max_f32 %s, 0, %s' % (v(d), v(d)))
        s.rnd2(mean, d, t)
        a('v_add_f32 %s, %s, %s' % (v(d), f32(1e-5), v(d)))
        s.rnd1(d)
        a('v_sqrt_f32 %s, %s' % (v(d), v(d)))
        s.rnd1(d)
        a('v_rcp_f32 %s, %s' % (v(r), v(d)))
    def ln_apply(s, xs, mean, d, r, t):
        a = s.a
        for x in xs: a('v_sub_f32 %s, %s, %s' % (v(x), v(x), v(mean)))
        for i in range(0, len(xs), 2): s.rnd2(xs[i], xs[i + 1], t[0])
        s.div(xs, d, r, t)
        for i in range(0, len(xs), 2): s.rnd2(xs[i], xs[i + 1], t[0])
    R = [8, 40, 72, 104]; X = 136
    def tile_load(s, nblk, voff, sbase, step_blk, step_t, pace=0):
        a = s.a
        if step_t in s.skip or (step_t, step_blk) in s.skip: return
        for b in range(nblk):
            for t in range(8):
                a('s_add_u32 %s, %s, 0x%x' % (sT0, sbase, b * step_blk + t * step_t))
                if pace and 8 * b + t >= pace: a('s_waitcnt vmcnt(%d)' % (pace - 1))
                a('buffer_load_dwordx4 %s, %s, %s, %s offen %s' % (v(s.R[b] + 4 * t, 4), voff, SRD_W, sT0, s.nt))
    def tile_transpose(s, nblk, later=0, landed=None):
        a = s.a
        TB = [s.X] + s.R[:3]
        for b in range(nblk):
            s.vmwait((nblk - 1 - b) * 8 + later)
            if b == nblk - 1 and landed: landed()
            for e in range(8):
                for j in range(4):
                    a('v_perm_b32 %s, %s, %s, %s' % (v(TB[b] + 4 * e + j), v(s.R[b] + 4 * (2 * j + 1) + (e >> 1)),
                                                     v(s.R[b] + 4 * (2 * j) + (e >> 1)), sSELHI if e & 1 else sSELLO))
    def tile_mfma(s, nblk, vaddr, step):
        a = s.a
        TB = [s.X] + s.R[:3]
        F = s.R[3]
        AF = F + 16
        for b in range(nblk):
            a('ds_read_b128 %s, %s offset:%d' % (v(AF + 4 * b, 4), vaddr, b * step))
        acc = [F + 4 * e for e in range(4)] + [TB[0] + 4 * e for e in range(4)]
        LS = a.newlabel('ms')
        a('s_cbranch_execz %s' % LS)
        for half in range(2):
            for b in range(nblk):
                if half == 0: a('s_waitcnt lgkmcnt(%d)' % (nblk - 1 - b))
                for e in range(4 * half, 4 * half + 4):
                    c = '0' if b == 0 else v(acc[e], 4)
                    a('v_mfma_f32_16x16x32_bf16 %s, %s, %s, %s' % (v(acc[e], 4), v(AF + 4 * b, 4), v(TB[b] + 4 * e, 4), c))
        a.label(LS)
        return acc
    def gemvC_partial(s, acc, slot_sgpr):
        a = s.a
        AF = s.R[3] + 16
        for e in range(8):
            a('v_add_f32_dpp %s, %s, %s row_ror:8 row_mask:0xf bank_mask:0xf' % (v(AF + e), v(acc[e] + 1), v(acc[e])))
        a('s_lshl_b32 %s, %s, 8' % (sT0, slot_sgpr))
        a('v_lshlrev_b32 v5, 5, v0')
        a('v_add_u32 v5, %s, v5' % sT0)
        s.ex(0xff)
        a('ds_write_b128 v5, %s offset:%d' % (v(AF, 4), L_RED))
        a('ds_write_b128 v5, %s offset:%d' % (v(AF + 4, 4), L_RED + 16))
        s.ex(-1)
    def gemvC_gather(s, nsrc, dst, tmp, slot0='0'):
        a = s.a
        a('v_and_b32 v5, 15, v0')
        a('v_lshlrev_b32 v5, 4, v5')
        if slot0 != '0': a('v_add_u32 v5, %s, v5' % slot0)
        for w in range(nsrc):
            a('ds_read_b128 %s, v5 offset:%d' % (v(tmp + 4 * w, 4), L_RED + 256 * w))
        for w in range(1, nsrc):
            a('s_waitcnt lgkmcnt(%d)' % (nsrc - 1 - w))
            for c in range(4):
                a('v_add_f32 %s, %s, %s' % (v(dst + c), v(tmp + c) if w == 1 else v(dst + c), v(tmp + 4 * w + c)))
    def mk_granule(s, g, x):
        a = s.a
        a('v_cvt_pk_bf16_f32 %s, %s, %s' % (v(g), v(x), v(x + 1)))
        a('v_cvt_pk_bf16_f32 %s, %s, %s' % (v(g + 2), v(x + 2), v(x + 3)))
        a('v_mov_b32 %s, %s' % (v(g + 1), sTAG))
        a('v_mov_b32 %s, %s' % (v(g + 3), sTAG))
    def st_ws(s, g, voff, soff, imm=0):
        L = s.a.newlabel('st')
        s.a('s_cbranch_execz %s' % L)
        s.a('buffer_store_dwordx4 %s, %s, %s, %s offen offset:%d sc1' % (v(g, 4), voff, SRD_WS, soff, imm))
        s.a.label(L)

    def build(s):
        a = s.a
        a.raw('; @launch grid=(256,1,1) block=(768,1,1) lds=%d' % LDS_BYTES)
        if s.stamps: a.raw('; TS 0x%x:%d:%d' % (OFF_TS, 256 * 12, NSTAMP))
        a.raw('.amdgcn_target "amdgcn-amd-amdhsa--gfx950"')
        a.raw('.text')
        a.raw('.globl %s_kernel' % NAME)
        a.raw('.p2align 8')
        a.raw('.type %s_kernel,@function' % NAME)
        a.raw('%s_kernel:' % NAME)
        a('s_cmp_ge_u32 s2, 256')
        a('s_cbranch_scc1 L_exit')
        if s.stamps:
            for i in range(NSTAMP): a('s_mov_b64 %s, 0' % sp(TS0 + 2 * i))
        s.stamp(0)
        a('s_load_dwordx16 s[32:47], s[0:1], 0')
        a('s_load_dwordx8 s[48:55], s[0:1], 64')
        a('s_load_dwordx4 s[56:59], s[0:1], 96')
        a('s_load_dwordx2 s[60:61], s[0:1], 112')
        a('v_lshrrev_b32 v1, 6, v0')
        a('v_and_b32 v0, 63, v0')
        a('v_mov_b32 v3, 0')
        a('v_readfirstlane_b32 s3, v1')
        a('v_lshlrev_b32 v2, 4, v0')
        a('s_mov_b32 %s, 0x05040100' % sSELLO)
        a('s_mov_b32 %s, 0x07060302' % sSELHI)
        a('s_waitcnt lgkmcnt(0)')
        a('s_load_dword %s, %s, 0' % (sTAG, sp(P_WS)))
        s.srd(SRD_WS, P_WS, 0x10000000)
        s.srd(SRD_OUT, P_OUT, 2048)
        a('s_and_b32 %s, s2, 63' % sU)
        a('s_lshr_b32 %s, s2, 6' % sG)
        a('s_mov_b64 %s, -1' % sLIVE)
        a('s_mov_b32 %s, 0' % sRET)
        a('s_cmp_ge_u32 s3, 8')
        a('s_cbranch_scc1 L_role')
        s.stream()
        a.label('L_role')
        s.role()
        a.label('L_dryret')
        if not s.rets: a('s_branch L_end')
        for rid in s.rets[:-1]:
            a('s_cmp_eq_u32 %s, %d' % (sRET, rid))
            a('s_cbranch_scc1 L_dret%d' % rid)
        if s.rets: a('s_branch L_dret%d' % s.rets[-1])
        a.label('L_fail')
        a('v_mov_b32 v4, 0xdead')
        a('v_mov_b32 v5, 0')
        a('s_mov_b64 exec, 1')
        a('global_store_dword v5, v4, %s' % sp(P_DBG))
        a('s_mov_b64 exec, -1')
        a.label('L_end')
        if s.stamps:
            s.stamp(NSTAMP - 1)
            a('s_mul_i32 %s, s2, 12' % sT0)
            a('s_add_u32 %s, %s, s3' % (sT0, sT0))
            a('s_mul_i32 %s, %s, %d' % (sT0, sT0, NSTAMP * 8))
            a('s_add_u32 %s, %s, 0x%x' % (sT0, sT0, OFF_TS))
            a('v_mov_b32 v5, 0')
            a('s_waitcnt lgkmcnt(0)')
            a('s_mov_b64 exec, 1')
            for i in range(0, NSTAMP, 2):
                for k in range(4): a('v_mov_b32 v%d, s%d' % (8 + k, TS0 + 2 * i + k))
                a('buffer_store_dwordx4 v[8:11], v5, %s, %s offen offset:%d' % (SRD_WS, sT0, 8 * i))
        a.label('L_exit')
        a('s_endpgm')
        a.raw('.section .rodata,"a"')
        a.raw('.p2align 6')
        a.raw('.amdhsa_kernel %s_kernel' % NAME)
        a.raw('  .amdhsa_next_free_vgpr 168')
        a.raw('  .amdhsa_next_free_sgpr 102')
        a.raw('  .amdhsa_accum_offset 168')
        a.raw('  .amdhsa_group_segment_fixed_size 0')
        a.raw('  .amdhsa_kernarg_size 120')
        a.raw('  .amdhsa_user_sgpr_count 2')
        a.raw('  .amdhsa_user_sgpr_kernarg_segment_ptr 1')
        a.raw('  .amdhsa_system_sgpr_workgroup_id_x 1')
        a.raw('.end_amdhsa_kernel')
        return a.finish()

    SP, O, T, BUF, NB = 8, 28, 60, 76, 23
    def stream(s):
        a = s.a
        a.c('---------------- stream wave')
        s.srd(SRD_K, P_K, 0x4000000)
        s.srd(SRD_V, P_V, 0x4000000)
        a('s_mov_b32 %s, s3' % sR)
        base = 0
        for ci, (u0, cnt, G) in enumerate(CLASSES):
            a('s_mul_i32 %s, %s, %d' % (sT1, sU, G))
            a('s_add_u32 %s, %s, 0x%x' % (sT1, sT1, (base - u0 * G) & 0xffffffff))
            if ci == 0:
                a('s_mov_b32 %s, %s' % (sT0, sT1)); a('s_mov_b32 %s, %d' % (sT2, G))
            else:
                a('s_cmp_ge_u32 %s, %d' % (sU, u0))
                a('s_cselect_b32 %s, %s, %s' % (sT0, sT1, sT0))
                a('s_cselect_b32 %s, %d, %s' % (sT2, G, sT2))
            base += cnt * G
        assert base == 2048, base
        a('s_lshl_b32 s7, %s, 13' % sT0)
        a('s_lshl_b32 %s, %s, 24' % (sT0, sG))
        a('s_add_u32 s7, s7, %s' % sT0)
        a('s_lshl_b32 %s, s3, 12' % sT0)
        a('s_add_u32 s7, s7, %s' % sT0)
        a('s_and_b32 %s, %s, 7' % (sT1, sT2))
        a('s_lshl_b32 %s, %s, 12' % (sLAST, sT1))
        a('s_lshr_b32 %s, %s, 3' % (sT2, sT2))
        a('s_cmp_lt_u32 s3, %s' % sT1)
        a('s_cselect_b32 %s, %s, 0x8000' % (sLAST, sLAST))
        a('s_addc_u32 %s, %s, 0' % (sT2, sT2))
        a('s_sub_u32 %s, %s, 1' % (sT0, sT2))
        a('s_lshl_b32 %s, %s, 16' % (sT0, sT0))
        a('s_add_u32 %s, %s, %s' % (sLAST, sLAST, sT0))
        a('s_add_u32 %s, %s, s7' % (sLAST, sLAST))
        a('s_add_u32 %s, s7, 0x28000' % sH2)
        a('s_cmp_eq_u32 %s, 3' % sT2)
        a('s_cselect_b32 %s, %s, %s' % (sH2, sLAST, sH2))
        a('v_bfe_u32 v1, v0, 2, 2')
        a('v_lshlrev_b32 v1, 8, v1')
        a('v_lshrrev_b32 v4, 4, v0')
        a('v_lshl_add_u32 v1, v4, 6, v1')
        a('v_and_b32 v4, 3, v0')
        a('v_lshl_add_u32 v1, v4, 4, v1')
        a('v_and_b32 v5, 7, v0')
        a('v_lshlrev_b32 v5, 8, v5')
        a('v_lshrrev_b32 v6, 4, v0')
        a('v_lshl_add_u32 v5, v6, 6, v5')
        a('v_bfe_u32 v6, v0, 3, 1')
        a('v_lshl_add_u32 v5, v6, 4, v5')
        a('s_mov_b32 %s, %s' % (sC0, f32(128 ** -0.5)))
        a('s_mov_b32 %s, 0x%x' % (sC1, LOG2E))
        W, NB = s.W, s.NB
        def pre(j):
            so = sH2
            if j < 20:
                a('s_add_u32 %s, s7, 0x%x' % (sT0, (j >> 3) * 65536 + ((j >> 2) & 1) * 32768)); so = sT0
            a('buffer_load_dwordx4 %s, v1, %s, %s offen offset:%d %s' % (v(s.BUF + 4 * j, 4), SRD_K, so, (j & 3) * 1024, s.nt))
        a('s_cmp_ge_u32 %s, 32' % sU)
        a('s_cbranch_scc1 L_st_hold')
        a('s_sub_u32 %s, %s, 8' % (sT0, sU))
        a('s_cmp_lt_u32 %s, 16' % sT0)
        a('s_cbranch_scc1 L_st_hold')
        pre(0)
        a('s_waitcnt lgkmcnt(0)')
        a('s_barrier')
        for j in range(1, s.slow + 1):
            a('s_waitcnt vmcnt(0)')
            pre(j)
        a('s_branch L_st_go')
        a.label('L_st_hold')
        a('s_waitcnt lgkmcnt(0)')
        a('s_barrier')
        s.wait_lds(CNT_T, 4, sleep=1)
        for j in range(0, s.slow + 1): pre(j)
        a.label('L_st_go')
        a('s_add_u32 %s, %s, 1' % (sTAG, sTAG))
        for j in range(s.slow + 1, NB):
            a('s_waitcnt vmcnt(%d)' % (W - 1))
            pre(j)
            if j == s.kq: s.signal(CNT_K)
        a('s_sub_u32 %s, %s, 8' % (sT0, sU))
        a('s_cmp_lt_u32 %s, 14' % sT0)
        a('s_cbranch_scc1 L_st_s3')
        a('s_cmp_eq_u32 %s, 5' % sT2)
        a('s_cbranch_scc1 L_st_n5')
        s.stream_body(4, s.NL, 'a')
        a('s_branch L_st_fin')
        a.label('L_st_n5')
        s.stream_body(5, s.NL, 'b')
        a('s_branch L_st_fin')
        a.label('L_st_s3')
        a('s_cmp_eq_u32 %s, 3' % sT2)
        a('s_cbranch_scc1 L_st_n3')
        s.stream_body(4, 0, 'c')
        a('s_branch L_st_fin')
        a.label('L_st_n3')
        s.stream_body(3, 0, 'd')
        a.label('L_st_fin')
        s.stream_fin()

    def stream_body(s, ng, NL, tag):
        a = s.a
        SP, O, T, BUF, NB, W, W2 = s.SP, s.O, s.T, s.BUF, s.NB, s.W, s.W2
        QF = T; TU = T + 8
        nk = 8 * ng
        def addr(j, full):
            blk = j % nk
            imm = (blk & 3) * 1024
            if blk >= nk - 4: base, o = sLAST, 0
            else: base, o = 's7', (blk >> 3) * 65536 + ((blk >> 2) & 1) * 32768
            if full: o += imm; imm = 0
            a('s_add_u32 %s, %s, 0x%x' % (sT0, base, o))
            return imm
        if NL:
            a('s_mul_i32 %s, s3, %d' % (sT1, NL * 1024))
            a('s_add_u32 %s, %s, %d' % (sT1, sT1, L_W2))
            for i in range(NL):
                j = NB + i
                addr(j, True)
                a('s_add_u32 m0, %s, %d' % (sT1, i * 1024))
                a('s_waitcnt vmcnt(%d)' % (W - 1))
                a('buffer_load_dwordx4 %s, %s, %s offen %s lds' % ('v1' if j < nk else 'v2', SRD_K if j < nk else SRD_V, sT0, s.nt))
        s.stamp(1)
        LQ = 'L_st_qw' + tag
        a('s_cmp_ge_u32 s3, 4')
        a('s_cbranch_scc1 %s' % LQ)
        s.q_wait(s.O)
        a.label(LQ)
        s.wait_lds(CNT_Q, 4, sleep=2)
        s.stamp(2)
        a('ds_read_b128 %s, v5 offset:%d' % (v(s.T, 4), L_Q))
        a('ds_read_b128 %s, v5 offset:%d' % (v(s.T + 4, 4), L_Q + 32))
        if NL:
            a('s_mul_i32 %s, s3, %d' % (sT1, NL * 1024))
            a('s_add_u32 %s, %s, %d' % (sT1, sT1, L_W2))
            a('v_add_u32 v4, %s, v2' % sT1)
        issued = [NB + NL]
        where = {j: BUF + 4 * j for j in range(NB)}
        free = []
        pend = [False]
        def slot(j): return where[j]
        def inlds(j): return NB <= j < NB + NL
        def landed(j):
            a('s_waitcnt vmcnt(%d)' % (issued[0] - 1 - j))
        def stage(j):
            r = free.pop(0); where[j] = r
            landed(j)
            a('ds_read_b128 %s, v4 offset:%d' % (v(r, 4), (j - NB) * 1024))
            pend[0] = True
        def issue():
            j = issued[0]
            r = free.pop(0); where[j] = r
            o = addr(j, False)
            a('s_waitcnt vmcnt(%d)' % (W2 - 1))
            a('buffer_load_dwordx4 %s, %s, %s, %s offen offset:%d %s' % (v(r, 4), 'v1' if j < nk else 'v2',
                                                                        SRD_K if j < nk else SRD_V, sT0, o, s.nt))
            issued[0] += 1
        def need(j0, j1):
            for j in range(j0, j1 + 1):
                if j not in where:
                    assert free, (ng, NL, j)
                    if inlds(j): stage(j)
                    else:
                        assert j == issued[0]
                        issue()
            top = max([j for j in range(j0, j1 + 1) if not inlds(j)], default=None)
            if top is not None: landed(top)
            if pend[0] and any(inlds(j) for j in range(j0, j1 + 1)):
                a('s_waitcnt lgkmcnt(0)'); pend[0] = False
        def done(j0, j1, look):
            for j in range(j0, j1 + 1): free.append(where[j])
            for j in range(j1 + 1, j1 + 1 + look):
                if inlds(j) and j not in where and free: stage(j)
            while free and issued[0] < 2 * nk:
                un = [j for j in range(NB, NB + NL) if j not in where]
                unk = [j for j in un if j < nk]; unv = [j for j in un if j >= nk]
                kleft = len([j for j in range(j1 + 1, nk) if j in where])
                res = min(len(unk), 2) + max(0, len(unv) - kleft)
                if len(free) <= res: break
                issue()
        a('s_waitcnt lgkmcnt(0)')
        npair = 4 * ng
        def qk_post(n):
            D = O + 16 * (n & 1)
            for bb in range(2):
                d0 = D + 8 * bb; d1 = d0 + 4
                t, u = TU + 2 * bb, TU + 2 * bb + 1
                a('v_add_f32 %s, %s, %s' % (v(t), v(d0), v(d1 + 2)))
                a('v_add_f32 %s, %s, %s' % (v(u), v(d0 + 1), v(d1 + 3)))
            a('v_add_f32_dpp %s, %s, %s row_ror:8 row_mask:0xf bank_mask:0x3' % (v(SP + n), v(TU + 1), v(TU)))
            a('v_add_f32_dpp %s, %s, %s row_ror:8 row_mask:0xf bank_mask:0xc' % (v(SP + n), v(TU + 2), v(TU + 3)))
        for n in range(npair):
            need(2 * n, 2 * n + 1)
            D = O + 16 * (n & 1)
            for bb in range(2):
                for m in range(2):
                    a('v_mfma_f32_16x16x32_bf16 %s, %s, %s, 0' % (v(D + 8 * bb + 4 * m, 4), v(slot(2 * n + bb), 4), v(QF + 4 * m, 4)))
            if n > 0: qk_post(n - 1)
            done(2 * n, 2 * n + 1, 2 if n < npair - 4 else 8)
        qk_post(npair - 1)
        s.stamp(3)
        for n in range(0, npair, 2):
            t = O + (n >> 1)
            s.rnd2(SP + n, SP + n + 1, t)
            a('v_mul_f32 %s, %s, %s' % (v(SP + n), sC0, v(SP + n)))
            a('v_mul_f32 %s, %s, %s' % (v(SP + n + 1), sC0, v(SP + n + 1)))
            s.rnd2(SP + n, SP + n + 1, t)
        a('v_max3_f32 v6, %s, %s, %s' % (v(SP), v(SP + 1), v(SP + 2)))
        for n in range(3, npair - 1, 2):
            a('v_max3_f32 v6, v6, %s, %s' % (v(SP + n), v(SP + n + 1)))
        a('v_max_f32 v6, v6, %s' % v(SP + npair - 1))
        s.bfly('v_max_f32', [6], [5], [8, 16, 32])
        a('v_mul_f32 v5, %s, v6' % sC1)
        for n in range(npair):
            a('v_fma_f32 %s, %s, %s, -v5' % (v(SP + n), v(SP + n), sC1))
        for n in range(npair):
            a('v_exp_f32 %s, %s' % (v(SP + n), v(SP + n)))
        a('v_add_f32 v7, %s, %s' % (v(SP), v(SP + 1)))
        for n in range(2, npair):
            a('v_add_f32 v7, v7, %s' % v(SP + n))
        for G in range(ng):
            p = SP + 4 * G
            a('v_cvt_pk_bf16_f32 %s, %s, %s' % (v(p), v(p), v(p + 1)))
            a('v_cvt_pk_bf16_f32 %s, %s, %s' % (v(p + 1), v(p + 2), v(p + 3)))
        for G in range(ng):
            p = SP + 4 * G
            a('v_mov_b32_dpp %s, %s row_ror:8 row_mask:0xf bank_mask:0xf' % (v(p + 2), v(p)))
            a('v_mov_b32_dpp %s, %s row_ror:8 row_mask:0xf bank_mask:0xf' % (v(p + 3), v(p + 1)))
        s.bfly('v_add_f32', [7], [5], [8, 16, 32])
        s.stamp(4)
        beta = [0, 2, 4, 6, 1, 3, 5, 7]
        for G in range(ng):
            need(nk + 8 * G, nk + 8 * G + 7)
            src = [slot(nk + 8 * G + beta[t]) for t in range(8)]
            for half in range(2):
                for e in range(4 * half, 4 * half + 4):
                    for j in range(4):
                        a('v_perm_b32 %s, %s, %s, %s' % (v(T + 4 * (e & 3) + j), v(src[2 * j + 1] + (e >> 1)), v(src[2 * j] + (e >> 1)),
                                                         sSELHI if e & 1 else sSELLO))
                for e in range(4 * half, 4 * half + 4):
                    c = '0' if G == 0 else v(O + 4 * e, 4)
                    a('v_mfma_f32_16x16x32_bf16 %s, %s, %s, %s' % (v(O + 4 * e, 4), v(SP + 4 * G, 4), v(T + 4 * (e & 3), 4), c))
            done(nk + 8 * G, nk + 8 * G + 7, 8)
        s.stamp(5)

    def stream_fin(s):
        a = s.a
        O = s.O
        a('s_lshl_b32 %s, s3, 12' % sT0)
        a('v_add_u32 v5, %s, v2' % sT0)
        a('v_lshlrev_b32 v4, 6, v0')
        a('s_lshl_b32 %s, s3, 3' % sT1)
        a('v_add_u32 v4, %s, v4' % sT1)
        s.ex(0xff)
        a('ds_write_b64 v4, v[6:7] offset:%d' % L_ML)
        s.ex('lo32')
        for e in range(8):
            a('ds_write_b128 v5, %s offset:%d' % (v(O + 4 * e, 4), L_OB + 512 * e))
        s.ex(-1)
        s.signal(CNT_ATT)
        a('v_and_b32 v7, 3, v0')
        a('v_lshlrev_b32 v7, 10, v7')
        a('v_lshrrev_b32 v4, 2, v0')
        a('v_lshl_add_u32 v7, v4, 4, v7')
        a('s_lshr_b32 %s, s3, 2' % sT0)
        a('s_lshl_b32 %s, %s, 8' % (sT0, sT0))
        a('s_and_b32 %s, s3, 3' % sT1)
        a('s_lshl_b32 %s, %s, 2' % (sT1, sT1))
        a('s_add_u32 %s, %s, %s' % (sT0, sT0, sT1))
        a('s_add_u32 %s, %s, %d' % (sT0, sT0, L_OB))
        a('v_add_u32 v7, %s, v7' % sT0)
        a('s_lshl_b32 %s, s3, 6' % sT0)
        a('v_mov_b32 v6, %s' % sT0)
        a('v_lshrrev_b32 v5, 5, v0')
        a('v_lshlrev_b32 v1, 10, v5')
        a('v_lshlrev_b32 v5, 15, v5')
        a('v_bfe_u32 v4, v0, 3, 2')
        a('v_lshl_add_u32 v5, v4, 13, v5')
        a('v_and_b32 v4, 7, v0')
        a('v_lshl_add_u32 v5, v4, 4, v5')
        a('s_lshl_b32 %s, %s, 3' % (sT0, sG))
        a('s_add_u32 %s, %s, s3' % (sT0, sT0))
        a('s_mov_b32 %s, %s' % (sT1, sU))
        a('s_lshl_b32 %s, %s, 16' % (sC2, sT0))
        a('s_lshl_b32 %s, %s, 7' % (sT2, sT1))
        a('s_add_u32 %s, %s, %s' % (sC2, sC2, sT2))
        a('s_add_u32 %s, %s, 0x%x' % (sC2, sC2, OFF_O))
        a('s_lshl_b32 %s, %s, 11' % (sC3, sT0))
        a('s_lshl_b32 %s, %s, 4' % (sT2, sT1))
        a('s_add_u32 %s, %s, %s' % (sC3, sC3, sT2))
        a('s_add_u32 %s, %s, 0x%x' % (sC3, sC3, OFF_ML))
        s.wait_lds(CNT_ATT, 8)
        ML = 76; OB = 92; F = 108; G_ = 116
        for k in range(4):
            a('ds_read_b128 %s, v6 offset:%d' % (v(ML + 4 * k, 4), L_ML + 16 * k))
        for w in range(8):
            a('ds_read2st64_b32 %s, v7 offset0:%d offset1:%d' % (v(OB + 2 * w, 2), 16 * w, 16 * w + 2))
        a('s_waitcnt lgkmcnt(8)')
        M = G_ + 4
        a('v_max3_f32 %s, %s, %s, %s' % (v(M), v(ML), v(ML + 2), v(ML + 4)))
        a('v_max3_f32 %s, %s, %s, %s' % (v(M), v(M), v(ML + 6), v(ML + 8)))
        a('v_max3_f32 %s, %s, %s, %s' % (v(M), v(M), v(ML + 10), v(ML + 12)))
        a('v_max_f32 %s, %s, %s' % (v(M), v(M), v(ML + 14)))
        for w in range(8): a('v_sub_f32 %s, %s, %s' % (v(F + w), v(ML + 2 * w), v(M)))
        for w in range(8): a('v_mul_f32 %s, %s, %s' % (v(F + w), sC1, v(F + w)))
        for w in range(8): a('v_exp_f32 %s, %s' % (v(F + w), v(F + w)))
        Ls = G_ + 6
        a('v_mul_f32 %s, %s, %s' % (v(Ls), v(F), v(ML + 1)))
        for w in range(1, 8): a('v_fmac_f32 %s, %s, %s' % (v(Ls), v(F + w), v(ML + 2 * w + 1)))
        a('s_waitcnt lgkmcnt(0)')
        a('v_mul_f32 %s, %s, %s' % (v(G_), v(F), v(OB)))
        a('v_mul_f32 %s, %s, %s' % (v(G_ + 2), v(F), v(OB + 1)))
        for w in range(1, 8):
            a('v_fmac_f32 %s, %s, %s' % (v(G_), v(F + w), v(OB + 2 * w)))
            a('v_fmac_f32 %s, %s, %s' % (v(G_ + 2), v(F + w), v(OB + 2 * w + 1)))
        for k in (1, 3, 5, 7): a('v_mov_b32 %s, %s' % (v(G_ + k), sTAG))
        s.st_ws(G_, 'v5', sC2)
        a('s_mov_b32 %s, 1' % sT0); a('s_mov_b32 %s, 1' % sT1)
        s.ex('s[64:65]')
        s.st_ws(G_ + 4, 'v1', sC3)
        s.ex(-1)
        s.stamp(6)
        a('s_cbranch_execz L_w2')
        a('s_sub_u32 %s, %s, 8' % (sT0, sU))
        a('s_cmp_ge_u32 %s, 14' % sT0)
        a('s_cbranch_scc1 L_end')
        a('s_cmp_ge_u32 s3, 4')
        a('s_cbranch_scc1 L_end')
        a.label('L_w2')
        s.w2_stream()

    def gemvR_setup(s, xbase):
        a = s.a
        a('v_lshrrev_b32 v1, 5, v0')
        a('v_lshlrev_b32 v1, 4, v1')
        a('v_add_u32 v1, %s, v1' % xbase)
        a('v_lshrrev_b32 v4, 4, v0')
        a('v_xor_b32 v4, v4, v0')
        a('v_and_b32 v4, 1, v4')
        a('v_cmp_eq_u32 vcc, 0, v4')
        a('v_mov_b32 v4, %d' % L_ZERO)
        a('v_cndmask_b32 v1, v4, v1, vcc')
        a('v_lshrrev_b32 v4, 4, v0')
        a('v_cmp_eq_u32 %s, 1, v4' % sM0)
        a('v_cmp_eq_u32 %s, 2, v4' % sM1)
        a('v_cmp_eq_u32 s[82:83], 3, v4')
    def gemvR_publish(s, acc, voff):
        a = s.a
        G = s.R[3] + 16
        for mu in range(2):
            for k in range(2):
                d = G + 4 * mu + 2 * k
                a('v_cndmask_b32 %s, %s, %s, %s' % (v(d), v(acc[k] + mu), v(acc[2 + k] + mu), sM0))
                a('v_cndmask_b32 %s, %s, %s, %s' % (v(d), v(d), v(acc[4 + k] + mu), sM1))
                a('v_cndmask_b32 %s, %s, %s, %s' % (v(d), v(d), v(acc[6 + k] + mu), 's[82:83]'))
                a('v_mov_b32 %s, %s' % (v(d + 1), sTAG))
        s.st_ws(G, voff, sC2)
        s.st_ws(G + 4, voff, sC3)
    def w2_voff(s):
        a = s.a
        a('v_lshrrev_b32 v1, 5, v0')
        a('v_lshlrev_b32 v1, 14, v1')
        a('v_and_b32 v4, 31, v0')
        a('v_lshl_add_u32 v1, v4, 4, v1')
        a('s_lshl_b32 s7, %s, 17' % sJ)
        a('s_lshl_b32 %s, %s, 9' % (sT0, sR))
        a('s_add_u32 s7, s7, %s' % sT0)

    def w2_stream(s):
        a = s.a
        a.c('---------------- W2 (stream waves 0..3 of S3 WGs): hh = gelu(.), partial out = hh @ w2[64 rows, 256 cols per wave]')
        F = s.R[3]
        TB = [s.X] + s.R[:3]
        a('s_mul_i32 %s, %s, 14' % (sJ, sG))
        a('s_add_u32 %s, %s, %s' % (sJ, sJ, sU))
        a('s_sub_u32 %s, %s, 8' % (sJ, sJ))
        s.srd(SRD_W, P_W2, 3584 * 2048)
        a('s_cbranch_execz L_w2a')
        a('s_cmp_lg_u32 s3, 3')
        a('s_cbranch_scc1 L_w2a')
        s.w2_voff()
        for t in range(8):
            a('s_add_u32 %s, s7, 0x%x' % (sT0, 3 * 16 * 2048 + t * 2048))
            a('buffer_load_dwordx4 %s, v1, %s, %s offen %s' % (v(F + 4 * t, 4), SRD_W, sT0, s.nt))
        a.label('L_w2a')
        s.wait_lds(CNT_W, 4, sleep=1)
        a('s_lshl_b32 %s, s3, 15' % sT0)
        a('s_add_u32 %s, %s, %d' % (sT0, sT0, L_W2))
        a('v_add_u32 v5, %s, v2' % sT0)
        for b in range(3):
            for e in range(8):
                a('ds_read_b128 %s, v5 offset:%d' % (v(TB[b] + 4 * e, 4), 8192 * b + 1024 * e))
        a('s_cbranch_execz L_w2b')
        a('s_cmp_eq_u32 s3, 3')
        a('s_cbranch_scc1 L_w2c')
        a.label('L_w2b')
        for e in range(8):
            a('ds_read_b128 %s, v5 offset:%d' % (v(TB[3] + 4 * e, 4), 8192 * 3 + 1024 * e))
        a('s_cbranch_execnz L_w2d')
        a.label('L_w2c')
        s.vmwait(0)
        for e in range(8):
            for j in range(4):
                a('v_perm_b32 %s, %s, %s, %s' % (v(TB[3] + 4 * e + j), v(F + 4 * (2 * j + 1) + (e >> 1)),
                                                 v(F + 4 * (2 * j) + (e >> 1)), sSELHI if e & 1 else sSELLO))
        a.label('L_w2d')
        a('s_lshl_b32 %s, s3, 7' % sT1)
        a('s_add_u32 %s, %s, %d' % (sT1, sT1, L_H))
        s.gemvR_setup(sT1)
        a('v_and_b32 v6, 15, v0')
        a('v_lshlrev_b32 v6, 3, v6')
        a('ds_read_b64 %s, v6 offset:%d' % (v(F + 30, 2), L_B1))
        a('v_add_u32 v6, %s, v6' % sT1)
        a('v_bfe_u32 v7, v0, 2, 2')
        a('v_mul_u32_u24 v7, 14336, v7')
        a('v_and_b32 v4, 3, v0')
        a('v_mul_u32_u24 v4, 3584, v4')
        a('v_add_u32 v7, v7, v4')
        a('v_lshrrev_b32 v4, 4, v0')
        a('v_lshl_add_u32 v7, v4, 4, v7')
        a('s_mul_i32 %s, s3, %d' % (sC2, 8 * 14336))
        a('s_lshl_b32 %s, %s, 6' % (sT0, sJ))
        a('s_add_u32 %s, %s, %s' % (sC2, sC2, sT0))
        a('s_add_u32 %s, %s, 0x%x' % (sC2, sC2, OFF_HH))
        a('s_add_u32 %s, %s, %d' % (sC3, sC2, 4 * 14336))
        a('s_mov_b32 %s, %s' % (sC0, f32(0.044715)))
        a('s_mov_b32 %s, %s' % (sC1, f32(-2.0 * math.sqrt(2.0 / math.pi) * math.log2(math.e))))
        a('s_waitcnt lgkmcnt(0)')
        B1 = F + 24; D = F + 16; TMP = F; T = F + 20
        s.unpack(F + 30, B1, B1 + 1); s.unpack(F + 31, B1 + 2, B1 + 3)
        s.wait_lds(CNT_S, 4)
        s.stamp(1)
        s.gemvC_gather(4, D, TMP)
        s.rnd2(D, D + 1, T); s.rnd2(D + 2, D + 3, T + 1)
        for c in range(4): a('v_add_f32 %s, %s, %s' % (v(D + c), v(D + c), v(B1 + c)))
        s.rnd2(D, D + 1, T); s.rnd2(D + 2, D + 3, T + 1)
        for c in range(4): a('v_mul_f32 %s, %s, %s' % (v(T + c), v(D + c), v(D + c)))
        for c in range(4): a('v_mul_f32 %s, %s, %s' % (v(T + c), v(T + c), v(D + c)))
        for c in range(4): a('v_fma_f32 %s, %s, %s, %s' % (v(T + c), v(T + c), sC0, v(D + c)))
        for c in range(4): a('v_mul_f32 %s, %s, %s' % (v(T + c), sC1, v(T + c)))
        for c in range(4): a('v_exp_f32 %s, %s' % (v(T + c), v(T + c)))
        for c in range(4): a('v_add_f32 %s, 1.0, %s' % (v(T + c), v(T + c)))
        for c in range(4): a('v_rcp_f32 %s, %s' % (v(T + c), v(T + c)))
        for c in range(4): a('v_mul_f32 %s, %s, %s' % (v(D + c), v(D + c), v(T + c)))
        a('v_cvt_pk_bf16_f32 %s, %s, %s' % (v(T), v(D), v(D + 1)))
        a('v_cvt_pk_bf16_f32 %s, %s, %s' % (v(T + 1), v(D + 2), v(D + 3)))
        s.ex(0xffff)
        a('ds_write_b64 v6, %s' % v(T, 2))
        s.ex(-1)
        acc = s.tile_mfma(4, 'v1', 32)
        s.gemvR_publish(acc, 'v7')
        s.seg_end()
        a('s_branch L_end')

    def role(s):
        a = s.a
        a.c('---------------- role wave')
        a('s_setprio 2')
        a('s_sub_u32 %s, s3, 8' % sR)
        a('v_lshlrev_b32 v4, 2, v0')
        a('ds_write_b32 v4, v3')
        a('s_waitcnt lgkmcnt(0)')
        a('s_add_u32 %s, %s, 1' % (sTAG, sTAG))
        a('s_barrier')
        a('s_mov_b32 %s, 0' % sPASS)
        for r_ in (16, 17, 18, 20): a('v_mov_b32 v%d, 0' % r_)
        a('s_cmp_lt_u32 %s, 8' % sU)
        a('s_cbranch_scc1 L_mod')
        a('s_cmp_lt_u32 %s, 24' % sU)
        a('s_cbranch_scc1 L_p1a')
        a('s_cmp_lt_u32 %s, 28' % sU)
        a('s_cbranch_scc1 L_p1b')
        a('s_cmp_lt_u32 %s, 32' % sU)
        a('s_cbranch_scc1 L_mod')
        a('s_cmp_lt_u32 %s, 48' % sU)
        a('s_cbranch_scc1 L_p2')
        a.label('L_p1a'); s.p1a_role()
        a.label('L_p1b'); s.p1b_role()
        a.label('L_mod'); s.mod_role()
        a.label('L_p2'); s.p2_role()
        a.label('L_s1'); s.s1_role()
        a.label('L_s2'); s.s2_role()
        a.label('L_s3'); s.s3_role()
        a.label('L_warm_stream')
        s.warm_stream(20)
        a('s_branch L_end')

    def warm_stream(s, rid):
        if not s.dry: return
        s.dry_call('L_st_fin', rid)

    def gemvC_setup(s, ptr, pitch, nbytes, colbyte_sgpr, pace=0):
        a = s.a
        s.srd(SRD_W, ptr, nbytes)
        a('v_lshrrev_b32 v1, 3, v0')
        a('v_mul_u32_u24 v1, %d, v1' % (8 * pitch))
        a('v_and_b32 v4, 7, v0')
        a('v_lshl_add_u32 v1, v4, 4, v1')
        a('s_mul_i32 s7, %s, %d' % (sR, 256 * pitch))
        a('s_add_u32 s7, s7, %s' % colbyte_sgpr)
        s.tile_load(4, 'v1', 's7', 64 * pitch, pitch, pace)
    def afragC_addr(s):
        a = s.a
        a('v_lshrrev_b32 v1, 4, v0')
        a('v_lshlrev_b32 v1, 5, v1')
        a('v_and_b32 v4, 1, v0')
        a('v_lshl_add_u32 v1, v4, 4, v1')
        a('s_lshl_b32 %s, %s, 9' % (sT0, sR))
        a('s_add_u32 %s, %s, %d' % (sT0, sT0, L_X))
        a('v_add_u32 v1, %s, v1' % sT0)
    def xw_addr(s, dst):
        a = s.a
        a('s_lshl_b32 %s, %s, 9' % (sT0, sR))
        a('s_add_u32 %s, %s, %d' % (sT0, sT0, L_X))
        a('v_lshlrev_b32 %s, 3, v0' % dst)
        a('v_add_u32 %s, %s, %s' % (dst, sT0, dst))
    def q_wait(s, F):
        a = s.a
        a('s_lshl_b32 %s, s2, 12' % sC2)
        a('s_lshl_b32 %s, %s, 10' % (sT0, sR))
        a('s_add_u32 %s, %s, %s' % (sC2, sC2, sT0))
        a('s_add_u32 %s, %s, 0x%x' % (sC2, sC2, OFF_Q))
        s.poll([(F, 'v2', sC2, 0)], sleep=s.qsleep)
        a('v_mov_b32 %s, %s' % (v(F + 1), v(F + 2)))
        a('s_lshl_b32 %s, %s, 9' % (sT0, sR))
        a('v_lshlrev_b32 v4, 3, v0')
        a('v_add_u32 v4, %s, v4' % sT0)
        a('ds_write_b64 v4, %s offset:%d' % (v(F, 2), L_Q))
        s.signal(CNT_Q)

    def mod_role(s):
        a = s.a
        a.c('---------------- M2: mod slice = silu(c) @ w_mod[:, 64 cols]; S2 WGs (u 0..7): block 32+8g+u ; M WGs (u 24..31): block 64+8g+u-24')
        a('s_lshl_b32 %s, %s, 3' % (sT0, sG))
        a('s_add_u32 %s, %s, %s' % (sT0, sT0, sU))
        a('s_add_u32 %s, %s, 32' % (sT1, sT0))
        a('s_add_u32 %s, %s, 40' % (sT0, sT0))
        a('s_cmp_ge_u32 %s, 24' % sU)
        a('s_cselect_b32 %s, %s, %s' % (sJ, sT0, sT1))
        s.wait_lds(CNT_K, s.kqn, sleep=2)
        a('s_lshl_b32 %s, %s, 9' % (sT0, sR))
        a('v_lshlrev_b32 v4, 3, v0')
        a('v_add_u32 v4, %s, v4' % sT0)
        a('global_load_dwordx2 v[6:7], v4, %s' % sp(P_C))
        a('s_lshl_b32 %s, %s, 7' % (sT1, sJ))
        s.gemvC_setup(P_WM, 12288, 1024 * 12288, sT1, s.Wt)
        a('s_waitcnt vmcnt(32)')
        s.silu()
        s.afragC_addr()
        s.tile_transpose(4)
        s.stamp(1)
        acc = s.tile_mfma(4, 'v1', 128)
        s.gemvC_partial(acc, sR)
        s.signal(CNT_R1)
        s.wait_lds(CNT_R1, 4)
        D = 8; TMP = 16; G = 12
        s.gemvC_gather(4, D, TMP)
        s.mk_granule(G, D)
        a('v_and_b32 v5, 15, v0')
        a('v_lshlrev_b32 v5, 4, v5')
        a('v_lshrrev_b32 v6, 4, v0')
        a('s_lshl_b32 %s, %s, 4' % (sT0, sR))
        a('v_add_u32 v6, %s, v6' % sT0)
        a('s_cmp_lt_u32 %s, 48' % sJ)
        a('s_cbranch_scc1 L_pub_g')
        a('s_cmp_ge_u32 %s, 80' % sJ)
        a('s_cbranch_scc1 L_pub_g')
        a('s_sub_u32 %s, %s, 48' % (sT0, sJ))
        a('s_lshl_b32 %s, %s, 8' % (sT0, sT0))
        a('s_add_u32 %s, %s, 0x%x' % (sT0, sT0, OFF_SBCB))
        for k in range(4):
            a('v_add_u32 v7, %d, v6' % (4 * k))
            a('v_min_u32 v7, 55, v7')
            a('v_lshl_add_u32 v7, v7, 13, v5')
            s.st_ws(G, 'v7', sT0)
        a('s_branch L_pub_done')
        a.label('L_pub_g')
        a('s_cmp_lg_u32 %s, 0' % sR)
        a('s_cbranch_scc1 L_pub_done')
        a('s_and_b32 %s, %s, 15' % (sT0, sJ))
        a('s_lshl_b32 %s, %s, 9' % (sT0, sT0))
        a('s_cmp_ge_u32 %s, 80' % sJ)
        a('s_cselect_b32 %s, 128, 0' % sT1)
        a('s_add_u32 %s, %s, %s' % (sT0, sT0, sT1))
        a('s_add_u32 %s, %s, 0x%x' % (sT0, sT0, OFF_G))
        a('v_bfe_u32 v7, v0, 3, 1')
        a('v_lshlrev_b32 v7, 8, v7')
        a('v_and_b32 v6, 7, v0')
        a('v_lshl_add_u32 v7, v6, 4, v7')
        s.ex(0xffff)
        s.st_ws(G, 'v7', sT0)
        s.ex(-1)
        a.label('L_pub_done')
        s.stamp(2)
        a('s_cmp_lt_u32 %s, 8' % sU)
        a('s_cbranch_scc1 L_s2')
        a('s_branch L_warm_stream')

    def silu(s):
        a = s.a; X = s.X
        s.unpack(6, X, X + 1); s.unpack(7, X + 2, X + 3)
        a('s_mov_b32 %s, 0x%x' % (sC1, LOG2E))
        for c in range(4): a('v_mul_f32 %s, %s, -%s' % (v(X + 4 + c), sC1, v(X + c)))
        for c in range(4): a('v_min_f32 %s, %s, %s' % (v(X + 4 + c), f32(120.0), v(X + 4 + c)))
        for c in range(4): a('v_exp_f32 %s, %s' % (v(X + 4 + c), v(X + 4 + c)))
        for c in range(4): a('v_add_f32 %s, 1.0, %s' % (v(X + 4 + c), v(X + 4 + c)))
        for c in range(4): a('v_rcp_f32 %s, %s' % (v(X + 8 + c), v(X + 4 + c)))
        for c in range(4): s.div([X + c], X + 4 + c, X + 8 + c, [X + 12, X + 13])
        a('v_cvt_pk_bf16_f32 v6, %s, %s' % (v(X), v(X + 1)))
        a('v_cvt_pk_bf16_f32 v7, %s, %s' % (v(X + 2), v(X + 3)))
        s.xw_addr('v4')
        a('ds_write_b64 v4, v[6:7]')

    def p1a_role(s):
        a = s.a
        a.c('---------------- P1a (u 8..23, 48..63): partial sa/ca block cb over rows 256g..256g+255 (one 64-row block per wave)')
        a('s_sub_u32 %s, %s, 8' % (sT0, sU))
        a('s_sub_u32 %s, %s, 32' % (sT1, sU))
        a('s_cmp_ge_u32 %s, 48' % sU)
        a('s_cselect_b32 %s, %s, %s' % (sJ, sT1, sT0))
        a('s_lshl_b32 %s, %s, 9' % (sT0, sG))
        a('v_lshlrev_b32 v4, 3, v0')
        a('v_add_u32 v4, %s, v4' % sT0)
        a('global_load_dwordx2 v[6:7], v4, %s' % sp(P_C))
        s.srd(SRD_W, P_WM, 1024 * 12288)
        a('v_lshrrev_b32 v1, 3, v0')
        a('v_mul_u32_u24 v1, %d, v1' % (8 * 12288))
        a('v_and_b32 v4, 7, v0')
        a('v_lshl_add_u32 v1, v4, 4, v1')
        a('s_lshl_b32 %s, %s, 2' % (sT0, sG))
        a('s_add_u32 %s, %s, %s' % (sT0, sT0, sR))
        a('s_mul_i32 s7, %s, %d' % (sT0, 64 * 12288))
        a('s_lshl_b32 %s, %s, 7' % (sT1, sJ))
        a('s_add_u32 s7, s7, %s' % sT1)
        s.tile_load(1, 'v1', 's7', 0, 12288)
        a('s_waitcnt vmcnt(%d)' % (0 if 12288 in s.skip else 8))
        s.silu()
        s.afragC_addr()
        a('s_lshl_b32 %s, %s, 7' % (sT0, sR))
        a('v_add_u32 v1, %s, v1' % sT0)
        a('s_and_b32 %s, %s, 15' % (sC2, sJ))
        a('s_lshl_b32 %s, %s, 12' % (sC2, sC2))
        a('s_lshr_b32 %s, %s, 4' % (sT0, sJ))
        a('s_lshl_b32 %s, %s, 11' % (sT0, sT0))
        a('s_add_u32 %s, %s, %s' % (sC2, sC2, sT0))
        a('s_lshl_b32 %s, %s, 9' % (sT0, sG))
        a('s_add_u32 %s, %s, %s' % (sC2, sC2, sT0))
        a('s_add_u32 %s, %s, 0x%x' % (sC2, sC2, OFF_P))
        a('v_lshlrev_b32 v7, 5, v0')
        a('s_add_u32 %s, %s, 4' % (sC3, sR))
        a('s_mov_b32 %s, 1024' % sC0)
        s.tile_transpose(1, landed=lambda: s.signal(CNT_T))
        acc = s.tile_mfma(1, 'v1', 128)
        s.gemvC_partial(acc, sC3)
        s.signal(CNT_R1)
        a('s_cmp_lg_u32 %s, 0' % sR)
        a('s_cbranch_scc1 L_p1a_done')
        s.wait_lds(CNT_R1, 4)
        D = 8; TMP = 16; G = 32
        s.gemvC_gather(4, D, TMP, slot0=sC0)
        for k in range(4):
            a('v_mov_b32 %s, %s' % (v(G + 2 * k), v(D + k)))
            a('v_mov_b32 %s, %s' % (v(G + 2 * k + 1), sTAG))
        s.ex(0xffff)
        s.st_ws(G, 'v7', sC2)
        s.st_ws(G + 4, 'v7', sC2, 16)
        s.ex(-1)
        a.label('L_p1a_done')
        s.stamp(3)
        a('s_cmp_ge_u32 %s, 48' % sU)
        a('s_cbranch_scc1 L_s1')
        a('s_cmp_lt_u32 %s, 22' % sU)
        a('s_cbranch_scc1 L_s3')
        a('s_branch L_warm_stream')

    def p1b_role(s):
        a = s.a
        a.c('---------------- P1b (u 24..27): sum partial sa/ca of 64 columns, h = LN(x)*(1+ca)+sa, send to the 64 P2 WGs')
        X = s.X; F = s.R[3]
        a('s_lshl_b32 %s, %s, 2' % (sJ, sG))
        a('s_add_u32 %s, %s, %s' % (sJ, sJ, sU))
        a('s_sub_u32 %s, %s, 24' % (sJ, sJ))
        a('v_lshlrev_b32 v4, 5, v0')
        a('global_load_dwordx4 %s, v4, %s' % (v(X, 4), sp(P_X)))
        a('global_load_dwordx4 %s, v4, %s offset:16' % (v(X + 4, 4), sp(P_X)))
        a('s_lshl_b32 %s, %s, 7' % (sT0, sJ))
        a('v_and_b32 v4, 31, v0')
        a('v_lshlrev_b32 v4, 2, v4')
        a('v_add_u32 v4, %s, v4' % sT0)
        a('global_load_dword v6, v4, %s' % sp(P_X))
        a('s_waitcnt vmcnt(0)')
        U = X + 8; S1 = X + 24; S2 = X + 25
        for k in range(8): s.unpack(X + k, U + 2 * k, U + 2 * k + 1)
        a('v_add_f32 %s, %s, %s' % (v(S1), v(U), v(U + 1)))
        a('v_mul_f32 %s, %s, %s' % (v(S2), v(U), v(U)))
        a('v_fmac_f32 %s, %s, %s' % (v(S2), v(U + 1), v(U + 1)))
        for k in range(2, 16):
            a('v_add_f32 %s, %s, %s' % (v(S1), v(S1), v(U + k)))
            a('v_fmac_f32 %s, %s, %s' % (v(S2), v(U + k), v(U + k)))
        s.bfly('v_add_f32', [S1, S2], [X + 26, X + 27], [1, 2, 4, 8, 16, 32])
        MEAN, DD, RR = X + 28, X + 29, X + 30
        s.ln_stats(S1, S2, MEAN, DD, RR, X + 31)
        s.unpack(6, X, X + 1)
        s.ln_apply([X, X + 1], MEAN, DD, RR, [X + 4, X + 5])
        a('s_lshl_b32 %s, %s, 12' % (sC2, sJ))
        a('s_add_u32 %s, %s, 0x%x' % (sC2, sC2, OFF_P))
        a('v_and_b32 v5, 15, v0')
        a('v_lshlrev_b32 v6, 3, v5')
        a('v_lshlrev_b32 v5, 4, v5')
        a('v_lshrrev_b32 v7, 4, v0')
        a('v_lshl_add_u32 v7, v7, 12, v5')
        a('s_lshl_b32 %s, %s, 16' % (sC3, sR))
        a('s_lshl_b32 %s, %s, 8' % (sT0, sJ))
        a('s_add_u32 %s, %s, %s' % (sC3, sC3, sT0))
        a('s_add_u32 %s, %s, 0x%x' % (sC3, sC3, OFF_H))
        G = F + 16
        a('v_mov_b32 %s, %s' % (v(G + 1), sTAG))
        a('v_mov_b32 %s, %s' % (v(G + 3), sTAG))
        s.poll([(F + 4 * k, 'v2', sC2, 1024 * k) for k in range(4)], sleep=s.psleep)
        s.stamp(3)
        a('v_add_f32 %s, %s, %s' % (v(F), v(F), v(F + 4)))
        a('v_add_f32 %s, %s, %s' % (v(F + 1), v(F + 2), v(F + 6)))
        a('v_add_f32 %s, %s, %s' % (v(F + 2), v(F + 8), v(F + 12)))
        a('v_add_f32 %s, %s, %s' % (v(F + 3), v(F + 10), v(F + 14)))
        s.bfly('v_add_f32', [F, F + 1, F + 2, F + 3], [F + 4, F + 5, F + 6, F + 7], [32])
        s.rnd2(F, F + 1, F + 4); s.rnd2(F + 2, F + 3, F + 5)
        a('v_add_f32 %s, 1.0, %s' % (v(F + 2), v(F + 2)))
        a('v_add_f32 %s, 1.0, %s' % (v(F + 3), v(F + 3)))
        s.rnd2(F + 2, F + 3, F + 5)
        a('v_mul_f32 %s, %s, %s' % (v(F + 2), v(F + 2), v(X)))
        a('v_mul_f32 %s, %s, %s' % (v(F + 3), v(F + 3), v(X + 1)))
        s.rnd2(F + 2, F + 3, F + 5)
        a('v_add_f32 %s, %s, %s' % (v(F), v(F), v(F + 2)))
        a('v_add_f32 %s, %s, %s' % (v(F + 1), v(F + 1), v(F + 3)))
        a('v_cvt_pk_bf16_f32 %s, %s, %s' % (v(F), v(F), v(F + 1)))
        a('ds_bpermute_b32 %s, v6, %s' % (v(G), v(F)))
        a('ds_bpermute_b32 %s, v6, %s offset:4' % (v(G + 2), v(F)))
        a('s_waitcnt lgkmcnt(0)')
        for k in range(4):
            a('s_add_u32 %s, %s, 0x%x' % (sT1, sC3, 4 * k * 4096))
            s.st_ws(G, 'v7', sT1)
        s.stamp(4)
        a('s_branch L_mod')

    def p2_role(s):
        a = s.a
        a.c('---------------- P2 (wg 0..63): q slice = h @ wq[:, 64 cols]')
        F = s.R[3]; X = s.X
        a('s_lshl_b32 %s, %s, 4' % (sJ, sG))
        a('s_add_u32 %s, %s, %s' % (sJ, sJ, sU))
        a('s_sub_u32 %s, %s, 32' % (sJ, sJ))
        a('s_lshl_b32 %s, %s, 7' % (sT1, sJ))
        s.gemvC_setup(P_WQ, 8192, 1024 * 8192, sT1)
        s.afragC_addr()
        s.tile_transpose(4, landed=lambda: s.signal(CNT_T))
        s.stamp(1)
        a('s_lshl_b32 %s, %s, 12' % (sC2, sJ))
        a('s_lshl_b32 %s, %s, 10' % (sT0, sR))
        a('s_add_u32 %s, %s, %s' % (sC2, sC2, sT0))
        a('s_add_u32 %s, %s, 0x%x' % (sC2, sC2, OFF_H))
        s.xw_addr('v5')
        s.poll([(F, 'v2', sC2, 0)], sleep=s.psleep)
        s.stamp(4)
        a('v_mov_b32 %s, %s' % (v(F + 1), v(F + 2)))
        a('ds_write_b64 v5, %s' % v(F, 2))
        acc = s.tile_mfma(4, 'v1', 128)
        s.gemvC_partial(acc, sR)
        s.signal(CNT_R1)
        s.wait_lds(CNT_R1, 4)
        D = 8; TMP = 16; G = 12
        s.gemvC_gather(4, D, TMP)
        s.mk_granule(G, D)
        a('v_and_b32 v5, 15, v0')
        a('v_lshlrev_b32 v5, 4, v5')
        a('v_lshrrev_b32 v6, 4, v0')
        a('v_lshl_add_u32 v7, v6, 12, v5')
        a('s_lshr_b32 %s, %s, 4' % (sT0, sJ))
        a('s_lshl_b32 %s, %s, 18' % (sT0, sT0))
        a('s_lshl_b32 %s, %s, 16' % (sT1, sR))
        a('s_add_u32 %s, %s, %s' % (sT0, sT0, sT1))
        a('s_and_b32 %s, %s, 15' % (sT1, sJ))
        a('s_lshl_b32 %s, %s, 8' % (sT1, sT1))
        a('s_add_u32 %s, %s, %s' % (sT0, sT0, sT1))
        a('s_add_u32 %s, %s, 0x%x' % (sT0, sT0, OFF_Q))
        for k in range(4):
            a('s_add_u32 %s, %s, 0x%x' % (sT1, sT0, 4 * k * 4096))
            s.st_ws(G, 'v7', sT1)
        s.seg_end()
        s.stamp(2)
        a('s_branch L_warm_stream')

    def s1_role(s):
        a = s.a
        a.c('---------------- S1 (wg 64..127): combine half a head over 64 WGs, partial attn = o_slice @ wo[64 rows, :]')
        F = s.R[3]
        a('s_lshl_b32 %s, %s, 4' % (sJ, sG))
        a('s_add_u32 %s, %s, %s' % (sJ, sJ, sU))
        a('s_sub_u32 %s, %s, 48' % (sJ, sJ))
        s.wait_lds(CNT_K, s.kqn, sleep=2)
        s.srd(SRD_W, P_WO, 4096 * 2048)
        s.w2_voff()
        s.tile_load(4, 'v1', 's7', 16 * 2048, 2048, s.Wt)
        s.tile_transpose(4)
        s.stamp(1)
        s.warm_stream(30)
        if s.dry:
            s.dry_call('L_s1_seg', 3)
            a('s_lshl_b32 %s, %s, 4' % (sJ, sG))
            a('s_add_u32 %s, %s, %s' % (sJ, sJ, sU))
            a('s_sub_u32 %s, %s, 48' % (sJ, sJ))
        a.label('L_s1_seg')
        s.gemvR_setup('%d' % L_X)
        a('s_lshl_b32 %s, %s, 15' % (sC2, sJ))
        a('s_lshl_b32 %s, %s, 13' % (sT0, sR))
        a('s_add_u32 %s, %s, %s' % (sC2, sC2, sT0))
        a('s_add_u32 %s, %s, 0x%x' % (sC2, sC2, OFF_O))
        a('s_add_u32 %s, %s, 4096' % (sC3, sC2))
        a('s_lshl_b32 %s, %s, 10' % (sC0, sJ))
        a('s_add_u32 %s, %s, 0x%x' % (sC0, sC0, OFF_ML))
        a('s_mov_b32 %s, 0x%x' % (sC1, LOG2E))
        s.wait_lds(CNT_ATT, 8, sleep=1)
        s.stamp(4)
        s.poll([(4, 'v2', sC0, 0)] + [(F + 4 * k, 'v2', sC2 if k < 4 else sC3, (k & 3) * 1024) for k in range(8)])
        s.stamp(5)
        a('v_mov_b32 v5, v4')
        s.bfly('v_max_f32', [5], [7], [1, 2, 4, 8, 16, 32])
        a('v_sub_f32 v4, v4, v5')
        a('v_mul_f32 v4, %s, v4' % sC1)
        a('v_exp_f32 v4, v4')
        a('v_mul_f32 v6, v6, v4')
        a('v_lshrrev_b32 v5, 3, v0')
        a('v_lshlrev_b32 v5, 2, v5')
        for k in range(8):
            a('ds_bpermute_b32 %s, v5, v4 offset:%d' % (v(F + 4 * k + 1), 32 * k))
        s.bfly('v_add_f32', [6], [7], [1, 2, 4, 8, 16, 32])
        a('v_rcp_f32 v7, v6')
        a('s_waitcnt lgkmcnt(0)')
        a('v_mul_f32 v4, %s, %s' % (v(F), v(F + 1)))
        a('v_mul_f32 v5, %s, %s' % (v(F + 2), v(F + 1)))
        for k in range(1, 8):
            a('v_fmac_f32 v4, %s, %s' % (v(F + 4 * k), v(F + 4 * k + 1)))
            a('v_fmac_f32 v5, %s, %s' % (v(F + 4 * k + 2), v(F + 4 * k + 1)))
        s.bfly('v_add_f32', [4, 5], [F, F + 1], [8, 16, 32])
        s.div([4, 5], 6, 7, [F, F + 1])
        a('v_cvt_pk_bf16_f32 v4, v4, v5')
        a('v_lshlrev_b32 v5, 2, v0')
        a('s_lshl_b32 %s, %s, 5' % (sT0, sR))
        a('v_add_u32 v5, %s, v5' % sT0)
        s.ex(0xff)
        a('ds_write_b32 v5, v4 offset:%d' % L_X)
        s.ex(-1)
        s.signal(CNT_R2)
        a('v_bfe_u32 v5, v0, 2, 2')
        a('v_lshlrev_b32 v5, 14, v5')
        a('v_and_b32 v6, 3, v0')
        a('v_lshl_add_u32 v5, v6, 12, v5')
        a('v_lshrrev_b32 v6, 4, v0')
        a('v_lshl_add_u32 v5, v6, 4, v5')
        a('s_lshl_b32 %s, %s, 17' % (sC2, sR))
        a('s_lshl_b32 %s, %s, 6' % (sT0, sJ))
        a('s_add_u32 %s, %s, %s' % (sC2, sC2, sT0))
        a('s_add_u32 %s, %s, 0x%x' % (sC2, sC2, OFF_A))
        a('s_add_u32 %s, %s, 0x10000' % (sC3, sC2))
        s.wait_lds(CNT_R2, 4)
        acc = s.tile_mfma(4, 'v1', 32)
        s.gemvR_publish(acc, 'v5')
        s.seg_end()
        s.stamp(6)
        a('s_branch L_end')

    def s2_role(s):
        a = s.a
        a.c("---------------- S2 (u 0..7): x1 slice (32 cols, 8 per wave); later out slice = x1 + gb*(sum of w2 partials + b2)")
        a('s_lshl_b32 %s, %s, 3' % (sJ, sG))
        a('s_add_u32 %s, %s, %s' % (sJ, sJ, sU))
        XA, GA, GB, B2, A1, A2, A3, XO, OO, P = 8, 10, 12, 14, 16, 17, 18, 19, 20, 24
        a('v_and_b32 %s, 3, v0' % v(XO))
        a('v_lshlrev_b32 %s, 2, %s' % (v(XO), v(XO)))
        a('s_lshl_b32 %s, %s, 4' % (sT0, sR))
        a('v_add_u32 %s, %s, %s' % (v(XO), sT0, v(XO)))
        a('s_lshl_b32 %s, %s, 6' % (sT1, sJ))
        a('v_add_u32 %s, %s, %s' % (v(OO), sT1, v(XO)))
        a('global_load_dword v6, %s, %s' % (v(OO), sp(P_X)))
        a('global_load_dword v7, %s, %s' % (v(OO), sp(P_B2)))
        a('v_and_b32 v5, 15, v0')
        a('v_lshlrev_b32 v4, 4, v5')
        a('s_lshl_b32 %s, %s, 8' % (sC2, sJ))
        a('s_add_u32 %s, %s, 0x%x' % (sC2, sC2, OFF_G))
        s.poll([(P, 'v4', sC2, 0)], sleep=s.nsleep)
        a('v_mov_b32 %s, %s' % (v(P + 1), v(P + 2)))
        a('v_lshlrev_b32 v5, 3, v5')
        a('ds_write_b64 v5, %s offset:%d' % (v(P, 2), L_G))
        a('ds_read_b32 %s, %s offset:%d' % (v(P + 4), v(XO), L_G))
        a('ds_read_b32 %s, %s offset:%d' % (v(P + 5), v(XO), L_G + 64))
        a('s_waitcnt lgkmcnt(0)')
        s.unpack(6, XA, XA + 1)
        s.unpack(7, B2, B2 + 1)
        s.unpack(P + 4, GA, GA + 1)
        s.unpack(P + 5, GB, GB + 1)
        a('v_lshrrev_b32 v5, 1, v0')
        a('v_and_b32 v4, 1, v0')
        a('v_lshlrev_b32 v4, 4, v4')
        a('v_add_u32 %s, 32, v5' % v(A2))
        a('v_min_u32 %s, 55, %s' % (v(A2), v(A2)))
        a('v_lshl_add_u32 %s, v5, 12, v4' % v(A1))
        a('v_lshl_add_u32 %s, %s, 12, v4' % (v(A2), v(A2)))
        a('v_add_u32 %s, 192, v0' % v(A3))
        a('v_min_u32 %s, 223, %s' % (v(A3), v(A3)))
        a('v_lshlrev_b32 %s, 4, %s' % (v(A3), v(A3)))
        s.stamp(1)
        s.warm_stream(40)
        if s.dry:
            s.dry_call('L_s2_seg', 4)
            a('s_lshl_b32 %s, %s, 3' % (sJ, sG))
            a('s_add_u32 %s, %s, %s' % (sJ, sJ, sU))
        a.label('L_s2_seg')
        a('s_lshl_b32 %s, %s, 14' % (sC2, sJ))
        a('s_lshl_b32 %s, %s, 12' % (sT0, sR))
        a('s_add_u32 %s, %s, %s' % (sC2, sC2, sT0))
        a('s_add_u32 %s, %s, 0x%x' % (sC2, sC2, OFF_A))
        a('s_lshl_b32 %s, %s, 7' % (sC3, sJ))
        a('s_lshl_b32 %s, %s, 5' % (sT0, sR))
        a('s_add_u32 %s, %s, %s' % (sC3, sC3, sT0))
        a('s_add_u32 %s, %s, 0x%x' % (sC3, sC3, OFF_X1))
        a('s_mul_i32 %s, %s, 14336' % (sC0, sJ))
        a('s_mul_i32 %s, %s, 3584' % (sT0, sR))
        a('s_add_u32 %s, %s, %s' % (sC0, sC0, sT0))
        a('s_add_u32 %s, %s, 0x%x' % (sC0, sC0, OFF_HH))
        s.wait_lds(CNT_ATT, 8, sleep=1)
        s.stamp(4)
        def reduce():
            a('v_add_f32 %s, %s, %s' % (v(P), v(P), v(P + 4)))
            a('v_add_f32 %s, %s, %s' % (v(P + 1), v(P + 2), v(P + 6)))
            a('v_add_f32 %s, %s, %s' % (v(P), v(P), v(P + 8)))
            a('v_add_f32 %s, %s, %s' % (v(P + 1), v(P + 1), v(P + 10)))
        def reduce2():
            for st in (4, 8):
                for r in (P, P + 1):
                    a('v_add_f32_dpp %s, %s, %s row_ror:%d row_mask:0xf bank_mask:0xf' % (v(r), v(r), v(r), st))
            s.bfly('v_add_f32', [P, P + 1], [P + 2, P + 3], [16, 32])
            s.rnd2(P, P + 1, P + 2)
        s.poll([(P + 4 * k, 'v2', sC2, 1024 * k) for k in range(4)])
        s.stamp(5)
        reduce()
        a('v_add_f32 %s, %s, %s' % (v(P), v(P), v(P + 12)))
        a('v_add_f32 %s, %s, %s' % (v(P + 1), v(P + 1), v(P + 14)))
        reduce2()
        a('v_mul_f32 %s, %s, %s' % (v(P), v(P), v(GA)))
        a('v_mul_f32 %s, %s, %s' % (v(P + 1), v(P + 1), v(GA + 1)))
        s.rnd2(P, P + 1, P + 2)
        a('v_add_f32 %s, %s, %s' % (v(P), v(P), v(XA)))
        a('v_add_f32 %s, %s, %s' % (v(P + 1), v(P + 1), v(XA + 1)))
        a('v_cvt_pk_bf16_f32 %s, %s, %s' % (v(P + 2), v(P), v(P + 1)))
        G = P + 16
        a('v_mov_b32 %s, %s' % (v(G + 1), sTAG))
        a('v_mov_b32 %s, %s' % (v(G + 3), sTAG))
        a('v_mov_b32_dpp %s, %s quad_perm:[0,2,0,2] row_mask:0xf bank_mask:0xf' % (v(G), v(P + 2)))
        a('v_mov_b32_dpp %s, %s quad_perm:[1,3,1,3] row_mask:0xf bank_mask:0xf' % (v(G + 2), v(P + 2)))
        s.st_ws(G, v(A1), sC3)
        s.st_ws(G, v(A2), sC3)
        s.unpack(P + 2, XA, XA + 1)
        s.stamp(6)
        s.poll([(P + 4 * k, 'v2', sC0, 1024 * k) for k in range(3)] + [(P + 12, v(A3), sC0, 0)])
        s.stamp(2)
        reduce()
        s.ex('lo32')
        a('v_add_f32 %s, %s, %s' % (v(P), v(P), v(P + 12)))
        a('v_add_f32 %s, %s, %s' % (v(P + 1), v(P + 1), v(P + 14)))
        s.ex(-1)
        reduce2()
        a('v_add_f32 %s, %s, %s' % (v(P), v(P), v(B2)))
        a('v_add_f32 %s, %s, %s' % (v(P + 1), v(P + 1), v(B2 + 1)))
        s.rnd2(P, P + 1, P + 2)
        a('v_mul_f32 %s, %s, %s' % (v(P), v(P), v(GB)))
        a('v_mul_f32 %s, %s, %s' % (v(P + 1), v(P + 1), v(GB + 1)))
        s.rnd2(P, P + 1, P + 2)
        a('v_add_f32 %s, %s, %s' % (v(P), v(P), v(XA)))
        a('v_add_f32 %s, %s, %s' % (v(P + 1), v(P + 1), v(XA + 1)))
        a('v_cvt_pk_bf16_f32 %s, %s, %s' % (v(P + 2), v(P), v(P + 1)))
        s.seg_end()
        s.ex(0xf)
        a('buffer_store_dword %s, %s, %s, 0 offen' % (v(P + 2), v(OO), SRD_OUT))
        s.ex(-1)
        a('s_cmp_lg_u32 s2, 0')
        a('s_cbranch_scc1 L_end')
        a('s_cmp_lg_u32 %s, 0' % sR)
        a('s_cbranch_scc1 L_end')
        a('v_mov_b32 v4, %s' % sTAG)
        s.ex(1)
        a('buffer_store_dword v4, v3, %s, 0 offen sc1' % SRD_WS)
        s.ex(-1)
        a('s_branch L_end')

    def s3_role(s):
        a = s.a
        a.c('---------------- S3 (u 8..21): w2 rows -> LDS; x1 -> LN -> modulate -> LN -> y ; partial y @ w1[:, 64 cols]')
        F = s.R[3]
        TB = [s.X] + s.R[:3]
        a('s_mul_i32 %s, %s, 14' % (sJ, sG))
        a('s_add_u32 %s, %s, %s' % (sJ, sJ, sU))
        a('s_sub_u32 %s, %s, 8' % (sJ, sJ))
        a('s_lshl_b32 %s, %s, 7' % (sT1, sJ))
        a('v_and_b32 v5, 15, v0')
        a('v_lshlrev_b32 v5, 3, v5')
        a('v_add_u32 v4, %s, v5' % sT1)
        a('global_load_dwordx2 v[6:7], v4, %s' % sp(P_B1))
        s.wait_lds(CNT_K, s.kqn, sleep=2)
        s.srd(SRD_W, P_W2, 3584 * 2048)
        s.w2_voff()
        s.tile_load(4, 'v1', 's7', 16 * 2048, 2048, s.Wt)
        s.tile_transpose(4)
        a('s_waitcnt vmcnt(0)')
        a('ds_write_b64 v5, v[6:7] offset:%d' % L_B1)
        a('s_lshl_b32 %s, %s, 15' % (sT0, sR))
        a('s_add_u32 %s, %s, %d' % (sT0, sT0, L_W2))
        a('v_add_u32 v5, %s, v2' % sT0)
        for b in range(4):
            if b == 3:
                a('s_cmp_eq_u32 %s, 3' % sR)
                a('s_cbranch_scc1 L_s3_w')
            for e in range(8):
                a('ds_write_b128 v5, %s offset:%d' % (v(TB[b] + 4 * e, 4), 8192 * b + 1024 * e))
        a.label('L_s3_w')
        s.signal(CNT_W)
        a('s_lshl_b32 %s, %s, 7' % (sT1, sJ))
        s.gemvC_setup(P_W1, 7168, 1024 * 7168, sT1, s.Wt)
        s.afragC_addr()
        s.tile_transpose(4)
        s.stamp(1)
        a('s_lshl_b32 %s, %s, 13' % (sC2, sJ))
        a('s_lshl_b32 %s, %s, 10' % (sT0, sR))
        a('s_add_u32 %s, %s, %s' % (sC2, sC2, sT0))
        a('s_add_u32 %s, %s, 0x%x' % (sC2, sC2, OFF_SBCB))
        a('s_add_u32 %s, %s, 4096' % (sC3, sC2))
        s.poll([(F, 'v2', sC2, 0), (F + 4, 'v2', sC3, 0)], sleep=s.nsleep)
        SB, CB, XX, T = F + 8, F + 12, F + 4, F + 16
        s.unpack(F, SB, SB + 1); s.unpack(F + 2, SB + 2, SB + 3)
        s.unpack(F + 4, CB, CB + 1); s.unpack(F + 6, CB + 2, CB + 3)
        for c in range(4): a('v_add_f32 %s, 1.0, %s' % (v(CB + c), v(CB + c)))
        s.rnd2(CB, CB + 1, T); s.rnd2(CB + 2, CB + 3, T)
        s.xw_addr('v6')
        a('s_lshl_b32 %s, %s, 3' % (sT0, sR))
        a('v_mov_b32 v7, %s' % sT0)
        s.stamp(2)
        s.warm_stream(50)
        if s.dry:
            s.dry_call('L_s3_seg', 5)
            a('s_mul_i32 %s, %s, 14' % (sJ, sG))
            a('s_add_u32 %s, %s, %s' % (sJ, sJ, sU))
            a('s_sub_u32 %s, %s, 8' % (sJ, sJ))
        a.label('L_s3_seg')
        a('s_lshl_b32 %s, %s, 12' % (sC2, sJ))
        a('s_lshl_b32 %s, %s, 10' % (sT0, sR))
        a('s_add_u32 %s, %s, %s' % (sC2, sC2, sT0))
        a('s_add_u32 %s, %s, 0x%x' % (sC2, sC2, OFF_X1))
        s.wait_lds(CNT_ATT, 8, sleep=1)
        s.stamp(4)
        s.poll([(F, 'v2', sC2, 0)])
        s.stamp(5)
        s.unpack(F, XX, XX + 1); s.unpack(F + 2, XX + 2, XX + 3)
        S1, S2, MEAN, DD, RR, RD = F + 18, F + 19, F + 20, F + 21, F + 22, F + 24
        xs = [XX, XX + 1, XX + 2, XX + 3]
        for rnd, cnt in ((0, CNT_R2), (1, CNT_R3)):
            a('v_add_f32 %s, %s, %s' % (v(S1), v(XX), v(XX + 1)))
            a('v_mul_f32 %s, %s, %s' % (v(S2), v(XX), v(XX)))
            a('v_fmac_f32 %s, %s, %s' % (v(S2), v(XX + 1), v(XX + 1)))
            for k in (2, 3):
                a('v_add_f32 %s, %s, %s' % (v(S1), v(S1), v(XX + k)))
                a('v_fmac_f32 %s, %s, %s' % (v(S2), v(XX + k), v(XX + k)))
            s.bfly('v_add_f32', [S1, S2], [T, T + 1], [1, 2, 4, 8, 16, 32])
            s.ex(1)
            a('ds_write_b64 v7, %s offset:%d' % (v(S1, 2), L_ST + 32 * rnd))
            s.ex(-1)
            s.signal(cnt)
            s.wait_lds(cnt, 4)
            a('ds_read_b128 %s, v3 offset:%d' % (v(RD, 4), L_ST + 32 * rnd))
            a('ds_read_b128 %s, v3 offset:%d' % (v(RD + 4, 4), L_ST + 32 * rnd + 16))
            a('s_waitcnt lgkmcnt(0)')
            a('v_add_f32 %s, %s, %s' % (v(S1), v(RD), v(RD + 2)))
            a('v_add_f32 %s, %s, %s' % (v(S2), v(RD + 1), v(RD + 3)))
            a('v_add_f32 %s, %s, %s' % (v(RD), v(RD + 4), v(RD + 6)))
            a('v_add_f32 %s, %s, %s' % (v(RD + 1), v(RD + 5), v(RD + 7)))
            a('v_add_f32 %s, %s, %s' % (v(S1), v(S1), v(RD)))
            a('v_add_f32 %s, %s, %s' % (v(S2), v(S2), v(RD + 1)))
            s.ln_stats(S1, S2, MEAN, DD, RR, T)
            s.ln_apply(xs, MEAN, DD, RR, [T, T + 1])
            if rnd == 0:
                for c in range(4): a('v_mul_f32 %s, %s, %s' % (v(XX + c), v(XX + c), v(CB + c)))
                s.rnd2(XX, XX + 1, T); s.rnd2(XX + 2, XX + 3, T + 1)
                for c in range(4): a('v_add_f32 %s, %s, %s' % (v(XX + c), v(XX + c), v(SB + c)))
                s.rnd2(XX, XX + 1, T); s.rnd2(XX + 2, XX + 3, T + 1)
        a('v_cvt_pk_bf16_f32 %s, %s, %s' % (v(T), v(XX), v(XX + 1)))
        a('v_cvt_pk_bf16_f32 %s, %s, %s' % (v(T + 1), v(XX + 2), v(XX + 3)))
        a('ds_write_b64 v6, %s' % v(T, 2))
        s.stamp(6)
        acc = s.tile_mfma(4, 'v1', 128)
        s.gemvC_partial(acc, sR)
        s.signal(CNT_S)
        s.seg_end()
        a('s_branch L_end')

if __name__ == '__main__':
    import argparse
    ap = argparse.ArgumentParser()
    ap.add_argument('-o', default='k.s')
    ap.add_argument('--W', type=int, default=4)
    ap.add_argument('--W2', type=int, default=8)
    ap.add_argument('--slow', type=int, default=0)
    ap.add_argument('--stamps', action='store_true')
    ap.add_argument('--skip', default='')
    ap.add_argument('--dry', action='store_true')
    ap.add_argument('--kq', type=int, default=22)
    ap.add_argument('--Wt', type=int, default=4)
    ap.add_argument('--NL', type=int, default=15)
    ap.add_argument('--nsleep', type=int, default=64)
    ap.add_argument('--psleep', type=int, default=0)
    ap.add_argument('--kqn', type=int, default=8)
    ap.add_argument('--qsleep', type=int, default=8)
    args = ap.parse_args()
    g = Gen(W=args.W, W2=args.W2, slow=args.slow, stamps=args.stamps, qsleep=args.qsleep)
    g.dry = args.dry; g.kq = args.kq; g.Wt = args.Wt; g.NL = args.NL; g.nsleep = args.nsleep; g.psleep = args.psleep; g.kqn = args.kqn
    for x in args.skip.split(','):
        if x == 'wm': g.skip.add(12288)
        if x == 'wq': g.skip.add(8192)
        if x == 'w1': g.skip.add(7168)
        if x == 'wo': g.skip.add((2048, 16 * 2048))
    open(args.o, 'w').write(g.build())
```

```python
import sys, math
sys.path.insert(0, 'work')
from asmlib import Asm
NAME = 'adaLN_cond__gqa_block_cached__mixer_channel_mlp__decode'

OFF_MOD, OFF_Q, OFF_SBCB, OFF_G, OFF_ML = 0x010000, 0x100000, 0x200000, 0x280000, 0x290000
OFF_O, OFF_A, OFF_X1, OFF_HH, OFF_TS = 0x300000, 0x500000, 0x580000, 0x600000, 0x8000000
OFF_P = 0x2a0000
OFF_H = OFF_MOD
CNT_Q, CNT_ATT, CNT_R1, CNT_R2, CNT_R3, CNT_X, CNT_S, CNT_T, CNT_W, CNT_K, CNT_PUB = 0, 4, 8, 12, 16, 20, 24, 28, 32, 36, 40
L_ZERO, L_Q, L_X, L_RED, L_ML, L_ST, L_O, L_G, L_B1, L_H, L_OB = 64, 256, 2304, 4352, 5376, 5888, 5952, 7424, 7552, 7680, 8192
L_W2 = L_OB + 8 * 4096
LDS_BYTES = L_W2 + 15 * 8192
assert LDS_BYTES <= 163840
CLASSES = [(0, 8, 30), (8, 14, 8), (22, 2, 32), (24, 8, 30), (32, 16, 30), (48, 16, 30)]
OFF_CNT = 0x2b0000
sWG, sWAVE, sTAG = 's2', 's3', 's4'
sR = 's5'
sJ = 's6'
sU, sG = 's24', 's25'
sLIVE = 's[26:27]'
sRET, sPASS = 's69', 's100'
sLAST, sH2, sL0 = 's100', 's101', 's28'
SRD_K, SRD_V, SRD_WS, SRD_W, SRD_OUT = 's[8:11]', 's[12:15]', 's[16:19]', 's[20:23]', 's[28:31]'
P_X, P_K, P_V, P_WQ, P_WO, P_W1, P_B1, P_W2, P_B2, P_C, P_WM, P_OUT, P_DBG, P_WS = 32, 34, 36, 38, 40, 44, 46, 48, 50, 52, 54, 56, 58, 60
sSELLO, sSELHI = 's62', 's63'
sT0, sT1, sT2, sT3, sTO = 's64', 's65', 's66', 's67', 's68'
sACC = 's[70:71]'
sM0, sM1, sM2 = 's[72:73]', 's[74:75]', 's[76:77]'
sC0, sC1, sC2, sC3 = 's78', 's79', 's80', 's81'
TS0 = 84
NSTAMP = 8
LOG2E = 0x3fb8aa3b
def f32(x):
    import struct
    return '0x%08x' % struct.unpack('<I', struct.pack('<f', x))[0]

def v(i, n=1): return 'v%d' % i if n == 1 else 'v[%d:%d]' % (i, i + n - 1)
def sp(i): return 's[%d:%d]' % (i, i + 1)

class Gen:
    def __init__(s, W=4, W2=8, slow=3, stamps=False, qsleep=8, nt=True):
        s.a = Asm(); s.W = W; s.W2 = W2; s.slow = slow; s.stamps = stamps; s.qsleep = qsleep
        s.nt = 'nt' if nt else ''
        s.skip = set(); s.rets = []; s.dry = True; s.kq = 22; s.kqn = 8; s.Wt = 4; s.tkg = 1; s.pd = 1; s.hold = 1; s.ND = 4; s.s2sleep = 0; s.s3sleep = 0; s.finst = False; s.finsleep = 2; s.tsleep = 0; s.fsleep = 20; s.qsleep0 = 40; s.s3wait = False; s.s3dyn = True; s.NL = 15; s.nsleep = 64; s.psleep = 0
    def stamp(s, i):
        if s.stamps:
            s.a('s_memrealtime %s' % sp(TS0 + 2 * i))
    def srd(s, srd, ptr, nbytes):
        a = s.a; b = int(srd[2:srd.index(':')])
        a('s_mov_b32 s%d, s%d' % (b, ptr)); a('s_and_b32 s%d, s%d, 0xffff' % (b + 1, ptr + 1))
        a('s_mov_b32 s%d, 0x%x' % (b + 2, nbytes)); a('s_mov_b32 s%d, 0x20000' % (b + 3))
    def ex(s, m):
        a = s.a
        if m == -1: a('s_mov_b64 exec, %s' % sLIVE)
        elif m == 'lo32': a('s_mov_b32 exec_lo, s26'); a('s_mov_b32 exec_hi, 0')
        elif isinstance(m, str): a('s_and_b64 exec, %s, %s' % (sLIVE, m))
        else: a('s_and_b64 exec, %s, 0x%x' % (sLIVE, m))
    def dry_call(s, seg, rid):
        a = s.a
        a('s_mov_b32 %s, %d' % (sRET, rid))
        a('s_mov_b64 %s, 0' % sLIVE)
        a('s_mov_b64 exec, 0')
        a('s_branch %s' % seg)
        a.label('L_dret%d' % rid)
        a('s_mov_b64 %s, -1' % sLIVE)
        a('s_mov_b64 exec, -1')
        s.rets.append(rid)
    def seg_end(s):
        s.a('s_cbranch_execz L_dryret')
    def vmwait(s, n):
        a = s.a; L = a.newlabel('vw')
        a('s_cbranch_execz %s' % L)
        a('s_waitcnt vmcnt(%d)' % n)
        a.label(L)
    def signal(s, cnt, vz='v3', vone='v4'):
        a = s.a
        a('v_mov_b32 %s, 1' % vone)
        a('s_waitcnt lgkmcnt(0)')
        s.ex(1)
        a('ds_add_u32 %s, %s offset:%d' % (vz, vone, cnt))
        s.ex(-1)
    def wait_lds(s, cnt, target, vz='v3', vt='v4', sleep=0):
        a = s.a; L = a.newlabel('w'); LD = a.newlabel('wd')
        a('s_mov_b32 %s, 0' % sTO)
        a.label(L)
        if sleep: a('s_sleep %d' % sleep)
        a('s_add_u32 %s, %s, 1' % (sTO, sTO))
        a('s_cmp_gt_u32 %s, 0x400000' % sTO)
        a('s_cbranch_scc1 L_fail')
        a('ds_read_b32 %s, %s offset:%d' % (vt, vz, cnt))
        a('s_waitcnt lgkmcnt(0)')
        a('v_readfirstlane_b32 %s, %s' % (sT3, vt))
        a('s_cmp_ge_u32 %s, %s' % (sT3, target))
        a('s_cbranch_execz %s' % LD)
        a('s_cbranch_scc0 %s' % L)
        a.label(LD)
    def poll(s, loads, sleep=0):
        a = s.a; L = a.newlabel('p'); n = len(loads)
        a('s_mov_b32 %s, 0' % sTO)
        a.label(L)
        a('s_add_u32 %s, %s, 1' % (sTO, sTO))
        a('s_cmp_gt_u32 %s, 0x40000' % sTO)
        a('s_cbranch_scc1 L_fail')
        LS = a.newlabel('ps')
        a('s_cbranch_execz %s' % LS)
        for d, vo, so, imm in loads:
            a('buffer_load_dwordx4 %s, %s, %s, %s offen offset:%d sc1' % (v(d, 4), vo, SRD_WS, so, imm))
        a('s_waitcnt vmcnt(%d)' % (n - 1))
        a.label(LS)
        a('s_mov_b64 %s, -1' % sACC)
        for i, (d, vo, so, imm) in enumerate(loads):
            if i: s.vmwait(n - 1 - i)
            a('v_cmp_eq_u32 vcc, %s, %s' % (sTAG, v(d + 1)))
            a('v_cmp_eq_u32 %s, %s, %s' % (sM2, sTAG, v(d + 3)))
            a('s_and_b64 %s, %s, vcc' % (sACC, sACC))
            a('s_and_b64 %s, %s, %s' % (sACC, sACC, sM2))
        a('s_cmp_eq_u64 %s, -1' % sACC)
        L2 = a.newlabel('pd')
        a('s_cbranch_execz %s' % L2)
        if sleep:
            a('s_cbranch_scc1 %s' % L2)
            a('s_sleep %d' % sleep)
            a('s_branch %s' % L)
        else:
            a('s_cbranch_scc0 %s' % L)
        a.label(L2)
    def ppoll(s, loads, depth=3, gap=5):
        a = s.a; L = a.newlabel('pp'); n = len(loads)
        def sweep():
            for d, vo, so, imm in loads:
                a('buffer_load_dwordx4 %s, %s, %s, %s offen offset:%d sc1' % (v(d, 4), vo, SRD_WS, so, imm))
        for i in range(depth - 1):
            sweep()
            a('s_sleep %d' % gap)
        a('s_mov_b32 %s, 0' % sTO)
        a.label(L)
        sweep()
        a('s_add_u32 %s, %s, 1' % (sTO, sTO))
        a('s_cmp_gt_u32 %s, 0x80000' % sTO)
        a('s_cbranch_scc1 L_fail')
        a('s_mov_b64 %s, -1' % sACC)
        a('s_waitcnt vmcnt(%d)' % ((depth - 1) * n))
        for i, (d, vo, so, imm) in enumerate(loads):
            a('v_cmp_eq_u32 vcc, %s, %s' % (sTAG, v(d + 1)))
            a('v_cmp_eq_u32 %s, %s, %s' % (sM2, sTAG, v(d + 3)))
            a('s_and_b64 %s, %s, vcc' % (sACC, sACC))
            a('s_and_b64 %s, %s, %s' % (sACC, sACC, sM2))
        a('s_cmp_eq_u64 %s, -1' % sACC)
        if s.tsleep:
            L2 = a.newlabel('ppd')
            a('s_cbranch_scc1 %s' % L2)
            a('s_sleep %d' % s.tsleep)
            a('s_branch %s' % L)
            a.label(L2)
        else:
            a('s_cbranch_scc0 %s' % L)
        if depth > 1: a('s_nop 7')
    def lds_spin(s, reads, checks, tmp, sleep=0):
        a = s.a; L = a.newlabel('ls')
        a('s_mov_b32 %s, 0' % sTO)
        a.label(L)
        if sleep: a('s_sleep %d' % sleep)
        for r_ in reads: a(r_)
        a('s_add_u32 %s, %s, 1' % (sTO, sTO))
        a('s_cmp_gt_u32 %s, 0x400000' % sTO)
        a('s_cbranch_scc1 L_fail')
        a('s_waitcnt lgkmcnt(0)')
        c = list(checks)
        a('v_max3_u32 %s, %s, %s, %s' % (v(tmp), v(c[0]), v(c[1]), v(c[2])))
        c = c[3:]
        while len(c) >= 2:
            a('v_max3_u32 %s, %s, %s, %s' % (v(tmp), v(tmp), v(c[0]), v(c[1]))); c = c[2:]
        if c: a('v_max_u32 %s, %s, %s' % (v(tmp), v(tmp), v(c[0])))
        a('v_cmp_eq_u32 vcc, -1, %s' % v(tmp))
        a('s_cmp_eq_u64 vcc, 0')
        a('s_cbranch_scc0 %s' % L)
    def bfly(s, op, regs, tmps, steps):
        a = s.a
        for st in steps:
            if st in (1, 2, 4, 8):
                mod = {1: 'quad_perm:[1,0,3,2]', 2: 'quad_perm:[2,3,0,1]', 4: None, 8: 'row_ror:8'}[st]
                for r, t in zip(regs, tmps):
                    if st == 4:
                        a('%s_dpp %s, %s, %s row_half_mirror row_mask:0xf bank_mask:0xf' % (op, v(r), v(r), v(r)))
                    else:
                        a('%s_dpp %s, %s, %s %s row_mask:0xf bank_mask:0xf' % (op, v(r), v(r), v(r), mod))
            else:
                sw = 'v_permlane16_swap_b32' if st == 16 else 'v_permlane32_swap_b32'
                for r, t in zip(regs, tmps): a('v_mov_b32 %s, %s' % (v(t), v(r)))
                for r, t in zip(regs, tmps): a('%s %s, %s' % (sw, v(r), v(t)))
                for r, t in zip(regs, tmps): a('%s %s, %s, %s' % (op, v(r), v(r), v(t)))
    def rnd2(s, x, y, t):
        a = s.a
        a('v_cvt_pk_bf16_f32 %s, %s, %s' % (v(t), v(x), v(y)))
        a('v_lshlrev_b32 %s, 16, %s' % (v(x), v(t)))
        a('v_and_b32 %s, 0xffff0000, %s' % (v(y), v(t)))
    def rnd1(s, x):
        a = s.a
        a('v_cvt_pk_bf16_f32 %s, %s, %s' % (v(x), v(x), v(x)))
        a('v_and_b32 %s, 0xffff0000, %s' % (v(x), v(x)))
    def unpack(s, src, lo, hi):
        a = s.a
        a('v_lshlrev_b32 %s, 16, %s' % (v(lo), v(src)))
        a('v_and_b32 %s, 0xffff0000, %s' % (v(hi), v(src)))
    def div(s, xs, d, r, t):
        a = s.a
        for x in xs:
            a('v_mul_f32 %s, %s, %s' % (v(t[0]), v(x), v(r)))
            a('v_fma_f32 %s, -%s, %s, %s' % (v(t[1]), v(t[0]), v(d), v(x)))
            a('v_fma_f32 %s, %s, %s, %s' % (v(x), v(t[1]), v(r), v(t[0])))
    def ln_stats(s, s1, s2, mean, d, r, t):
        a = s.a
        a('v_mul_f32 %s, %s, %s' % (v(mean), f32(1.0 / 1024), v(s1)))
        a('v_mul_f32 %s, %s, %s' % (v(d), f32(1.0 / 1024), v(s2)))
        a('v_fma_f32 %s, -%s, %s, %s' % (v(d), v(mean), v(mean), v(d)))
        a('v_max_f32 %s, 0, %s' % (v(d), v(d)))
        s.rnd2(mean, d, t)
        a('v_add_f32 %s, %s, %s' % (v(d), f32(1e-5), v(d)))
        s.rnd1(d)
        a('v_sqrt_f32 %s, %s' % (v(d), v(d)))
        s.rnd1(d)
        a('v_rcp_f32 %s, %s' % (v(r), v(d)))
    def ln_apply(s, xs, mean, d, r, t):
        a = s.a
        for x in xs: a('v_sub_f32 %s, %s, %s' % (v(x), v(x), v(mean)))
        for i in range(0, len(xs), 2): s.rnd2(xs[i], xs[i + 1], t[0])
        s.div(xs, d, r, t)
        for i in range(0, len(xs), 2): s.rnd2(xs[i], xs[i + 1], t[0])
    R = [8, 40, 72, 104]; X = 136
    def tile_load(s, nblk, voff, sbase, step_blk, step_t, pace=0):
        a = s.a
        if step_t in s.skip or (step_t, step_blk) in s.skip: return
        for b in range(nblk):
            for t in range(8):
                a('s_add_u32 %s, %s, 0x%x' % (sT0, sbase, b * step_blk + t * step_t))
                if pace and 8 * b + t >= pace: a('s_waitcnt vmcnt(%d)' % (pace - 1))
                a('buffer_load_dwordx4 %s, %s, %s, %s offen %s' % (v(s.R[b] + 4 * t, 4), voff, SRD_W, sT0, s.nt))
    def tile_transpose(s, nblk, later=0, landed=None):
        a = s.a
        TB = [s.X] + s.R[:3]
        for b in range(nblk):
            s.vmwait((nblk - 1 - b) * 8 + later)
            if b == nblk - 1 and landed: landed()
            for e in range(8):
                for j in range(4):
                    a('v_perm_b32 %s, %s, %s, %s' % (v(TB[b] + 4 * e + j), v(s.R[b] + 4 * (2 * j + 1) + (e >> 1)),
                                                     v(s.R[b] + 4 * (2 * j) + (e >> 1)), sSELHI if e & 1 else sSELLO))
    def tile_mfma(s, nblk, vaddr, step, spin=False):
        a = s.a
        TB = [s.X] + s.R[:3]
        F = s.R[3]
        AF = F + 16
        rd = ['ds_read_b128 %s, %s offset:%d' % (v(AF + 4 * b, 4), vaddr, b * step) for b in range(nblk)]
        if spin: s.lds_spin(rd, [AF + 4 * b for b in range(nblk)], 4, sleep=1)
        else:
            for r_ in rd: a(r_)
        acc = [F + 4 * e for e in range(4)] + [TB[0] + 4 * e for e in range(4)]
        LS = a.newlabel('ms')
        a('s_cbranch_execz %s' % LS)
        for half in range(2):
            for b in range(nblk):
                if half == 0: a('s_waitcnt lgkmcnt(%d)' % (nblk - 1 - b))
                for e in range(4 * half, 4 * half + 4):
                    c = '0' if b == 0 else v(acc[e], 4)
                    a('v_mfma_f32_16x16x32_bf16 %s, %s, %s, %s' % (v(acc[e], 4), v(AF + 4 * b, 4), v(TB[b] + 4 * e, 4), c))
        a.label(LS)
        return acc
    def gemvC_partial(s, acc, slot_sgpr):
        a = s.a
        AF = s.R[3] + 16
        for e in range(8):
            a('v_add_f32_dpp %s, %s, %s row_ror:8 row_mask:0xf bank_mask:0xf' % (v(AF + e), v(acc[e] + 1), v(acc[e])))
        a('s_lshl_b32 %s, %s, 8' % (sT0, slot_sgpr))
        a('v_lshlrev_b32 v5, 5, v0')
        a('v_add_u32 v5, %s, v5' % sT0)
        s.ex(0xff)
        a('ds_write_b128 v5, %s offset:%d' % (v(AF, 4), L_RED))
        a('ds_write_b128 v5, %s offset:%d' % (v(AF + 4, 4), L_RED + 16))
        s.ex(-1)
    def gemvC_gather(s, nsrc, dst, tmp, slot0='0', spin=False):
        a = s.a
        a('v_and_b32 v5, 15, v0')
        a('v_lshlrev_b32 v5, 4, v5')
        if slot0 != '0': a('v_add_u32 v5, %s, v5' % slot0)
        rd = ['ds_read_b128 %s, v5 offset:%d' % (v(tmp + 4 * w, 4), L_RED + 256 * w) for w in range(nsrc)]
        if spin: s.lds_spin(rd, [tmp + 4 * w for w in range(nsrc)], 4, sleep=1)
        else:
            for r_ in rd: a(r_)
        for w in range(1, nsrc):
            a('s_waitcnt lgkmcnt(%d)' % (nsrc - 1 - w))
            for c in range(4):
                a('v_add_f32 %s, %s, %s' % (v(dst + c), v(tmp + c) if w == 1 else v(dst + c), v(tmp + 4 * w + c)))
    def mk_granule(s, g, x):
        a = s.a
        a('v_cvt_pk_bf16_f32 %s, %s, %s' % (v(g), v(x), v(x + 1)))
        a('v_cvt_pk_bf16_f32 %s, %s, %s' % (v(g + 2), v(x + 2), v(x + 3)))
        a('v_mov_b32 %s, %s' % (v(g + 1), sTAG))
        a('v_mov_b32 %s, %s' % (v(g + 3), sTAG))
    def st_ws(s, g, voff, soff, imm=0):
        L = s.a.newlabel('st')
        s.a('s_cbranch_execz %s' % L)
        s.a('buffer_store_dwordx4 %s, %s, %s, %s offen offset:%d sc1' % (v(g, 4), voff, SRD_WS, soff, imm))
        s.a.label(L)

    def build(s):
        a = s.a
        a.raw('; @launch grid=(256,1,1) block=(768,1,1) lds=%d' % LDS_BYTES)
        if s.stamps: a.raw('; TS 0x%x:%d:%d' % (OFF_TS, 256 * 12, NSTAMP))
        a.raw('.amdgcn_target "amdgcn-amd-amdhsa--gfx950"')
        a.raw('.text')
        a.raw('.globl %s_kernel' % NAME)
        a.raw('.p2align 8')
        a.raw('.type %s_kernel,@function' % NAME)
        a.raw('%s_kernel:' % NAME)
        a('s_cmp_ge_u32 s2, 256')
        a('s_cbranch_scc1 L_exit')
        if s.stamps:
            for i in range(NSTAMP): a('s_mov_b64 %s, 0' % sp(TS0 + 2 * i))
        s.stamp(0)
        a('s_load_dwordx16 s[32:47], s[0:1], 0')
        a('s_load_dwordx8 s[48:55], s[0:1], 64')
        a('s_load_dwordx4 s[56:59], s[0:1], 96')
        a('s_load_dwordx2 s[60:61], s[0:1], 112')
        a('v_lshrrev_b32 v1, 6, v0')
        a('v_and_b32 v0, 63, v0')
        a('v_mov_b32 v3, 0')
        a('v_readfirstlane_b32 s3, v1')
        a('v_lshlrev_b32 v2, 4, v0')
        a('s_mov_b32 %s, 0x05040100' % sSELLO)
        a('s_mov_b32 %s, 0x07060302' % sSELHI)
        a('s_waitcnt lgkmcnt(0)')
        a('s_load_dword %s, %s, 0' % (sTAG, sp(P_WS)))
        s.srd(SRD_WS, P_WS, 0x10000000)
        s.srd(SRD_OUT, P_OUT, 2048)
        a('s_and_b32 %s, s2, 63' % sU)
        a('s_lshr_b32 %s, s2, 6' % sG)
        a('s_mov_b64 %s, -1' % sLIVE)
        a('s_mov_b32 %s, 0' % sRET)
        a('s_cmp_ge_u32 s3, 8')
        a('s_cbranch_scc1 L_role')
        s.stream()
        a.label('L_role')
        s.role()
        a.label('L_dryret')
        if not s.rets: a('s_branch L_end')
        for rid in s.rets[:-1]:
            a('s_cmp_eq_u32 %s, %d' % (sRET, rid))
            a('s_cbranch_scc1 L_dret%d' % rid)
        if s.rets: a('s_branch L_dret%d' % s.rets[-1])
        a.label('L_fail')
        a('v_mov_b32 v4, 0xdead')
        a('v_mov_b32 v5, 0')
        a('s_mov_b64 exec, 1')
        a('global_store_dword v5, v4, %s' % sp(P_DBG))
        a('s_mov_b64 exec, -1')
        a.label('L_end')
        if s.stamps:
            s.stamp(NSTAMP - 1)
            a('s_mul_i32 %s, s2, 12' % sT0)
            a('s_add_u32 %s, %s, s3' % (sT0, sT0))
            a('s_mul_i32 %s, %s, %d' % (sT0, sT0, NSTAMP * 8))
            a('s_add_u32 %s, %s, 0x%x' % (sT0, sT0, OFF_TS))
            a('v_mov_b32 v5, 0')
            a('s_waitcnt lgkmcnt(0)')
            a('s_mov_b64 exec, 1')
            for i in range(0, NSTAMP, 2):
                for k in range(4): a('v_mov_b32 v%d, s%d' % (8 + k, TS0 + 2 * i + k))
                a('buffer_store_dwordx4 v[8:11], v5, %s, %s offen offset:%d' % (SRD_WS, sT0, 8 * i))
        a.label('L_exit')
        a('s_endpgm')
        a.raw('.section .rodata,"a"')
        a.raw('.p2align 6')
        a.raw('.amdhsa_kernel %s_kernel' % NAME)
        a.raw('  .amdhsa_next_free_vgpr 168')
        a.raw('  .amdhsa_next_free_sgpr 102')
        a.raw('  .amdhsa_accum_offset 168')
        a.raw('  .amdhsa_group_segment_fixed_size 0')
        a.raw('  .amdhsa_kernarg_size 120')
        a.raw('  .amdhsa_user_sgpr_count 2')
        a.raw('  .amdhsa_user_sgpr_kernarg_segment_ptr 1')
        a.raw('  .amdhsa_system_sgpr_workgroup_id_x 1')
        a.raw('.end_amdhsa_kernel')
        return a.finish()

    SP, O, T, BUF, NB, TK = 8, 28, 60, 76, 23, 27
    def stream(s):
        a = s.a
        a.c('---------------- stream wave')
        s.srd(SRD_K, P_K, 0x4000000)
        s.srd(SRD_V, P_V, 0x4000000)
        a('s_mov_b32 %s, s3' % sR)
        base = 0
        for ci, (u0, cnt, G) in enumerate(CLASSES):
            a('s_mul_i32 %s, %s, %d' % (sT1, sU, G))
            a('s_add_u32 %s, %s, 0x%x' % (sT1, sT1, (base - u0 * G) & 0xffffffff))
            if ci == 0:
                a('s_mov_b32 %s, %s' % (sT0, sT1)); a('s_mov_b32 %s, %d' % (sT2, G))
            else:
                a('s_cmp_ge_u32 %s, %d' % (sU, u0))
                a('s_cselect_b32 %s, %s, %s' % (sT0, sT1, sT0))
                a('s_cselect_b32 %s, %d, %s' % (sT2, G, sT2))
            base += cnt * G
        s.static = base
        assert max(c_[2] for c_ in CLASSES) <= 32
        assert (2048 - base) % s.ND == 0, base
        s.PS = (2048 - base) // s.ND
        assert min(c_[2] for c_ in CLASSES if c_[2] > 8) >= 24 and CLASSES[1][2] in (0, 8)
        a('s_lshl_b32 s7, %s, 13' % sT0)
        a('s_lshl_b32 %s, %s, 24' % (sT0, sG))
        a('s_add_u32 s7, s7, %s' % sT0)
        a('s_lshl_b32 %s, s3, 12' % sT0)
        a('s_add_u32 s7, s7, %s' % sT0)
        a('s_and_b32 %s, %s, 7' % (sT1, sT2))
        a('s_lshr_b32 %s, %s, 3' % (sT2, sT2))
        a('s_sub_u32 %s, 8, %s' % (sT3, sT1))
        a('s_lshl_b32 %s, %s, 12' % (sLAST, sT1))
        a('s_lshl_b32 %s, %s, 12' % (sL0, sT3))
        a('s_cmp_ge_u32 s3, %s' % sT3)
        a('s_cselect_b32 %s, %s, 0x8000' % (sLAST, sLAST))
        a('s_cselect_b32 %s, %s, 0' % (sL0, sL0))
        a('s_addc_u32 %s, %s, 0' % (sT2, sT2))
        a('s_sub_u32 %s, %s, 1' % (sT0, sT2))
        a('s_lshl_b32 %s, %s, 16' % (sT0, sT0))
        a('s_add_u32 %s, %s, s7' % (sT0, sT0))
        a('s_sub_u32 %s, %s, %s' % (sL0, sT0, sL0))
        a('s_add_u32 %s, %s, %s' % (sLAST, sLAST, sL0))
        a('s_add_u32 %s, s7, 0x18000' % sH2)
        a('s_cmp_eq_u32 %s, 2' % sT2)
        a('s_cselect_b32 %s, %s, %s' % (sH2, sLAST, sH2))
        a('v_bfe_u32 v1, v0, 2, 2')
        a('v_lshlrev_b32 v1, 8, v1')
        a('v_lshrrev_b32 v4, 4, v0')
        a('v_lshl_add_u32 v1, v4, 6, v1')
        a('v_and_b32 v4, 3, v0')
        a('v_lshl_add_u32 v1, v4, 4, v1')
        a('v_and_b32 v5, 7, v0')
        a('v_lshlrev_b32 v5, 8, v5')
        a('v_lshrrev_b32 v6, 4, v0')
        a('v_lshl_add_u32 v5, v6, 6, v5')
        a('v_bfe_u32 v6, v0, 3, 1')
        a('v_lshl_add_u32 v5, v6, 4, v5')
        a('s_mov_b32 %s, %s' % (sC0, f32(128 ** -0.5)))
        a('s_mov_b32 %s, 0x%x' % (sC1, LOG2E))
        a('v_and_b32 v24, 3, v0')
        a('v_lshlrev_b32 v24, 10, v24')
        a('v_lshrrev_b32 v4, 2, v0')
        a('v_lshl_add_u32 v24, v4, 4, v24')
        a('s_lshr_b32 %s, s3, 2' % sT0)
        a('s_lshl_b32 %s, %s, 8' % (sT0, sT0))
        a('s_and_b32 %s, s3, 3' % sT1)
        a('s_lshl_b32 %s, %s, 2' % (sT1, sT1))
        a('s_add_u32 %s, %s, %s' % (sT0, sT0, sT1))
        a('s_add_u32 %s, %s, %d' % (sT0, sT0, L_OB))
        a('v_add_u32 v24, %s, v24' % sT0)
        a('v_lshrrev_b32 v25, 5, v0')
        a('v_lshlrev_b32 v26, 10, v25')
        a('v_lshlrev_b32 v25, 15, v25')
        a('v_bfe_u32 v4, v0, 3, 2')
        a('v_lshl_add_u32 v25, v4, 13, v25')
        a('v_and_b32 v4, 7, v0')
        a('v_lshl_add_u32 v25, v4, 4, v25')
        a('s_lshl_b32 %s, %s, 3' % (sT0, sG))
        a('s_add_u32 %s, %s, s3' % (sT0, sT0))
        a('s_lshl_b32 s82, %s, 16' % sT0)
        a('s_lshl_b32 %s, %s, 7' % (sT1, sU))
        a('s_add_u32 s82, s82, %s' % sT1)
        a('s_add_u32 s82, s82, 0x%x' % OFF_O)
        a('s_lshl_b32 s83, %s, 11' % sT0)
        a('s_lshl_b32 %s, %s, 4' % (sT1, sU))
        a('s_add_u32 s83, s83, %s' % sT1)
        a('s_add_u32 s83, s83, 0x%x' % OFF_ML)
        W, NB = s.W, s.NB
        def pre(j):
            so = sH2
            if j < 12:
                a('s_add_u32 %s, s7, 0x%x' % (sT0, (j >> 3) * 65536 + ((j >> 2) & 1) * 32768)); so = sT0
            a('buffer_load_dwordx4 %s, v1, %s, %s offen offset:%d %s' % (v(s.BUF + 4 * j, 4), SRD_K, so, (j & 3) * 1024, s.nt))
        a('s_sub_u32 %s, %s, 8' % (sT0, sU))
        if CLASSES[1][2] <= 8:
            a('s_cmp_lt_u32 %s, 14' % sT0)
            a('s_cbranch_scc1 L_st_dynonly')
        if s.hold >= 2:
            a('s_cmp_lt_u32 %s, 16' % sT0)
            a('s_cbranch_scc1 L_st_hold')
            a('s_cmp_ge_u32 %s, 32' % sU)
            a('s_cbranch_scc1 L_st_hold')
        elif s.hold == 1:
            a('s_sub_u32 %s, %s, 32' % (sT0, sU))
            a('s_cmp_lt_u32 %s, 16' % sT0)
            a('s_cbranch_scc1 L_st_hold')
        pre(0)
        a('s_waitcnt lgkmcnt(0)')
        a('s_barrier')
        for j in range(1, s.slow + 1):
            a('s_waitcnt vmcnt(0)')
            pre(j)
        a('s_branch L_st_go')
        a.label('L_st_hold')
        a('s_waitcnt lgkmcnt(0)')
        a('s_barrier')
        s.wait_lds(CNT_T, 4, sleep=1)
        for j in range(0, s.slow + 1): pre(j)
        a.label('L_st_go')
        a('s_add_u32 %s, %s, 1' % (sTAG, sTAG))
        for j in range(s.slow + 1, 16):
            a('s_waitcnt vmcnt(%d)' % (W - 1))
            pre(j)
            if j == s.kq: s.signal(CNT_K)
        a('s_sub_u32 %s, %s, 8' % (sT0, sU))
        a('s_cmp_lt_u32 %s, 14' % sT0)
        a('s_cbranch_scc1 L_st_s3')
        a('s_cmp_eq_u32 %s, 3' % sT2)
        a('s_cbranch_scc1 L_st_n3l')
        s.stream_body(4, s.NL, 'a')
        a('s_branch L_st_dyn')
        a.label('L_st_n3l')
        s.stream_body(3, s.NL, 'b')
        a('s_branch L_st_dyn')
        a.label('L_st_s3')
        g3 = CLASSES[1][2]
        lo = g3 >> 3
        if g3 <= 8:
            a.label('L_st_dynonly')
            if g3:
                a('s_add_u32 %s, s7, 0x8000' % sT1)
                for i in range(8):
                    a('buffer_load_dwordx4 %s, v1, %s, %s offen offset:%d %s' % (v(s.BUF + 4 * i, 4), SRD_K, 's7' if i < 4 else sT1, (i & 3) * 1024, s.nt))
                for i in range(8):
                    a('buffer_load_dwordx4 %s, v2, %s, %s offen offset:%d %s' % (v(s.BUF + 32 + 4 * i, 4), SRD_V, 's7' if i < 4 else sT1, (i & 3) * 1024, s.nt))
            a('s_waitcnt lgkmcnt(0)')
            a('s_barrier')
            a('s_add_u32 %s, %s, 1' % (sTAG, sTAG))
            for r_ in range(32): a('v_mov_b32 %s, 0' % v(s.O + r_))
            a('v_mov_b32 v6, %s' % f32(-3.0e38))
            a('v_mov_b32 v7, 0')
            s.stamp(1)
            a('s_cmp_ge_u32 s3, 4')
            a('s_cbranch_scc1 L_st_qwz')
            s.q_wait(s.BUF + 64, sleep=s.qsleep0)
            a.label('L_st_qwz')
            s.wait_lds(CNT_Q, 4, sleep=4)
            s.stamp(2)
            a('s_waitcnt vmcnt(0)')
            s.first_ticket()
            if g3: a('s_mov_b32 %s, 1' % sL0)
        else:
            if g3 & 7:
                a('s_cmp_eq_u32 %s, %d' % (sT2, lo))
                a('s_cbranch_scc1 L_st_n3')
                s.stream_body(lo + 1, 0, 'c')
                a('s_branch L_st_dyn')
                a.label('L_st_n3')
            s.stream_body(lo, 0, 'd')
            if not s.s3dyn: a('s_branch L_st_fin')
        a.label('L_st_dyn')
        s.dyn_loop()
        a.label('L_st_fin')
        s.stream_fin()

    def first_ticket(s):
        a = s.a; L = a.newlabel('tk')
        a('v_mov_b32 %s, -1' % v(s.TK))
        a('s_cmp_ge_u32 s3, %d' % s.ND)
        a('s_cbranch_scc1 %s' % L)
        s.ticket_addr()
        s.ticket()
        a.label(L)
    def ticket_addr(s):
        a = s.a
        a('s_lshl_b32 %s, %s, 3' % (sH2, sG))
        a('s_add_u32 %s, %s, s3' % (sH2, sH2))
        a('s_lshl_b32 %s, %s, 8' % (sH2, sH2))
        a('s_add_u32 %s, %s, 0x%x' % (sH2, sH2, OFF_CNT))
    def ticket(s):
        a = s.a
        a('v_mov_b32 %s, 1' % v(s.TK))
        s.ex(1)
        a('buffer_atomic_add %s, v3, %s, %s offen sc0 sc1' % (v(s.TK), SRD_WS, sH2))
        s.ex(-1)

    def dyn_loop(s):
        a = s.a
        SP, O, T, BUF = s.SP, s.O, s.T, s.BUF
        if s.PS == 0: return
        KS = [BUF + 4 * i for i in range(8)]; VS = [BUF + 32 + 4 * i for i in range(8)]
        D = BUF + 64; TU = BUF + 80; AL = BUF + 84; X0 = BUF + 88
        a('s_mul_i32 %s, s3, %d' % (sT0, s.PS))
        a('s_add_u32 %s, %s, %d' % (sT0, sT0, s.static))
        a('s_lshl_b32 s7, %s, 13' % sT0)
        a('s_lshl_b32 %s, %s, 24' % (sT0, sG))
        a('s_add_u32 s7, s7, %s' % sT0)
        a('v_and_b32 v5, 7, v0')
        a('v_lshlrev_b32 v5, 8, v5')
        a('v_lshrrev_b32 v4, 4, v0')
        a('v_lshl_add_u32 v5, v4, 6, v5')
        a('v_bfe_u32 v4, v0, 3, 1')
        a('v_lshl_add_u32 v5, v4, 4, v5')
        a('v_bfe_u32 v4, v0, 4, 1')
        a('v_lshlrev_b32 v4, 4, v4')
        if CLASSES[1][2] == 8:
            a('s_sub_u32 %s, %s, 8' % (sT0, sU))
            a('s_cmp_lt_u32 %s, 14' % sT0)
            a('s_cbranch_scc1 L_dyn_have')
        a.label('L_dyn')
        a('s_waitcnt vmcnt(0)')
        a('v_readfirstlane_b32 %s, %s' % (sT1, v(s.TK)))
        a('s_cmp_ge_u32 %s, %d' % (sT1, s.PS))
        a('s_cbranch_scc1 L_st_fin')
        a('s_lshl_b32 %s, %s, 13' % (sT1, sT1))
        a('s_add_u32 %s, %s, s7' % (sT0, sT1))
        a('s_add_u32 %s, %s, 4096' % (sT1, sT0))
        for i in range(8):
            a('buffer_load_dwordx4 %s, v1, %s, %s offen offset:%d %s' % (v(KS[i], 4), SRD_K, sT0 if i < 4 else sT1, (i & 3) * 1024, s.nt))
        for i in range(8):
            a('buffer_load_dwordx4 %s, v2, %s, %s offen offset:%d %s' % (v(VS[i], 4), SRD_V, sT0 if i < 4 else sT1, (i & 3) * 1024, s.nt))
        s.ticket()
        a.label('L_dyn_have')
        a('ds_read_b128 %s, v5 offset:%d' % (v(T, 4), L_Q))
        a('ds_read_b128 %s, v5 offset:%d' % (v(T + 4, 4), L_Q + 32))
        a('s_waitcnt lgkmcnt(0)')
        for n in range(4):
            a('s_waitcnt vmcnt(%d)' % (6 - 2 * n + 9))
            for bb in range(2):
                for m in range(2):
                    a('v_mfma_f32_16x16x32_bf16 %s, %s, %s, 0' % (v(D + 8 * bb + 4 * m, 4), v(KS[2 * n + bb], 4), v(T + 4 * m, 4)))
            for bb in range(2):
                d0 = D + 8 * bb; d1 = d0 + 4
                a('v_add_f32 %s, %s, %s' % (v(TU + 2 * bb), v(d0), v(d1 + 2)))
                a('v_add_f32 %s, %s, %s' % (v(TU + 2 * bb + 1), v(d0 + 1), v(d1 + 3)))
            a('v_add_f32_dpp %s, %s, %s row_ror:8 row_mask:0xf bank_mask:0x3' % (v(SP + n), v(TU + 1), v(TU)))
            a('v_add_f32_dpp %s, %s, %s row_ror:8 row_mask:0xf bank_mask:0xc' % (v(SP + n), v(TU + 2), v(TU + 3)))
        for n in (0, 2):
            s.rnd2(SP + n, SP + n + 1, X0)
            a('v_mul_f32 %s, %s, %s' % (v(SP + n), sC0, v(SP + n)))
            a('v_mul_f32 %s, %s, %s' % (v(SP + n + 1), sC0, v(SP + n + 1)))
            s.rnd2(SP + n, SP + n + 1, X0)
        a('v_max3_f32 %s, %s, %s, %s' % (v(X0), v(SP), v(SP + 1), v(SP + 2)))
        a('v_max3_f32 %s, %s, %s, v6' % (v(X0), v(X0), v(SP + 3)))
        s.bfly('v_max_f32', [X0], [X0 + 1], [8, 16, 32])
        a('v_sub_f32 %s, v6, %s' % (v(X0 + 2), v(X0)))
        a('v_mul_f32 %s, %s, %s' % (v(X0 + 2), sC1, v(X0 + 2)))
        a('v_exp_f32 %s, %s' % (v(X0 + 2), v(X0 + 2)))
        a('v_mov_b32 v6, %s' % v(X0))
        for r in range(4):
            a('ds_bpermute_b32 %s, v4, %s offset:%d' % (v(AL + r), v(X0 + 2), 4 * r))
        a('v_mul_f32 %s, %s, %s' % (v(X0 + 1), sC1, v(X0)))
        for n in range(4): a('v_fma_f32 %s, %s, %s, -%s' % (v(SP + n), v(SP + n), sC1, v(X0 + 1)))
        for n in range(4): a('v_exp_f32 %s, %s' % (v(SP + n), v(SP + n)))
        a('v_add_f32 %s, %s, %s' % (v(X0), v(SP), v(SP + 1)))
        a('v_add_f32 %s, %s, %s' % (v(X0 + 1), v(SP + 2), v(SP + 3)))
        a('v_add_f32 %s, %s, %s' % (v(X0), v(X0), v(X0 + 1)))
        a('v_cvt_pk_bf16_f32 %s, %s, %s' % (v(SP), v(SP), v(SP + 1)))
        a('v_cvt_pk_bf16_f32 %s, %s, %s' % (v(SP + 1), v(SP + 2), v(SP + 3)))
        s.bfly('v_add_f32', [X0], [X0 + 1], [8, 16, 32])
        a('v_mov_b32_dpp %s, %s row_ror:8 row_mask:0xf bank_mask:0xf' % (v(SP + 2), v(SP)))
        a('v_mov_b32_dpp %s, %s row_ror:8 row_mask:0xf bank_mask:0xf' % (v(SP + 3), v(SP + 1)))
        a('v_fma_f32 v7, v7, %s, %s' % (v(X0 + 2), v(X0)))
        a('s_waitcnt lgkmcnt(0)')
        for e in range(8):
            for r in range(4):
                a('v_mul_f32 %s, %s, %s' % (v(O + 4 * e + r), v(O + 4 * e + r), v(AL + r)))
        a('s_waitcnt vmcnt(1)')
        beta = [0, 2, 4, 6, 1, 3, 5, 7]
        src = [VS[beta[t]] for t in range(8)]
        for half in range(2):
            for e in range(4 * half, 4 * half + 4):
                for j in range(4):
                    a('v_perm_b32 %s, %s, %s, %s' % (v(T + 4 * (e & 3) + j), v(src[2 * j + 1] + (e >> 1)), v(src[2 * j] + (e >> 1)),
                                                     sSELHI if e & 1 else sSELLO))
            for e in range(4 * half, 4 * half + 4):
                a('v_mfma_f32_16x16x32_bf16 %s, %s, %s, %s' % (v(O + 4 * e, 4), v(SP, 4), v(T + 4 * (e & 3), 4), v(O + 4 * e, 4)))
        a('s_branch L_dyn')

    def stream_body(s, ng, NL, tag):
        a = s.a
        SP, O, T, BUF, NB, W, W2 = s.SP, s.O, s.T, s.BUF, s.NB, s.W, s.W2
        QF = T; TU = T + 8
        nk = 8 * ng
        def addr(j, full):
            blk = j % nk
            imm = (blk & 3) * 1024
            if blk >= nk - 4: base, o = sLAST, 0
            elif blk >= nk - 8: base, o = sL0, 0
            else: base, o = 's7', (blk >> 3) * 65536 + ((blk >> 2) & 1) * 32768
            if full: o += imm; imm = 0
            a('s_add_u32 %s, %s, 0x%x' % (sT0, base, o))
            return imm
        for j in range(16, NB):
            o = addr(j, False)
            a('s_waitcnt vmcnt(%d)' % (W - 1))
            a('buffer_load_dwordx4 %s, %s, %s, %s offen offset:%d %s' % (v(BUF + 4 * j, 4), 'v1' if j < nk else 'v2',
                                                                        SRD_K if j < nk else SRD_V, sT0, o, s.nt))
            if j == s.kq: s.signal(CNT_K)
        if NL:
            a('s_mul_i32 %s, s3, %d' % (sT1, NL * 1024))
            a('s_add_u32 %s, %s, %d' % (sT1, sT1, L_W2))
            for i in range(NL):
                j = NB + i
                addr(j, True)
                a('s_add_u32 m0, %s, %d' % (sT1, i * 1024))
                a('s_waitcnt vmcnt(%d)' % (W - 1))
                a('buffer_load_dwordx4 %s, %s, %s offen %s lds' % ('v1' if j < nk else 'v2', SRD_K if j < nk else SRD_V, sT0, s.nt))
        s.stamp(1)
        LQ = 'L_st_qw' + tag
        a('s_cmp_ge_u32 s3, 4')
        a('s_cbranch_scc1 %s' % LQ)
        s.q_wait(s.O)
        a.label(LQ)
        s.wait_lds(CNT_Q, 4, sleep=2)
        s.stamp(2)
        a('ds_read_b128 %s, v5 offset:%d' % (v(s.T, 4), L_Q))
        a('ds_read_b128 %s, v5 offset:%d' % (v(s.T + 4, 4), L_Q + 32))
        if NL:
            a('s_mul_i32 %s, s3, %d' % (sT1, NL * 1024))
            a('s_add_u32 %s, %s, %d' % (sT1, sT1, L_W2))
            a('v_add_u32 v4, %s, v2' % sT1)
        issued = [NB + NL]
        where = {j: BUF + 4 * j for j in range(NB)}
        free = []
        pend = [False]; tk = [False]
        def slot(j): return where[j]
        def inlds(j): return NB <= j < NB + NL
        def landed(j):
            a('s_waitcnt vmcnt(%d)' % (issued[0] - 1 - j))
        def stage(j):
            r = free.pop(0); where[j] = r
            landed(j)
            a('ds_read_b128 %s, v4 offset:%d' % (v(r, 4), (j - NB) * 1024))
            pend[0] = True
        def issue():
            j = issued[0]
            r = free.pop(0); where[j] = r
            o = addr(j, False)
            a('s_waitcnt vmcnt(%d)' % (W2 - 1))
            a('buffer_load_dwordx4 %s, %s, %s, %s offen offset:%d %s' % (v(r, 4), 'v1' if j < nk else 'v2',
                                                                        SRD_K if j < nk else SRD_V, sT0, o, s.nt))
            issued[0] += 1
        def need(j0, j1):
            for j in range(j0, j1 + 1):
                if j not in where:
                    assert free, (ng, NL, j)
                    if inlds(j): stage(j)
                    else:
                        assert j == issued[0]
                        issue()
            top = max([j for j in range(j0, j1 + 1) if not inlds(j)], default=None)
            if top is not None: landed(top)
            if pend[0] and any(inlds(j) for j in range(j0, j1 + 1)):
                a('s_waitcnt lgkmcnt(0)'); pend[0] = False
        def done(j0, j1, look):
            for j in range(j0, j1 + 1): free.append(where[j])
            for j in range(j1 + 1, j1 + 1 + look):
                if inlds(j) and j not in where and free: stage(j)
            while free and issued[0] < 2 * nk:
                un = [j for j in range(NB, NB + NL) if j not in where]
                unk = [j for j in un if j < nk]; unv = [j for j in un if j >= nk]
                kleft = len([j for j in range(j1 + 1, nk) if j in where])
                res = min(len(unk), 2) + max(0, len(unv) - kleft)
                if len(free) <= res: break
                issue()
        a('s_waitcnt lgkmcnt(0)')
        npair = 4 * ng
        def qk_post(n):
            D = O + 16 * (n & 1)
            for bb in range(2):
                d0 = D + 8 * bb; d1 = d0 + 4
                t, u = TU + 2 * bb, TU + 2 * bb + 1
                a('v_add_f32 %s, %s, %s' % (v(t), v(d0), v(d1 + 2)))
                a('v_add_f32 %s, %s, %s' % (v(u), v(d0 + 1), v(d1 + 3)))
            a('v_add_f32_dpp %s, %s, %s row_ror:8 row_mask:0xf bank_mask:0x3' % (v(SP + n), v(TU + 1), v(TU)))
            a('v_add_f32_dpp %s, %s, %s row_ror:8 row_mask:0xf bank_mask:0xc' % (v(SP + n), v(TU + 2), v(TU + 3)))
        for n in range(npair):
            need(2 * n, 2 * n + 1)
            D = O + 16 * (n & 1)
            for bb in range(2):
                for m in range(2):
                    a('v_mfma_f32_16x16x32_bf16 %s, %s, %s, 0' % (v(D + 8 * bb + 4 * m, 4), v(slot(2 * n + bb), 4), v(QF + 4 * m, 4)))
            if n > 0: qk_post(n - 1)
            done(2 * n, 2 * n + 1, 2 if n < npair - 4 else 8)
        qk_post(npair - 1)
        s.stamp(3)
        for n in range(0, npair, 2):
            t = O + (n >> 1)
            s.rnd2(SP + n, SP + n + 1, t)
            a('v_mul_f32 %s, %s, %s' % (v(SP + n), sC0, v(SP + n)))
            a('v_mul_f32 %s, %s, %s' % (v(SP + n + 1), sC0, v(SP + n + 1)))
            s.rnd2(SP + n, SP + n + 1, t)
        a('v_max3_f32 v6, %s, %s, %s' % (v(SP), v(SP + 1), v(SP + 2)))
        for n in range(3, npair - 1, 2):
            a('v_max3_f32 v6, v6, %s, %s' % (v(SP + n), v(SP + n + 1)))
        a('v_max_f32 v6, v6, %s' % v(SP + npair - 1))
        s.bfly('v_max_f32', [6], [5], [8, 16, 32])
        a('v_mul_f32 v5, %s, v6' % sC1)
        for n in range(npair):
            a('v_fma_f32 %s, %s, %s, -v5' % (v(SP + n), v(SP + n), sC1))
        for n in range(npair):
            a('v_exp_f32 %s, %s' % (v(SP + n), v(SP + n)))
        a('v_add_f32 v7, %s, %s' % (v(SP), v(SP + 1)))
        for n in range(2, npair):
            a('v_add_f32 v7, v7, %s' % v(SP + n))
        for G in range(ng):
            p = SP + 4 * G
            a('v_cvt_pk_bf16_f32 %s, %s, %s' % (v(p), v(p), v(p + 1)))
            a('v_cvt_pk_bf16_f32 %s, %s, %s' % (v(p + 1), v(p + 2), v(p + 3)))
        for G in range(ng):
            p = SP + 4 * G
            a('v_mov_b32_dpp %s, %s row_ror:8 row_mask:0xf bank_mask:0xf' % (v(p + 2), v(p)))
            a('v_mov_b32_dpp %s, %s row_ror:8 row_mask:0xf bank_mask:0xf' % (v(p + 3), v(p + 1)))
        s.bfly('v_add_f32', [7], [5], [8, 16, 32])
        s.stamp(4)
        beta = [0, 2, 4, 6, 1, 3, 5, 7]
        for G in range(ng):
            if s.PS and G == ng - s.tkg and (NL or s.s3dyn):
                tk[0] = True
                s.first_ticket()
            need(nk + 8 * G, nk + 8 * G + 7)
            src = [slot(nk + 8 * G + beta[t]) for t in range(8)]
            for half in range(2):
                for e in range(4 * half, 4 * half + 4):
                    for j in range(4):
                        a('v_perm_b32 %s, %s, %s, %s' % (v(T + 4 * (e & 3) + j), v(src[2 * j + 1] + (e >> 1)), v(src[2 * j] + (e >> 1)),
                                                         sSELHI if e & 1 else sSELLO))
                for e in range(4 * half, 4 * half + 4):
                    c = '0' if G == 0 else v(O + 4 * e, 4)
                    a('v_mfma_f32_16x16x32_bf16 %s, %s, %s, %s' % (v(O + 4 * e, 4), v(SP + 4 * G, 4), v(T + 4 * (e & 3), 4), c))
            done(nk + 8 * G, nk + 8 * G + 7, 8)
        pass

    def stream_fin(s):
        a = s.a
        O = s.O
        s.stamp(5)
        a('s_lshl_b32 %s, s3, 12' % sT0)
        a('v_add_u32 v5, %s, v2' % sT0)
        a('v_lshlrev_b32 v4, 6, v0')
        a('s_lshl_b32 %s, s3, 3' % sT1)
        a('v_add_u32 v4, %s, v4' % sT1)
        s.ex('lo32')
        for e in range(8):
            a('ds_write_b128 v5, %s offset:%d' % (v(O + 4 * e, 4), L_OB + 512 * e))
        s.ex(0xff)
        a('ds_write_b64 v4, v[6:7] offset:%d' % L_ML)
        s.ex(-1)
        a('s_lshl_b32 %s, s3, 6' % sT0)
        a('v_mov_b32 v5, %s' % sT0)
        ML = 76; OB = 92; F = 108; G_ = 116
        for k in (1, 3, 5, 7): a('v_mov_b32 %s, %s' % (v(G_ + k), sTAG))
        a('s_mov_b32 %s, 1' % sT0); a('s_mov_b32 %s, 1' % sT1)
        s.lds_spin(['ds_read_b128 %s, v5 offset:%d' % (v(ML + 4 * k, 4), L_ML + 16 * k) for k in range(4)],
                   [ML + 2 * w + 1 for w in range(8)], 4, sleep=s.finsleep)
        for w in range(8):
            a('ds_read2st64_b32 %s, v24 offset0:%d offset1:%d' % (v(OB + 2 * w, 2), 16 * w, 16 * w + 2))
        if s.finst: s.stamp(1)
        M = G_ + 4
        a('v_max3_f32 %s, %s, %s, %s' % (v(M), v(ML), v(ML + 2), v(ML + 4)))
        a('v_max3_f32 %s, %s, %s, %s' % (v(M), v(M), v(ML + 6), v(ML + 8)))
        a('v_max3_f32 %s, %s, %s, %s' % (v(M), v(M), v(ML + 10), v(ML + 12)))
        a('v_max_f32 %s, %s, %s' % (v(M), v(M), v(ML + 14)))
        for w in range(8): a('v_sub_f32 %s, %s, %s' % (v(F + w), v(ML + 2 * w), v(M)))
        for w in range(8): a('v_mul_f32 %s, %s, %s' % (v(F + w), sC1, v(F + w)))
        for w in range(8): a('v_exp_f32 %s, %s' % (v(F + w), v(F + w)))
        Ls = G_ + 6
        a('v_mul_f32 %s, %s, %s' % (v(Ls), v(F), v(ML + 1)))
        for w in range(1, 8): a('v_fmac_f32 %s, %s, %s' % (v(Ls), v(F + w), v(ML + 2 * w + 1)))
        a('s_waitcnt lgkmcnt(0)')
        a('v_mul_f32 %s, %s, %s' % (v(G_), v(F), v(OB)))
        a('v_mul_f32 %s, %s, %s' % (v(G_ + 2), v(F), v(OB + 1)))
        for w in range(1, 8):
            a('v_fmac_f32 %s, %s, %s' % (v(G_), v(F + w), v(OB + 2 * w)))
            a('v_fmac_f32 %s, %s, %s' % (v(G_ + 2), v(F + w), v(OB + 2 * w + 1)))
        if s.finst: s.stamp(2)
        s.st_ws(G_, 'v25', 's82')
        s.ex('s[64:65]')
        s.st_ws(G_ + 4, 'v26', 's83')
        s.ex(-1)
        s.signal(CNT_PUB)
        s.stamp(6)
        a('s_cmp_ge_u32 %s, 48' % sU)
        a('s_cbranch_scc1 L_s1c')
        a('s_cbranch_execz L_w2')
        a('s_sub_u32 %s, %s, 8' % (sT0, sU))
        a('s_cmp_ge_u32 %s, 14' % sT0)
        a('s_cbranch_scc1 L_end')
        a('s_cmp_ge_u32 s3, 4')
        a('s_cbranch_scc1 L_end')
        a.label('L_w2')
        s.w2_stream()
        a.label('L_s1c')
        s.s1_combine()

    def s1_combine(s):
        a = s.a
        a.c('---------------- S1 combine (stream waves of u 48..63): wave w merges 8 dims of half a head over the 64 WGs of the kv head')
        a('s_lshl_b32 %s, %s, 4' % (sJ, sG))
        a('s_add_u32 %s, %s, %s' % (sJ, sJ, sU))
        a('s_sub_u32 %s, %s, 48' % (sJ, sJ))
        a('s_lshl_b32 %s, %s, 15' % (sC2, sJ))
        a('s_lshr_b32 %s, s3, 1' % sT0)
        a('s_lshl_b32 %s, %s, 13' % (sT0, sT0))
        a('s_add_u32 %s, %s, %s' % (sC2, sC2, sT0))
        a('s_and_b32 %s, s3, 1' % sT0)
        a('s_lshl_b32 %s, %s, 6' % (sT0, sT0))
        a('s_add_u32 %s, %s, %s' % (sC2, sC2, sT0))
        a('s_add_u32 %s, %s, 0x%x' % (sC2, sC2, OFF_O))
        a('s_add_u32 %s, %s, 4096' % (sC3, sC2))
        a('s_lshl_b32 %s, %s, 10' % (sC0, sJ))
        a('s_add_u32 %s, %s, 0x%x' % (sC0, sC0, OFF_ML))
        a('v_lshrrev_b32 v5, 2, v0')
        a('v_lshlrev_b32 v6, 2, v5')
        a('v_lshlrev_b32 v5, 7, v5')
        a('v_and_b32 v7, 3, v0')
        a('v_lshl_add_u32 v5, v7, 4, v5')
        a('v_lshlrev_b32 v7, 2, v7')
        a('s_lshl_b32 %s, s3, 4' % sT0)
        a('v_add_u32 v7, %s, v7' % sT0)
        P = 8; MLr = 24; W_ = 28
        s.wait_lds(CNT_PUB, 8)
        s.stamp(4)
        s.ppoll([(MLr, 'v2', sC0, 0)] + [(P + 4 * k, 'v5', sC2 if k < 2 else sC3, (k & 1) * 2048) for k in range(4)], s.pd)
        s.stamp(3)
        Mx, Fx, Lx, T_, FF, A0 = W_, W_ + 1, W_ + 2, W_ + 3, W_ + 4, W_ + 8
        a('v_mov_b32 %s, %s' % (v(Mx), v(MLr)))
        s.bfly('v_max_f32', [Mx], [T_], [1, 2, 4, 8, 16, 32])
        a('v_sub_f32 %s, %s, %s' % (v(Fx), v(MLr), v(Mx)))
        a('v_mul_f32 %s, %s, %s' % (v(Fx), sC1, v(Fx)))
        a('v_exp_f32 %s, %s' % (v(Fx), v(Fx)))
        for k in range(4):
            a('ds_bpermute_b32 %s, v6, %s offset:%d' % (v(FF + k), v(Fx), 64 * k))
        a('v_mul_f32 %s, %s, %s' % (v(Lx), v(MLr + 2), v(Fx)))
        s.bfly('v_add_f32', [Lx], [T_], [1, 2, 4, 8, 16, 32])
        a('v_rcp_f32 %s, %s' % (v(Mx), v(Lx)))
        a('s_waitcnt lgkmcnt(0)')
        a('v_mul_f32 %s, %s, %s' % (v(A0), v(P), v(FF)))
        a('v_mul_f32 %s, %s, %s' % (v(A0 + 1), v(P + 2), v(FF)))
        for k in range(1, 4):
            a('v_fmac_f32 %s, %s, %s' % (v(A0), v(P + 4 * k), v(FF + k)))
            a('v_fmac_f32 %s, %s, %s' % (v(A0 + 1), v(P + 4 * k + 2), v(FF + k)))
        for st in (4, 8):
            for r_ in (A0, A0 + 1):
                a('v_add_f32_dpp %s, %s, %s row_ror:%d row_mask:0xf bank_mask:0xf' % (v(r_), v(r_), v(r_), st))
        s.bfly('v_add_f32', [A0, A0 + 1], [A0 + 2, A0 + 3], [16, 32])
        s.div([A0, A0 + 1], Lx, Mx, [A0 + 2, A0 + 3])
        a('v_cvt_pk_bf16_f32 %s, %s, %s' % (v(A0), v(A0), v(A0 + 1)))
        s.ex(0xf)
        a('ds_write_b32 v7, %s offset:%d' % (v(A0), L_O))
        s.ex(-1)
        a('s_branch L_end')

    def gemvR_setup(s, xbase):
        a = s.a
        a('v_lshrrev_b32 v1, 5, v0')
        a('v_lshlrev_b32 v1, 4, v1')
        a('v_add_u32 v1, %s, v1' % xbase)
        a('v_lshrrev_b32 v4, 4, v0')
        a('v_xor_b32 v4, v4, v0')
        a('v_and_b32 v4, 1, v4')
        a('v_cmp_eq_u32 vcc, 0, v4')
        a('v_mov_b32 v4, %d' % L_ZERO)
        a('v_cndmask_b32 v1, v4, v1, vcc')
        a('v_lshrrev_b32 v4, 4, v0')
        a('v_cmp_eq_u32 %s, 1, v4' % sM0)
        a('v_cmp_eq_u32 %s, 2, v4' % sM1)
        a('v_cmp_eq_u32 s[82:83], 3, v4')
    def gemvR_publish(s, acc, voff):
        a = s.a
        G = s.R[3] + 16
        for mu in range(2):
            for k in range(2):
                d = G + 4 * mu + 2 * k
                a('v_cndmask_b32 %s, %s, %s, %s' % (v(d), v(acc[k] + mu), v(acc[2 + k] + mu), sM0))
                a('v_cndmask_b32 %s, %s, %s, %s' % (v(d), v(d), v(acc[4 + k] + mu), sM1))
                a('v_cndmask_b32 %s, %s, %s, %s' % (v(d), v(d), v(acc[6 + k] + mu), 's[82:83]'))
                a('v_mov_b32 %s, %s' % (v(d + 1), sTAG))
        s.st_ws(G, voff, sC2)
        s.st_ws(G + 4, voff, sC3)
    def w2_voff(s):
        a = s.a
        a('v_lshrrev_b32 v1, 5, v0')
        a('v_lshlrev_b32 v1, 14, v1')
        a('v_and_b32 v4, 31, v0')
        a('v_lshl_add_u32 v1, v4, 4, v1')
        a('s_lshl_b32 s7, %s, 17' % sJ)
        a('s_lshl_b32 %s, %s, 9' % (sT0, sR))
        a('s_add_u32 s7, s7, %s' % sT0)

    def w2_stream(s):
        a = s.a
        a.c('---------------- W2 (stream waves 0..3 of S3 WGs): hh = gelu(.), partial out = hh @ w2[64 rows, 256 cols per wave]')
        F = s.R[3]
        TB = [s.X] + s.R[:3]
        a('s_mul_i32 %s, %s, 14' % (sJ, sG))
        a('s_add_u32 %s, %s, %s' % (sJ, sJ, sU))
        a('s_sub_u32 %s, %s, 8' % (sJ, sJ))
        s.srd(SRD_W, P_W2, 3584 * 2048)
        a('s_cbranch_execz L_w2a')
        a('s_cmp_lg_u32 s3, 3')
        a('s_cbranch_scc1 L_w2a')
        s.w2_voff()
        for t in range(8):
            a('s_add_u32 %s, s7, 0x%x' % (sT0, 3 * 16 * 2048 + t * 2048))
            a('buffer_load_dwordx4 %s, v1, %s, %s offen %s' % (v(F + 4 * t, 4), SRD_W, sT0, s.nt))
        a.label('L_w2a')
        s.wait_lds(CNT_W, 4, sleep=1)
        a('s_lshl_b32 %s, s3, 15' % sT0)
        a('s_add_u32 %s, %s, %d' % (sT0, sT0, L_W2))
        a('v_add_u32 v5, %s, v2' % sT0)
        for b in range(3):
            for e in range(8):
                a('ds_read_b128 %s, v5 offset:%d' % (v(TB[b] + 4 * e, 4), 8192 * b + 1024 * e))
        a('s_cbranch_execz L_w2b')
        a('s_cmp_eq_u32 s3, 3')
        a('s_cbranch_scc1 L_w2c')
        a.label('L_w2b')
        for e in range(8):
            a('ds_read_b128 %s, v5 offset:%d' % (v(TB[3] + 4 * e, 4), 8192 * 3 + 1024 * e))
        a('s_cbranch_execnz L_w2d')
        a.label('L_w2c')
        s.vmwait(0)
        for e in range(8):
            for j in range(4):
                a('v_perm_b32 %s, %s, %s, %s' % (v(TB[3] + 4 * e + j), v(F + 4 * (2 * j + 1) + (e >> 1)),
                                                 v(F + 4 * (2 * j) + (e >> 1)), sSELHI if e & 1 else sSELLO))
        a.label('L_w2d')
        a('s_lshl_b32 %s, s3, 7' % sT1)
        a('s_add_u32 %s, %s, %d' % (sT1, sT1, L_H))
        s.gemvR_setup(sT1)
        a('v_and_b32 v6, 15, v0')
        a('v_lshlrev_b32 v6, 3, v6')
        a('ds_read_b64 %s, v6 offset:%d' % (v(F + 30, 2), L_B1))
        a('v_add_u32 v6, %s, v6' % sT1)
        a('v_bfe_u32 v7, v0, 2, 2')
        a('v_mul_u32_u24 v7, 14336, v7')
        a('v_and_b32 v4, 3, v0')
        a('v_mul_u32_u24 v4, 3584, v4')
        a('v_add_u32 v7, v7, v4')
        a('v_lshrrev_b32 v4, 4, v0')
        a('v_lshl_add_u32 v7, v4, 4, v7')
        a('s_mul_i32 %s, s3, %d' % (sC2, 8 * 14336))
        a('s_lshl_b32 %s, %s, 6' % (sT0, sJ))
        a('s_add_u32 %s, %s, %s' % (sC2, sC2, sT0))
        a('s_add_u32 %s, %s, 0x%x' % (sC2, sC2, OFF_HH))
        a('s_add_u32 %s, %s, %d' % (sC3, sC2, 4 * 14336))
        a('s_mov_b32 %s, %s' % (sC0, f32(0.044715)))
        a('s_mov_b32 %s, %s' % (sC1, f32(-2.0 * math.sqrt(2.0 / math.pi) * math.log2(math.e))))
        a('s_waitcnt lgkmcnt(0)')
        B1 = F + 24; D = F + 16; TMP = F; T = F + 20
        s.unpack(F + 30, B1, B1 + 1); s.unpack(F + 31, B1 + 2, B1 + 3)
        s.gemvC_gather(4, D, TMP, spin=True)
        s.stamp(1)
        s.rnd2(D, D + 1, T); s.rnd2(D + 2, D + 3, T + 1)
        for c in range(4): a('v_add_f32 %s, %s, %s' % (v(D + c), v(D + c), v(B1 + c)))
        s.rnd2(D, D + 1, T); s.rnd2(D + 2, D + 3, T + 1)
        for c in range(4): a('v_mul_f32 %s, %s, %s' % (v(T + c), v(D + c), v(D + c)))
        for c in range(4): a('v_mul_f32 %s, %s, %s' % (v(T + c), v(T + c), v(D + c)))
        for c in range(4): a('v_fma_f32 %s, %s, %s, %s' % (v(T + c), v(T + c), sC0, v(D + c)))
        for c in range(4): a('v_mul_f32 %s, %s, %s' % (v(T + c), sC1, v(T + c)))
        for c in range(4): a('v_exp_f32 %s, %s' % (v(T + c), v(T + c)))
        for c in range(4): a('v_add_f32 %s, 1.0, %s' % (v(T + c), v(T + c)))
        for c in range(4): a('v_rcp_f32 %s, %s' % (v(T + c), v(T + c)))
        for c in range(4): a('v_mul_f32 %s, %s, %s' % (v(D + c), v(D + c), v(T + c)))
        a('v_cvt_pk_bf16_f32 %s, %s, %s' % (v(T), v(D), v(D + 1)))
        a('v_cvt_pk_bf16_f32 %s, %s, %s' % (v(T + 1), v(D + 2), v(D + 3)))
        s.ex(0xffff)
        a('ds_write_b64 v6, %s' % v(T, 2))
        s.ex(-1)
        acc = s.tile_mfma(4, 'v1', 32)
        s.gemvR_publish(acc, 'v7')
        s.seg_end()
        a('s_branch L_end')

    def role(s):
        a = s.a
        a.c('---------------- role wave')
        a('s_setprio 2')
        a('s_sub_u32 %s, s3, 8' % sR)
        a('v_lshlrev_b32 v4, 2, v0')
        a('ds_write_b32 v4, v3')
        for r_ in range(4): a('v_mov_b32 v%d, -1' % (8 + r_))
        a('ds_write_b128 v2, v[8:11] offset:%d' % L_RED)
        a('ds_write_b128 v2, v[8:11] offset:%d' % (L_RED + 1024))
        a('s_waitcnt lgkmcnt(0)')
        a('s_add_u32 %s, %s, 1' % (sTAG, sTAG))
        a('s_barrier')
        a('s_mov_b32 %s, 0' % sPASS)
        for r_ in (16, 17, 18, 20): a('v_mov_b32 v%d, 0' % r_)
        a('s_cmp_lt_u32 %s, 8' % sU)
        a('s_cbranch_scc1 L_mod')
        a('s_cmp_lt_u32 %s, 24' % sU)
        a('s_cbranch_scc1 L_p1a')
        a('s_cmp_lt_u32 %s, 28' % sU)
        a('s_cbranch_scc1 L_p1b')
        a('s_cmp_lt_u32 %s, 32' % sU)
        a('s_cbranch_scc1 L_mod')
        a('s_cmp_lt_u32 %s, 48' % sU)
        a('s_cbranch_scc1 L_p2')
        a.label('L_p1a'); s.p1a_role()
        a.label('L_p1b'); s.p1b_role()
        a.label('L_mod'); s.mod_role()
        a.label('L_p2'); s.p2_role()
        a.label('L_s1'); s.s1_role()
        a.label('L_s2'); s.s2_role()
        a.label('L_s3'); s.s3_role()
        a.label('L_warm_stream')
        s.warm_stream(20)
        a('s_branch L_end')

    def warm_stream(s, rid):
        if not s.dry: return
        s.dry_call('L_st_fin', rid)

    def gemvC_setup(s, ptr, pitch, nbytes, colbyte_sgpr, pace=0):
        a = s.a
        s.srd(SRD_W, ptr, nbytes)
        a('v_lshrrev_b32 v1, 3, v0')
        a('v_mul_u32_u24 v1, %d, v1' % (8 * pitch))
        a('v_and_b32 v4, 7, v0')
        a('v_lshl_add_u32 v1, v4, 4, v1')
        a('s_mul_i32 s7, %s, %d' % (sR, 256 * pitch))
        a('s_add_u32 s7, s7, %s' % colbyte_sgpr)
        s.tile_load(4, 'v1', 's7', 64 * pitch, pitch, pace)
    def afragC_addr(s):
        a = s.a
        a('v_lshrrev_b32 v1, 4, v0')
        a('v_lshlrev_b32 v1, 5, v1')
        a('v_and_b32 v4, 1, v0')
        a('v_lshl_add_u32 v1, v4, 4, v1')
        a('s_lshl_b32 %s, %s, 9' % (sT0, sR))
        a('s_add_u32 %s, %s, %d' % (sT0, sT0, L_X))
        a('v_add_u32 v1, %s, v1' % sT0)
    def xw_addr(s, dst):
        a = s.a
        a('s_lshl_b32 %s, %s, 9' % (sT0, sR))
        a('s_add_u32 %s, %s, %d' % (sT0, sT0, L_X))
        a('v_lshlrev_b32 %s, 3, v0' % dst)
        a('v_add_u32 %s, %s, %s' % (dst, sT0, dst))
    def q_wait(s, F, sleep=None):
        a = s.a
        a('s_lshl_b32 %s, s2, 12' % sC2)
        a('s_lshl_b32 %s, %s, 10' % (sT0, sR))
        a('s_add_u32 %s, %s, %s' % (sC2, sC2, sT0))
        a('s_add_u32 %s, %s, 0x%x' % (sC2, sC2, OFF_Q))
        s.poll([(F, 'v2', sC2, 0)], sleep=s.qsleep if sleep is None else sleep)
        a('v_mov_b32 %s, %s' % (v(F + 1), v(F + 2)))
        a('s_lshl_b32 %s, %s, 9' % (sT0, sR))
        a('v_lshlrev_b32 v4, 3, v0')
        a('v_add_u32 v4, %s, v4' % sT0)
        a('ds_write_b64 v4, %s offset:%d' % (v(F, 2), L_Q))
        s.signal(CNT_Q)

    def mod_role(s):
        a = s.a
        a.c('---------------- M2: mod slice = silu(c) @ w_mod[:, 64 cols]; S2 WGs (u 0..7): block 32+8g+u ; M WGs (u 24..31): block 64+8g+u-24')
        a('s_lshl_b32 %s, %s, 3' % (sT0, sG))
        a('s_add_u32 %s, %s, %s' % (sT0, sT0, sU))
        a('s_add_u32 %s, %s, 32' % (sT1, sT0))
        a('s_add_u32 %s, %s, 40' % (sT0, sT0))
        a('s_cmp_ge_u32 %s, 24' % sU)
        a('s_cselect_b32 %s, %s, %s' % (sJ, sT0, sT1))
        s.wait_lds(CNT_K, s.kqn, sleep=2)
        a('s_lshl_b32 %s, %s, 9' % (sT0, sR))
        a('v_lshlrev_b32 v4, 3, v0')
        a('v_add_u32 v4, %s, v4' % sT0)
        a('global_load_dwordx2 v[6:7], v4, %s' % sp(P_C))
        a('s_lshl_b32 %s, %s, 7' % (sT1, sJ))
        s.gemvC_setup(P_WM, 12288, 1024 * 12288, sT1, s.Wt)
        a('s_waitcnt vmcnt(32)')
        s.silu()
        s.afragC_addr()
        s.tile_transpose(4)
        s.stamp(1)
        acc = s.tile_mfma(4, 'v1', 128)
        s.gemvC_partial(acc, sR)
        s.signal(CNT_R1)
        s.wait_lds(CNT_R1, 4)
        D = 8; TMP = 16; G = 12
        s.gemvC_gather(4, D, TMP)
        s.mk_granule(G, D)
        a('v_and_b32 v5, 15, v0')
        a('v_lshlrev_b32 v5, 4, v5')
        a('v_lshrrev_b32 v6, 4, v0')
        a('s_lshl_b32 %s, %s, 4' % (sT0, sR))
        a('v_add_u32 v6, %s, v6' % sT0)
        a('s_cmp_lt_u32 %s, 48' % sJ)
        a('s_cbranch_scc1 L_pub_g')
        a('s_cmp_ge_u32 %s, 80' % sJ)
        a('s_cbranch_scc1 L_pub_g')
        a('s_sub_u32 %s, %s, 48' % (sT0, sJ))
        a('s_lshl_b32 %s, %s, 8' % (sT0, sT0))
        a('s_add_u32 %s, %s, 0x%x' % (sT0, sT0, OFF_SBCB))
        for k in range(4):
            a('v_add_u32 v7, %d, v6' % (4 * k))
            a('v_min_u32 v7, 55, v7')
            a('v_lshl_add_u32 v7, v7, 13, v5')
            s.st_ws(G, 'v7', sT0)
        a('s_branch L_pub_done')
        a.label('L_pub_g')
        a('s_cmp_lg_u32 %s, 0' % sR)
        a('s_cbranch_scc1 L_pub_done')
        a('s_and_b32 %s, %s, 15' % (sT0, sJ))
        a('s_lshl_b32 %s, %s, 9' % (sT0, sT0))
        a('s_cmp_ge_u32 %s, 80' % sJ)
        a('s_cselect_b32 %s, 128, 0' % sT1)
        a('s_add_u32 %s, %s, %s' % (sT0, sT0, sT1))
        a('s_add_u32 %s, %s, 0x%x' % (sT0, sT0, OFF_G))
        a('v_bfe_u32 v7, v0, 3, 1')
        a('v_lshlrev_b32 v7, 8, v7')
        a('v_and_b32 v6, 7, v0')
        a('v_lshl_add_u32 v7, v6, 4, v7')
        s.ex(0xffff)
        s.st_ws(G, 'v7', sT0)
        s.ex(-1)
        a.label('L_pub_done')
        s.stamp(2)
        a('s_cmp_lt_u32 %s, 8' % sU)
        a('s_cbranch_scc1 L_s2')
        a('s_branch L_warm_stream')

    def silu(s):
        a = s.a; X = s.X
        s.unpack(6, X, X + 1); s.unpack(7, X + 2, X + 3)
        a('s_mov_b32 %s, 0x%x' % (sC1, LOG2E))
        for c in range(4): a('v_mul_f32 %s, %s, -%s' % (v(X + 4 + c), sC1, v(X + c)))
        for c in range(4): a('v_min_f32 %s, %s, %s' % (v(X + 4 + c), f32(120.0), v(X + 4 + c)))
        for c in range(4): a('v_exp_f32 %s, %s' % (v(X + 4 + c), v(X + 4 + c)))
        for c in range(4): a('v_add_f32 %s, 1.0, %s' % (v(X + 4 + c), v(X + 4 + c)))
        for c in range(4): a('v_rcp_f32 %s, %s' % (v(X + 8 + c), v(X + 4 + c)))
        for c in range(4): s.div([X + c], X + 4 + c, X + 8 + c, [X + 12, X + 13])
        a('v_cvt_pk_bf16_f32 v6, %s, %s' % (v(X), v(X + 1)))
        a('v_cvt_pk_bf16_f32 v7, %s, %s' % (v(X + 2), v(X + 3)))
        s.xw_addr('v4')
        a('ds_write_b64 v4, v[6:7]')

    def p1a_role(s):
        a = s.a
        a.c('---------------- P1a (u 8..23, 48..63): partial sa/ca block cb over rows 256g..256g+255 (one 64-row block per wave)')
        a('s_sub_u32 %s, %s, 8' % (sT0, sU))
        a('s_sub_u32 %s, %s, 32' % (sT1, sU))
        a('s_cmp_ge_u32 %s, 48' % sU)
        a('s_cselect_b32 %s, %s, %s' % (sJ, sT1, sT0))
        a('s_lshl_b32 %s, %s, 9' % (sT0, sG))
        a('v_lshlrev_b32 v4, 3, v0')
        a('v_add_u32 v4, %s, v4' % sT0)
        a('global_load_dwordx2 v[6:7], v4, %s' % sp(P_C))
        s.srd(SRD_W, P_WM, 1024 * 12288)
        a('v_lshrrev_b32 v1, 3, v0')
        a('v_mul_u32_u24 v1, %d, v1' % (8 * 12288))
        a('v_and_b32 v4, 7, v0')
        a('v_lshl_add_u32 v1, v4, 4, v1')
        a('s_lshl_b32 %s, %s, 2' % (sT0, sG))
        a('s_add_u32 %s, %s, %s' % (sT0, sT0, sR))
        a('s_mul_i32 s7, %s, %d' % (sT0, 64 * 12288))
        a('s_lshl_b32 %s, %s, 7' % (sT1, sJ))
        a('s_add_u32 s7, s7, %s' % sT1)
        s.tile_load(1, 'v1', 's7', 0, 12288)
        a('s_waitcnt vmcnt(%d)' % (0 if 12288 in s.skip else 8))
        s.silu()
        s.afragC_addr()
        a('s_lshl_b32 %s, %s, 7' % (sT0, sR))
        a('v_add_u32 v1, %s, v1' % sT0)
        a('s_and_b32 %s, %s, 15' % (sC2, sJ))
        a('s_lshl_b32 %s, %s, 12' % (sC2, sC2))
        a('s_lshr_b32 %s, %s, 4' % (sT0, sJ))
        a('s_lshl_b32 %s, %s, 11' % (sT0, sT0))
        a('s_add_u32 %s, %s, %s' % (sC2, sC2, sT0))
        a('s_lshl_b32 %s, %s, 9' % (sT0, sG))
        a('s_add_u32 %s, %s, %s' % (sC2, sC2, sT0))
        a('s_add_u32 %s, %s, 0x%x' % (sC2, sC2, OFF_P))
        a('v_lshlrev_b32 v7, 5, v0')
        a('s_add_u32 %s, %s, 8' % (sC3, sR))
        a('s_mov_b32 %s, 2048' % sC0)
        s.tile_transpose(1, landed=lambda: s.signal(CNT_T))
        acc = s.tile_mfma(1, 'v1', 128)
        s.gemvC_partial(acc, sC3)
        s.signal(CNT_R1)
        a('s_cmp_lg_u32 %s, 0' % sR)
        a('s_cbranch_scc1 L_p1a_done')
        s.wait_lds(CNT_R1, 4)
        D = 8; TMP = 16; G = 32
        s.gemvC_gather(4, D, TMP, slot0=sC0)
        for k in range(4):
            a('v_mov_b32 %s, %s' % (v(G + 2 * k), v(D + k)))
            a('v_mov_b32 %s, %s' % (v(G + 2 * k + 1), sTAG))
        s.ex(0xffff)
        s.st_ws(G, 'v7', sC2)
        s.st_ws(G + 4, 'v7', sC2, 16)
        s.ex(-1)
        a.label('L_p1a_done')
        s.stamp(3)
        a('s_cmp_ge_u32 %s, 48' % sU)
        a('s_cbranch_scc1 L_s1')
        a('s_cmp_lt_u32 %s, 22' % sU)
        a('s_cbranch_scc1 L_s3')
        a('s_branch L_warm_stream')

    def p1b_role(s):
        a = s.a
        a.c('---------------- P1b (u 24..27): sum partial sa/ca of 64 columns, h = LN(x)*(1+ca)+sa, send to the 64 P2 WGs')
        X = s.X; F = s.R[3]
        a('s_lshl_b32 %s, %s, 2' % (sJ, sG))
        a('s_add_u32 %s, %s, %s' % (sJ, sJ, sU))
        a('s_sub_u32 %s, %s, 24' % (sJ, sJ))
        a('v_lshlrev_b32 v4, 5, v0')
        a('global_load_dwordx4 %s, v4, %s' % (v(X, 4), sp(P_X)))
        a('global_load_dwordx4 %s, v4, %s offset:16' % (v(X + 4, 4), sp(P_X)))
        a('s_lshl_b32 %s, %s, 7' % (sT0, sJ))
        a('v_and_b32 v4, 31, v0')
        a('v_lshlrev_b32 v4, 2, v4')
        a('v_add_u32 v4, %s, v4' % sT0)
        a('global_load_dword v6, v4, %s' % sp(P_X))
        a('s_lshl_b32 %s, %s, 11' % (sT0, sG))
        a('s_add_u32 %s, %s, 0x%x' % (sT0, sT0, OFF_CNT))
        a('v_lshlrev_b32 v4, 8, v0')
        s.ex(0xff)
        a('buffer_store_dword v3, v4, %s, %s offen sc0 sc1' % (SRD_WS, sT0))
        s.ex(-1)
        a('s_waitcnt vmcnt(0)')
        U = X + 8; S1 = X + 24; S2 = X + 25
        for k in range(8): s.unpack(X + k, U + 2 * k, U + 2 * k + 1)
        a('v_add_f32 %s, %s, %s' % (v(S1), v(U), v(U + 1)))
        a('v_mul_f32 %s, %s, %s' % (v(S2), v(U), v(U)))
        a('v_fmac_f32 %s, %s, %s' % (v(S2), v(U + 1), v(U + 1)))
        for k in range(2, 16):
            a('v_add_f32 %s, %s, %s' % (v(S1), v(S1), v(U + k)))
            a('v_fmac_f32 %s, %s, %s' % (v(S2), v(U + k), v(U + k)))
        s.bfly('v_add_f32', [S1, S2], [X + 26, X + 27], [1, 2, 4, 8, 16, 32])
        MEAN, DD, RR = X + 28, X + 29, X + 30
        s.ln_stats(S1, S2, MEAN, DD, RR, X + 31)
        s.unpack(6, X, X + 1)
        s.ln_apply([X, X + 1], MEAN, DD, RR, [X + 4, X + 5])
        a('s_lshl_b32 %s, %s, 12' % (sC2, sJ))
        a('s_add_u32 %s, %s, 0x%x' % (sC2, sC2, OFF_P))
        a('v_and_b32 v5, 15, v0')
        a('v_lshlrev_b32 v6, 3, v5')
        a('v_lshlrev_b32 v5, 4, v5')
        a('v_lshrrev_b32 v7, 4, v0')
        a('v_lshl_add_u32 v7, v7, 12, v5')
        a('s_lshl_b32 %s, %s, 16' % (sC3, sR))
        a('s_lshl_b32 %s, %s, 8' % (sT0, sJ))
        a('s_add_u32 %s, %s, %s' % (sC3, sC3, sT0))
        a('s_add_u32 %s, %s, 0x%x' % (sC3, sC3, OFF_H))
        G = F + 16
        a('v_mov_b32 %s, %s' % (v(G + 1), sTAG))
        a('v_mov_b32 %s, %s' % (v(G + 3), sTAG))
        s.poll([(F + 4 * k, 'v2', sC2, 1024 * k) for k in range(4)], sleep=s.psleep)
        s.stamp(3)
        a('v_add_f32 %s, %s, %s' % (v(F), v(F), v(F + 4)))
        a('v_add_f32 %s, %s, %s' % (v(F + 1), v(F + 2), v(F + 6)))
        a('v_add_f32 %s, %s, %s' % (v(F + 2), v(F + 8), v(F + 12)))
        a('v_add_f32 %s, %s, %s' % (v(F + 3), v(F + 10), v(F + 14)))
        s.bfly('v_add_f32', [F, F + 1, F + 2, F + 3], [F + 4, F + 5, F + 6, F + 7], [32])
        s.rnd2(F, F + 1, F + 4); s.rnd2(F + 2, F + 3, F + 5)
        a('v_add_f32 %s, 1.0, %s' % (v(F + 2), v(F + 2)))
        a('v_add_f32 %s, 1.0, %s' % (v(F + 3), v(F + 3)))
        s.rnd2(F + 2, F + 3, F + 5)
        a('v_mul_f32 %s, %s, %s' % (v(F + 2), v(F + 2), v(X)))
        a('v_mul_f32 %s, %s, %s' % (v(F + 3), v(F + 3), v(X + 1)))
        s.rnd2(F + 2, F + 3, F + 5)
        a('v_add_f32 %s, %s, %s' % (v(F), v(F), v(F + 2)))
        a('v_add_f32 %s, %s, %s' % (v(F + 1), v(F + 1), v(F + 3)))
        a('v_cvt_pk_bf16_f32 %s, %s, %s' % (v(F), v(F), v(F + 1)))
        a('ds_bpermute_b32 %s, v6, %s' % (v(G), v(F)))
        a('ds_bpermute_b32 %s, v6, %s offset:4' % (v(G + 2), v(F)))
        a('s_waitcnt lgkmcnt(0)')
        for k in range(4):
            a('s_add_u32 %s, %s, 0x%x' % (sT1, sC3, 4 * k * 4096))
            s.st_ws(G, 'v7', sT1)
        s.stamp(4)
        a('s_branch L_mod')

    def p2_role(s):
        a = s.a
        a.c('---------------- P2 (wg 0..63): q slice = h @ wq[:, 64 cols]')
        F = s.R[3]; X = s.X
        a('s_lshl_b32 %s, %s, 4' % (sJ, sG))
        a('s_add_u32 %s, %s, %s' % (sJ, sJ, sU))
        a('s_sub_u32 %s, %s, 32' % (sJ, sJ))
        a('s_lshl_b32 %s, %s, 7' % (sT1, sJ))
        s.gemvC_setup(P_WQ, 8192, 1024 * 8192, sT1)
        s.afragC_addr()
        s.tile_transpose(4, landed=lambda: s.signal(CNT_T))
        s.stamp(1)
        a('s_lshl_b32 %s, %s, 12' % (sC2, sJ))
        a('s_lshl_b32 %s, %s, 10' % (sT0, sR))
        a('s_add_u32 %s, %s, %s' % (sC2, sC2, sT0))
        a('s_add_u32 %s, %s, 0x%x' % (sC2, sC2, OFF_H))
        s.xw_addr('v5')
        s.poll([(F, 'v2', sC2, 0)], sleep=s.psleep)
        s.stamp(4)
        a('v_mov_b32 %s, %s' % (v(F + 1), v(F + 2)))
        a('ds_write_b64 v5, %s' % v(F, 2))
        acc = s.tile_mfma(4, 'v1', 128)
        s.gemvC_partial(acc, sR)
        s.signal(CNT_R1)
        s.wait_lds(CNT_R1, 4)
        D = 8; TMP = 16; G = 12
        s.gemvC_gather(4, D, TMP)
        s.mk_granule(G, D)
        a('v_and_b32 v5, 15, v0')
        a('v_lshlrev_b32 v5, 4, v5')
        a('v_lshrrev_b32 v6, 4, v0')
        a('v_lshl_add_u32 v7, v6, 12, v5')
        a('s_lshr_b32 %s, %s, 4' % (sT0, sJ))
        a('s_lshl_b32 %s, %s, 18' % (sT0, sT0))
        a('s_lshl_b32 %s, %s, 16' % (sT1, sR))
        a('s_add_u32 %s, %s, %s' % (sT0, sT0, sT1))
        a('s_and_b32 %s, %s, 15' % (sT1, sJ))
        a('s_lshl_b32 %s, %s, 8' % (sT1, sT1))
        a('s_add_u32 %s, %s, %s' % (sT0, sT0, sT1))
        a('s_add_u32 %s, %s, 0x%x' % (sT0, sT0, OFF_Q))
        for k in range(4):
            a('s_add_u32 %s, %s, 0x%x' % (sT1, sT0, 4 * k * 4096))
            s.st_ws(G, 'v7', sT1)
        s.seg_end()
        s.stamp(2)
        a('s_branch L_warm_stream')

    def s1_role(s):
        a = s.a
        a.c('---------------- S1 (wg 64..127): combine half a head over 64 WGs, partial attn = o_slice @ wo[64 rows, :]')
        F = s.R[3]
        a('s_lshl_b32 %s, %s, 4' % (sJ, sG))
        a('s_add_u32 %s, %s, %s' % (sJ, sJ, sU))
        a('s_sub_u32 %s, %s, 48' % (sJ, sJ))
        s.wait_lds(CNT_K, s.kqn, sleep=2)
        s.srd(SRD_W, P_WO, 4096 * 2048)
        s.w2_voff()
        s.tile_load(4, 'v1', 's7', 16 * 2048, 2048, s.Wt)
        s.tile_transpose(4)
        s.stamp(1)
        s.gemvR_setup('%d' % L_O)
        a('v_bfe_u32 v5, v0, 2, 2')
        a('v_lshlrev_b32 v5, 14, v5')
        a('v_and_b32 v6, 3, v0')
        a('v_lshl_add_u32 v5, v6, 12, v5')
        a('v_lshrrev_b32 v6, 4, v0')
        a('v_lshl_add_u32 v5, v6, 4, v5')
        a('s_lshl_b32 %s, %s, 17' % (sC2, sR))
        a('s_lshl_b32 %s, %s, 6' % (sT0, sJ))
        a('s_add_u32 %s, %s, %s' % (sC2, sC2, sT0))
        a('s_add_u32 %s, %s, 0x%x' % (sC2, sC2, OFF_A))
        a('s_add_u32 %s, %s, 0x10000' % (sC3, sC2))
        s.wait_lds(CNT_PUB, 8, sleep=1)
        s.stamp(4)
        acc = s.tile_mfma(4, 'v1', 32, spin=True)
        s.gemvR_publish(acc, 'v5')
        s.seg_end()
        s.stamp(6)
        a('s_branch L_end')

    def s2_role(s):
        a = s.a
        a.c("---------------- S2 (u 0..7): x1 slice (32 cols, 8 per wave); later out slice = x1 + gb*(sum of w2 partials + b2)")
        a('s_lshl_b32 %s, %s, 3' % (sJ, sG))
        a('s_add_u32 %s, %s, %s' % (sJ, sJ, sU))
        XA, GA, GB, B2, A1, A2, A3, XO, OO, P = 8, 10, 12, 14, 16, 17, 18, 19, 20, 24
        a('v_and_b32 %s, 3, v0' % v(XO))
        a('v_lshlrev_b32 %s, 2, %s' % (v(XO), v(XO)))
        a('s_lshl_b32 %s, %s, 4' % (sT0, sR))
        a('v_add_u32 %s, %s, %s' % (v(XO), sT0, v(XO)))
        a('s_lshl_b32 %s, %s, 6' % (sT1, sJ))
        a('v_add_u32 %s, %s, %s' % (v(OO), sT1, v(XO)))
        a('global_load_dword v6, %s, %s' % (v(OO), sp(P_X)))
        a('global_load_dword v7, %s, %s' % (v(OO), sp(P_B2)))
        a('v_and_b32 v5, 15, v0')
        a('v_lshlrev_b32 v4, 4, v5')
        a('s_lshl_b32 %s, %s, 8' % (sC2, sJ))
        a('s_add_u32 %s, %s, 0x%x' % (sC2, sC2, OFF_G))
        s.poll([(P, 'v4', sC2, 0)], sleep=s.nsleep)
        a('v_mov_b32 %s, %s' % (v(P + 1), v(P + 2)))
        a('v_lshlrev_b32 v5, 3, v5')
        a('ds_write_b64 v5, %s offset:%d' % (v(P, 2), L_G))
        a('ds_read_b32 %s, %s offset:%d' % (v(P + 4), v(XO), L_G))
        a('ds_read_b32 %s, %s offset:%d' % (v(P + 5), v(XO), L_G + 64))
        a('s_waitcnt lgkmcnt(0)')
        s.unpack(6, XA, XA + 1)
        s.unpack(7, B2, B2 + 1)
        s.unpack(P + 4, GA, GA + 1)
        s.unpack(P + 5, GB, GB + 1)
        a('v_lshrrev_b32 v5, 1, v0')
        a('v_and_b32 v4, 1, v0')
        a('v_lshlrev_b32 v4, 4, v4')
        a('v_add_u32 %s, 32, v5' % v(A2))
        a('v_min_u32 %s, 55, %s' % (v(A2), v(A2)))
        a('v_lshl_add_u32 %s, v5, 12, v4' % v(A1))
        a('v_lshl_add_u32 %s, %s, 12, v4' % (v(A2), v(A2)))
        a('v_add_u32 %s, 192, v0' % v(A3))
        a('v_min_u32 %s, 223, %s' % (v(A3), v(A3)))
        a('v_lshlrev_b32 %s, 4, %s' % (v(A3), v(A3)))
        s.stamp(1)
        s.warm_stream(40)
        if s.dry:
            s.dry_call('L_s2_seg', 4)
            a('s_lshl_b32 %s, %s, 3' % (sJ, sG))
            a('s_add_u32 %s, %s, %s' % (sJ, sJ, sU))
        a.label('L_s2_seg')
        a('s_lshl_b32 %s, %s, 14' % (sC2, sJ))
        a('s_lshl_b32 %s, %s, 12' % (sT0, sR))
        a('s_add_u32 %s, %s, %s' % (sC2, sC2, sT0))
        a('s_add_u32 %s, %s, 0x%x' % (sC2, sC2, OFF_A))
        a('s_lshl_b32 %s, %s, 7' % (sC3, sJ))
        a('s_lshl_b32 %s, %s, 5' % (sT0, sR))
        a('s_add_u32 %s, %s, %s' % (sC3, sC3, sT0))
        a('s_add_u32 %s, %s, 0x%x' % (sC3, sC3, OFF_X1))
        a('s_mul_i32 %s, %s, 14336' % (sC0, sJ))
        a('s_mul_i32 %s, %s, 3584' % (sT0, sR))
        a('s_add_u32 %s, %s, %s' % (sC0, sC0, sT0))
        a('s_add_u32 %s, %s, 0x%x' % (sC0, sC0, OFF_HH))
        s.wait_lds(CNT_PUB, 8, sleep=1)
        s.stamp(4)
        Q = P + 20
        def reduce():
            a('v_add_f32 %s, %s, %s' % (v(Q), v(P), v(P + 4)))
            a('v_add_f32 %s, %s, %s' % (v(Q + 1), v(P + 2), v(P + 6)))
            a('v_add_f32 %s, %s, %s' % (v(Q), v(Q), v(P + 8)))
            a('v_add_f32 %s, %s, %s' % (v(Q + 1), v(Q + 1), v(P + 10)))
        def reduce2():
            for st in (4, 8):
                for r in (Q, Q + 1):
                    a('v_add_f32_dpp %s, %s, %s row_ror:%d row_mask:0xf bank_mask:0xf' % (v(r), v(r), v(r), st))
            s.bfly('v_add_f32', [Q, Q + 1], [Q + 2, Q + 3], [16, 32])
            s.rnd2(Q, Q + 1, Q + 2)
        G = P + 16
        a('v_mov_b32 %s, %s' % (v(G + 1), sTAG))
        a('v_mov_b32 %s, %s' % (v(G + 3), sTAG))
        if s.s2sleep: a('s_sleep %d' % s.s2sleep)
        s.ppoll([(P + 4 * k, 'v2', sC2, 1024 * k) for k in range(4)], s.pd)
        s.stamp(5)
        reduce()
        a('v_add_f32 %s, %s, %s' % (v(Q), v(Q), v(P + 12)))
        a('v_add_f32 %s, %s, %s' % (v(Q + 1), v(Q + 1), v(P + 14)))
        reduce2()
        a('v_mul_f32 %s, %s, %s' % (v(Q), v(Q), v(GA)))
        a('v_mul_f32 %s, %s, %s' % (v(Q + 1), v(Q + 1), v(GA + 1)))
        s.rnd2(Q, Q + 1, Q + 2)
        a('v_add_f32 %s, %s, %s' % (v(Q), v(Q), v(XA)))
        a('v_add_f32 %s, %s, %s' % (v(Q + 1), v(Q + 1), v(XA + 1)))
        a('v_cvt_pk_bf16_f32 %s, %s, %s' % (v(Q + 2), v(Q), v(Q + 1)))
        a('v_mov_b32_dpp %s, %s quad_perm:[0,2,0,2] row_mask:0xf bank_mask:0xf' % (v(G), v(Q + 2)))
        a('v_mov_b32_dpp %s, %s quad_perm:[1,3,1,3] row_mask:0xf bank_mask:0xf' % (v(G + 2), v(Q + 2)))
        s.st_ws(G, v(A1), sC3)
        s.st_ws(G, v(A2), sC3)
        s.unpack(Q + 2, XA, XA + 1)
        s.stamp(6)
        a('s_waitcnt vmcnt(0)')
        a('s_sleep %d' % s.fsleep)
        s.ppoll([(P + 4 * k, 'v2', sC0, 1024 * k) for k in range(3)] + [(P + 12, v(A3), sC0, 0)], s.pd)
        s.stamp(2)
        reduce()
        s.ex('lo32')
        a('v_add_f32 %s, %s, %s' % (v(Q), v(Q), v(P + 12)))
        a('v_add_f32 %s, %s, %s' % (v(Q + 1), v(Q + 1), v(P + 14)))
        s.ex(-1)
        reduce2()
        a('v_add_f32 %s, %s, %s' % (v(Q), v(Q), v(B2)))
        a('v_add_f32 %s, %s, %s' % (v(Q + 1), v(Q + 1), v(B2 + 1)))
        s.rnd2(Q, Q + 1, Q + 2)
        a('v_mul_f32 %s, %s, %s' % (v(Q), v(Q), v(GB)))
        a('v_mul_f32 %s, %s, %s' % (v(Q + 1), v(Q + 1), v(GB + 1)))
        s.rnd2(Q, Q + 1, Q + 2)
        a('v_add_f32 %s, %s, %s' % (v(Q), v(Q), v(XA)))
        a('v_add_f32 %s, %s, %s' % (v(Q + 1), v(Q + 1), v(XA + 1)))
        a('v_cvt_pk_bf16_f32 %s, %s, %s' % (v(Q + 2), v(Q), v(Q + 1)))
        s.ex(0xf)
        a('buffer_store_dword %s, %s, %s, 0 offen' % (v(Q + 2), v(OO), SRD_OUT))
        s.ex(-1)
        a('s_cmp_lg_u32 s2, 0')
        a('s_cbranch_scc1 L_end')
        a('s_cmp_lg_u32 %s, 0' % sR)
        a('s_cbranch_scc1 L_end')
        a('v_mov_b32 v4, %s' % sTAG)
        s.ex(1)
        a('buffer_store_dword v4, v3, %s, 0 offen sc1' % SRD_WS)
        s.ex(-1)
        a('s_branch L_end')

    def s3_role(s):
        a = s.a
        a.c('---------------- S3 (u 8..21): w2 rows -> LDS; x1 -> LN -> modulate -> LN -> y ; partial y @ w1[:, 64 cols]')
        F = s.R[3]
        TB = [s.X] + s.R[:3]
        a('s_mul_i32 %s, %s, 14' % (sJ, sG))
        a('s_add_u32 %s, %s, %s' % (sJ, sJ, sU))
        a('s_sub_u32 %s, %s, 8' % (sJ, sJ))
        a('s_lshl_b32 %s, %s, 7' % (sT1, sJ))
        a('v_and_b32 v5, 15, v0')
        a('v_lshlrev_b32 v5, 3, v5')
        a('v_add_u32 v4, %s, v5' % sT1)
        a('global_load_dwordx2 v[6:7], v4, %s' % sp(P_B1))
        if s.s3wait: s.wait_lds(CNT_K, s.kqn, sleep=2)
        s.srd(SRD_W, P_W2, 3584 * 2048)
        s.w2_voff()
        s.tile_load(4, 'v1', 's7', 16 * 2048, 2048, s.Wt)
        s.tile_transpose(4)
        a('s_waitcnt vmcnt(0)')
        a('ds_write_b64 v5, v[6:7] offset:%d' % L_B1)
        a('s_lshl_b32 %s, %s, 15' % (sT0, sR))
        a('s_add_u32 %s, %s, %d' % (sT0, sT0, L_W2))
        a('v_add_u32 v5, %s, v2' % sT0)
        for b in range(4):
            if b == 3:
                a('s_cmp_eq_u32 %s, 3' % sR)
                a('s_cbranch_scc1 L_s3_w')
            for e in range(8):
                a('ds_write_b128 v5, %s offset:%d' % (v(TB[b] + 4 * e, 4), 8192 * b + 1024 * e))
        a.label('L_s3_w')
        s.signal(CNT_W)
        a('s_lshl_b32 %s, %s, 7' % (sT1, sJ))
        s.gemvC_setup(P_W1, 7168, 1024 * 7168, sT1, s.Wt)
        s.afragC_addr()
        s.tile_transpose(4)
        s.stamp(1)
        a('s_lshl_b32 %s, %s, 13' % (sC2, sJ))
        a('s_lshl_b32 %s, %s, 10' % (sT0, sR))
        a('s_add_u32 %s, %s, %s' % (sC2, sC2, sT0))
        a('s_add_u32 %s, %s, 0x%x' % (sC2, sC2, OFF_SBCB))
        a('s_add_u32 %s, %s, 4096' % (sC3, sC2))
        s.poll([(F, 'v2', sC2, 0), (F + 4, 'v2', sC3, 0)], sleep=s.nsleep)
        SB, CB, XX, T = F + 8, F + 12, F + 4, F + 16
        s.unpack(F, SB, SB + 1); s.unpack(F + 2, SB + 2, SB + 3)
        s.unpack(F + 4, CB, CB + 1); s.unpack(F + 6, CB + 2, CB + 3)
        for c in range(4): a('v_add_f32 %s, 1.0, %s' % (v(CB + c), v(CB + c)))
        s.rnd2(CB, CB + 1, T); s.rnd2(CB + 2, CB + 3, T)
        s.xw_addr('v6')
        a('s_lshl_b32 %s, %s, 3' % (sT0, sR))
        a('v_mov_b32 v7, %s' % sT0)
        s.stamp(2)
        s.warm_stream(50)
        if s.dry:
            s.dry_call('L_s3_seg', 5)
            a('s_mul_i32 %s, %s, 14' % (sJ, sG))
            a('s_add_u32 %s, %s, %s' % (sJ, sJ, sU))
            a('s_sub_u32 %s, %s, 8' % (sJ, sJ))
        a.label('L_s3_seg')
        a('s_lshl_b32 %s, %s, 12' % (sC2, sJ))
        a('s_lshl_b32 %s, %s, 10' % (sT0, sR))
        a('s_add_u32 %s, %s, %s' % (sC2, sC2, sT0))
        a('s_add_u32 %s, %s, 0x%x' % (sC2, sC2, OFF_X1))
        s.wait_lds(CNT_PUB, 8, sleep=1)
        s.stamp(4)
        if s.s3sleep: a('s_sleep %d' % s.s3sleep)
        s.ppoll([(F, 'v2', sC2, 0)], s.pd)
        s.stamp(5)
        s.unpack(F, XX, XX + 1); s.unpack(F + 2, XX + 2, XX + 3)
        S1, S2, MEAN, DD, RR, RD = F + 18, F + 19, F + 20, F + 21, F + 22, F + 24
        xs = [XX, XX + 1, XX + 2, XX + 3]
        for rnd, cnt in ((0, CNT_R2), (1, CNT_R3)):
            a('v_add_f32 %s, %s, %s' % (v(S1), v(XX), v(XX + 1)))
            a('v_mul_f32 %s, %s, %s' % (v(S2), v(XX), v(XX)))
            a('v_fmac_f32 %s, %s, %s' % (v(S2), v(XX + 1), v(XX + 1)))
            for k in (2, 3):
                a('v_add_f32 %s, %s, %s' % (v(S1), v(S1), v(XX + k)))
                a('v_fmac_f32 %s, %s, %s' % (v(S2), v(XX + k), v(XX + k)))
            s.bfly('v_add_f32', [S1, S2], [T, T + 1], [1, 2, 4, 8, 16, 32])
            s.ex(1)
            a('ds_write_b64 v7, %s offset:%d' % (v(S1, 2), L_ST + 32 * rnd))
            s.ex(-1)
            s.lds_spin(['ds_read_b128 %s, v3 offset:%d' % (v(RD, 4), L_ST + 32 * rnd),
                        'ds_read_b128 %s, v3 offset:%d' % (v(RD + 4, 4), L_ST + 32 * rnd + 16)], [RD + 1, RD + 3, RD + 5, RD + 7], 4)
            a('v_add_f32 %s, %s, %s' % (v(S1), v(RD), v(RD + 2)))
            a('v_add_f32 %s, %s, %s' % (v(S2), v(RD + 1), v(RD + 3)))
            a('v_add_f32 %s, %s, %s' % (v(RD), v(RD + 4), v(RD + 6)))
            a('v_add_f32 %s, %s, %s' % (v(RD + 1), v(RD + 5), v(RD + 7)))
            a('v_add_f32 %s, %s, %s' % (v(S1), v(S1), v(RD)))
            a('v_add_f32 %s, %s, %s' % (v(S2), v(S2), v(RD + 1)))
            s.ln_stats(S1, S2, MEAN, DD, RR, T)
            s.ln_apply(xs, MEAN, DD, RR, [T, T + 1])
            if rnd == 0:
                for c in range(4): a('v_mul_f32 %s, %s, %s' % (v(XX + c), v(XX + c), v(CB + c)))
                s.rnd2(XX, XX + 1, T); s.rnd2(XX + 2, XX + 3, T + 1)
                for c in range(4): a('v_add_f32 %s, %s, %s' % (v(XX + c), v(XX + c), v(SB + c)))
                s.rnd2(XX, XX + 1, T); s.rnd2(XX + 2, XX + 3, T + 1)
        a('v_cvt_pk_bf16_f32 %s, %s, %s' % (v(T), v(XX), v(XX + 1)))
        a('v_cvt_pk_bf16_f32 %s, %s, %s' % (v(T + 1), v(XX + 2), v(XX + 3)))
        a('ds_write_b64 v6, %s' % v(T, 2))
        s.stamp(6)
        a('s_waitcnt vmcnt(0)')
        acc = s.tile_mfma(4, 'v1', 128)
        s.gemvC_partial(acc, sR)
        a('s_branch L_end')

if __name__ == '__main__':
    import argparse
    ap = argparse.ArgumentParser()
    ap.add_argument('-o', default='k.s')
    ap.add_argument('--W', type=int, default=4)
    ap.add_argument('--W2', type=int, default=8)
    ap.add_argument('--slow', type=int, default=0)
    ap.add_argument('--stamps', action='store_true')
    ap.add_argument('--skip', default='')
    ap.add_argument('--dry', action='store_true')
    ap.add_argument('--kq', type=int, default=22)
    ap.add_argument('--Wt', type=int, default=8)
    ap.add_argument('--NL', type=int, default=15)
    ap.add_argument('--tkg', type=int, default=1)
    ap.add_argument('--pd', type=int, default=1)
    ap.add_argument('--hold', type=int, default=1)
    ap.add_argument('--ND', type=int, default=2)
    ap.add_argument('--s2sleep', type=int, default=0)
    ap.add_argument('--s3sleep', type=int, default=0)
    ap.add_argument('--finst', action='store_true')
    ap.add_argument('--finsleep', type=int, default=2)
    ap.add_argument('--tsleep', type=int, default=0)
    ap.add_argument('--fsleep', type=int, default=20)
    ap.add_argument('--s3wait', action='store_true')
    ap.add_argument('--nos3dyn', action='store_true')
    ap.add_argument('--classes', default='')
    ap.add_argument('--nsleep', type=int, default=100)
    ap.add_argument('--psleep', type=int, default=0)
    ap.add_argument('--kqn', type=int, default=8)
    ap.add_argument('--qsleep', type=int, default=16)
    args = ap.parse_args()
    if args.classes:
        for i, x in enumerate(args.classes.split(',')): CLASSES[i] = (CLASSES[i][0], CLASSES[i][1], int(x))
    g = Gen(W=args.W, W2=args.W2, slow=args.slow, stamps=args.stamps, qsleep=args.qsleep)
    g.dry = args.dry; g.kq = args.kq; g.Wt = args.Wt; g.NL = args.NL; g.tkg = args.tkg; g.pd = args.pd; g.hold = args.hold; g.ND = args.ND; g.s2sleep = args.s2sleep; g.s3sleep = args.s3sleep; g.finst = args.finst; g.finsleep = args.finsleep; g.tsleep = args.tsleep; g.fsleep = args.fsleep; g.s3wait = args.s3wait; g.s3dyn = not args.nos3dyn; g.nsleep = args.nsleep; g.psleep = args.psleep; g.kqn = args.kqn
    for x in args.skip.split(','):
        if x == 'wm': g.skip.add(12288)
        if x == 'wq': g.skip.add(8192)
        if x == 'w1': g.skip.add(7168)
        if x == 'wo': g.skip.add((2048, 16 * 2048))
    open(args.o, 'w').write(g.build())
```

```python
import sys, math
sys.path.insert(0, 'work')
from asmlib import Asm
NAME = 'adaLN_cond__gqa_block_cached__mixer_channel_mlp__decode'

OFF_MOD, OFF_Q, OFF_SBCB, OFF_G, OFF_ML = 0x010000, 0x100000, 0x200000, 0x280000, 0x290000
OFF_O, OFF_A, OFF_X1, OFF_HH, OFF_TS = 0x300000, 0x500000, 0x580000, 0x600000, 0x8000000
OFF_P = 0x2a0000
OFF_H = OFF_MOD
CNT_Q, CNT_ATT, CNT_R1, CNT_R2, CNT_R3, CNT_X, CNT_S, CNT_T, CNT_W, CNT_K, CNT_PUB = 0, 4, 8, 12, 16, 20, 24, 28, 32, 36, 40
L_ZERO, L_Q, L_X, L_RED, L_ML, L_ST, L_O, L_G, L_B1, L_H, L_OB = 64, 256, 2304, 4352, 5376, 5888, 5952, 7424, 7552, 7680, 8192
L_W2 = L_OB + 8 * 4096
LDS_BYTES = L_W2 + 15 * 8192
assert LDS_BYTES <= 163840
CLASSES = [(0, 8, 29), (8, 14, 24), (22, 2, 32), (24, 8, 29), (32, 16, 29), (48, 16, 29)]
OFF_CNT = 0x2b0000
sWG, sWAVE, sTAG = 's2', 's3', 's4'
sR = 's5'
sJ = 's6'
sU, sG = 's24', 's25'
sLIVE = 's[26:27]'
sRET, sPASS = 's69', 's100'
sLAST, sH2, sL0 = 's100', 's101', 's28'
SRD_K, SRD_V, SRD_WS, SRD_W, SRD_OUT = 's[8:11]', 's[12:15]', 's[16:19]', 's[20:23]', 's[28:31]'
P_X, P_K, P_V, P_WQ, P_WO, P_W1, P_B1, P_W2, P_B2, P_C, P_WM, P_OUT, P_DBG, P_WS = 32, 34, 36, 38, 40, 44, 46, 48, 50, 52, 54, 56, 58, 60
sSELLO, sSELHI = 's62', 's63'
sT0, sT1, sT2, sT3, sTO = 's64', 's65', 's66', 's67', 's68'
sACC = 's[70:71]'
sM0, sM1, sM2 = 's[72:73]', 's[74:75]', 's[76:77]'
sC0, sC1, sC2, sC3 = 's78', 's79', 's80', 's81'
TS0 = 84
NSTAMP = 8
LOG2E = 0x3fb8aa3b
def f32(x):
    import struct
    return '0x%08x' % struct.unpack('<I', struct.pack('<f', x))[0]

def v(i, n=1): return 'v%d' % i if n == 1 else 'v[%d:%d]' % (i, i + n - 1)
def sp(i): return 's[%d:%d]' % (i, i + 1)

class Gen:
    def __init__(s, W=4, W2=8, slow=3, stamps=False, qsleep=8, nt=True):
        s.a = Asm(); s.W = W; s.W2 = W2; s.slow = slow; s.stamps = stamps; s.qsleep = qsleep
        s.nt = 'nt' if nt else ''
        s.skip = set(); s.rets = []; s.dry = True; s.kq = 22; s.kqn = 8; s.Wt = 4; s.tkg = 1; s.pd = 1; s.w2pace = 0; s.w2late = True; s.ND3 = 8; s.touch = False; s.hold = 1; s.ND = 4; s.s2sleep = 0; s.s3sleep = 0; s.finst = False; s.finsleep = 2; s.tsleep = 0; s.fsleep = 20; s.qsleep0 = 40; s.s3wait = False; s.s3dyn = True; s.NL = 15; s.nsleep = 64; s.psleep = 0
    def stamp(s, i):
        if s.stamps:
            s.a('s_memrealtime %s' % sp(TS0 + 2 * i))
    def srd(s, srd, ptr, nbytes):
        a = s.a; b = int(srd[2:srd.index(':')])
        a('s_mov_b32 s%d, s%d' % (b, ptr)); a('s_and_b32 s%d, s%d, 0xffff' % (b + 1, ptr + 1))
        a('s_mov_b32 s%d, 0x%x' % (b + 2, nbytes)); a('s_mov_b32 s%d, 0x20000' % (b + 3))
    def ex(s, m):
        a = s.a
        if m == -1: a('s_mov_b64 exec, %s' % sLIVE)
        elif m == 'lo32': a('s_mov_b32 exec_lo, s26'); a('s_mov_b32 exec_hi, 0')
        elif isinstance(m, str): a('s_and_b64 exec, %s, %s' % (sLIVE, m))
        else: a('s_and_b64 exec, %s, 0x%x' % (sLIVE, m))
    def dry_call(s, seg, rid):
        a = s.a
        a('s_mov_b32 %s, %d' % (sRET, rid))
        a('s_mov_b64 %s, 0' % sLIVE)
        a('s_mov_b64 exec, 0')
        a('s_branch %s' % seg)
        a.label('L_dret%d' % rid)
        a('s_mov_b64 %s, -1' % sLIVE)
        a('s_mov_b64 exec, -1')
        s.rets.append(rid)
    def seg_end(s):
        s.a('s_cbranch_execz L_dryret')
    def vmwait(s, n):
        a = s.a; L = a.newlabel('vw')
        a('s_cbranch_execz %s' % L)
        a('s_waitcnt vmcnt(%d)' % n)
        a.label(L)
    def signal(s, cnt, vz='v3', vone='v4'):
        a = s.a
        a('v_mov_b32 %s, 1' % vone)
        a('s_waitcnt lgkmcnt(0)')
        s.ex(1)
        a('ds_add_u32 %s, %s offset:%d' % (vz, vone, cnt))
        s.ex(-1)
    def wait_lds(s, cnt, target, vz='v3', vt='v4', sleep=0):
        a = s.a; L = a.newlabel('w'); LD = a.newlabel('wd')
        a('s_mov_b32 %s, 0' % sTO)
        a.label(L)
        if sleep: a('s_sleep %d' % sleep)
        a('s_add_u32 %s, %s, 1' % (sTO, sTO))
        a('s_cmp_gt_u32 %s, 0x400000' % sTO)
        a('s_cbranch_scc1 L_fail')
        a('ds_read_b32 %s, %s offset:%d' % (vt, vz, cnt))
        a('s_waitcnt lgkmcnt(0)')
        a('v_readfirstlane_b32 %s, %s' % (sT3, vt))
        a('s_cmp_ge_u32 %s, %s' % (sT3, target))
        a('s_cbranch_execz %s' % LD)
        a('s_cbranch_scc0 %s' % L)
        a.label(LD)
    def poll(s, loads, sleep=0):
        a = s.a; L = a.newlabel('p'); n = len(loads)
        a('s_mov_b32 %s, 0' % sTO)
        a.label(L)
        a('s_add_u32 %s, %s, 1' % (sTO, sTO))
        a('s_cmp_gt_u32 %s, 0x40000' % sTO)
        a('s_cbranch_scc1 L_fail')
        LS = a.newlabel('ps')
        a('s_cbranch_execz %s' % LS)
        for d, vo, so, imm in loads:
            a('buffer_load_dwordx4 %s, %s, %s, %s offen offset:%d sc1' % (v(d, 4), vo, SRD_WS, so, imm))
        a('s_waitcnt vmcnt(%d)' % (n - 1))
        a.label(LS)
        a('s_mov_b64 %s, -1' % sACC)
        for i, (d, vo, so, imm) in enumerate(loads):
            if i: s.vmwait(n - 1 - i)
            a('v_cmp_eq_u32 vcc, %s, %s' % (sTAG, v(d + 1)))
            a('v_cmp_eq_u32 %s, %s, %s' % (sM2, sTAG, v(d + 3)))
            a('s_and_b64 %s, %s, vcc' % (sACC, sACC))
            a('s_and_b64 %s, %s, %s' % (sACC, sACC, sM2))
        a('s_cmp_eq_u64 %s, -1' % sACC)
        L2 = a.newlabel('pd')
        a('s_cbranch_execz %s' % L2)
        if sleep:
            a('s_cbranch_scc1 %s' % L2)
            a('s_sleep %d' % sleep)
            a('s_branch %s' % L)
        else:
            a('s_cbranch_scc0 %s' % L)
        a.label(L2)
    def ppoll(s, loads, depth=3, gap=5):
        a = s.a; L = a.newlabel('pp'); n = len(loads)
        def sweep():
            for d, vo, so, imm in loads:
                a('buffer_load_dwordx4 %s, %s, %s, %s offen offset:%d sc1' % (v(d, 4), vo, SRD_WS, so, imm))
        for i in range(depth - 1):
            sweep()
            a('s_sleep %d' % gap)
        a('s_mov_b32 %s, 0' % sTO)
        a.label(L)
        sweep()
        a('s_add_u32 %s, %s, 1' % (sTO, sTO))
        a('s_cmp_gt_u32 %s, 0x80000' % sTO)
        a('s_cbranch_scc1 L_fail')
        a('s_mov_b64 %s, -1' % sACC)
        a('s_waitcnt vmcnt(%d)' % ((depth - 1) * n))
        for i, (d, vo, so, imm) in enumerate(loads):
            a('v_cmp_eq_u32 vcc, %s, %s' % (sTAG, v(d + 1)))
            a('v_cmp_eq_u32 %s, %s, %s' % (sM2, sTAG, v(d + 3)))
            a('s_and_b64 %s, %s, vcc' % (sACC, sACC))
            a('s_and_b64 %s, %s, %s' % (sACC, sACC, sM2))
        a('s_cmp_eq_u64 %s, -1' % sACC)
        if s.tsleep:
            L2 = a.newlabel('ppd')
            a('s_cbranch_scc1 %s' % L2)
            a('s_sleep %d' % s.tsleep)
            a('s_branch %s' % L)
            a.label(L2)
        else:
            a('s_cbranch_scc0 %s' % L)
        if depth > 1: a('s_nop 7')
    def lds_spin(s, reads, checks, tmp, sleep=0):
        a = s.a; L = a.newlabel('ls')
        a('s_mov_b32 %s, 0' % sTO)
        a.label(L)
        if sleep: a('s_sleep %d' % sleep)
        for r_ in reads: a(r_)
        a('s_add_u32 %s, %s, 1' % (sTO, sTO))
        a('s_cmp_gt_u32 %s, 0x400000' % sTO)
        a('s_cbranch_scc1 L_fail')
        a('s_waitcnt lgkmcnt(0)')
        c = list(checks)
        a('v_max3_u32 %s, %s, %s, %s' % (v(tmp), v(c[0]), v(c[1]), v(c[2])))
        c = c[3:]
        while len(c) >= 2:
            a('v_max3_u32 %s, %s, %s, %s' % (v(tmp), v(tmp), v(c[0]), v(c[1]))); c = c[2:]
        if c: a('v_max_u32 %s, %s, %s' % (v(tmp), v(tmp), v(c[0])))
        a('v_cmp_eq_u32 vcc, -1, %s' % v(tmp))
        a('s_cmp_eq_u64 vcc, 0')
        a('s_cbranch_scc0 %s' % L)
    def bfly(s, op, regs, tmps, steps):
        a = s.a
        for st in steps:
            if st in (1, 2, 4, 8):
                mod = {1: 'quad_perm:[1,0,3,2]', 2: 'quad_perm:[2,3,0,1]', 4: None, 8: 'row_ror:8'}[st]
                for r, t in zip(regs, tmps):
                    if st == 4:
                        a('%s_dpp %s, %s, %s row_half_mirror row_mask:0xf bank_mask:0xf' % (op, v(r), v(r), v(r)))
                    else:
                        a('%s_dpp %s, %s, %s %s row_mask:0xf bank_mask:0xf' % (op, v(r), v(r), v(r), mod))
            else:
                sw = 'v_permlane16_swap_b32' if st == 16 else 'v_permlane32_swap_b32'
                for r, t in zip(regs, tmps): a('v_mov_b32 %s, %s' % (v(t), v(r)))
                for r, t in zip(regs, tmps): a('%s %s, %s' % (sw, v(r), v(t)))
                for r, t in zip(regs, tmps): a('%s %s, %s, %s' % (op, v(r), v(r), v(t)))
    def rnd2(s, x, y, t):
        a = s.a
        a('v_cvt_pk_bf16_f32 %s, %s, %s' % (v(t), v(x), v(y)))
        a('v_lshlrev_b32 %s, 16, %s' % (v(x), v(t)))
        a('v_and_b32 %s, 0xffff0000, %s' % (v(y), v(t)))
    def rnd1(s, x):
        a = s.a
        a('v_cvt_pk_bf16_f32 %s, %s, %s' % (v(x), v(x), v(x)))
        a('v_and_b32 %s, 0xffff0000, %s' % (v(x), v(x)))
    def unpack(s, src, lo, hi):
        a = s.a
        a('v_lshlrev_b32 %s, 16, %s' % (v(lo), v(src)))
        a('v_and_b32 %s, 0xffff0000, %s' % (v(hi), v(src)))
    def div(s, xs, d, r, t):
        a = s.a
        for x in xs:
            a('v_mul_f32 %s, %s, %s' % (v(t[0]), v(x), v(r)))
            a('v_fma_f32 %s, -%s, %s, %s' % (v(t[1]), v(t[0]), v(d), v(x)))
            a('v_fma_f32 %s, %s, %s, %s' % (v(x), v(t[1]), v(r), v(t[0])))
    def ln_stats(s, s1, s2, mean, d, r, t):
        a = s.a
        a('v_mul_f32 %s, %s, %s' % (v(mean), f32(1.0 / 1024), v(s1)))
        a('v_mul_f32 %s, %s, %s' % (v(d), f32(1.0 / 1024), v(s2)))
        a('v_fma_f32 %s, -%s, %s, %s' % (v(d), v(mean), v(mean), v(d)))
        a('v_max_f32 %s, 0, %s' % (v(d), v(d)))
        s.rnd2(mean, d, t)
        a('v_add_f32 %s, %s, %s' % (v(d), f32(1e-5), v(d)))
        s.rnd1(d)
        a('v_sqrt_f32 %s, %s' % (v(d), v(d)))
        s.rnd1(d)
        a('v_rcp_f32 %s, %s' % (v(r), v(d)))
    def ln_apply(s, xs, mean, d, r, t):
        a = s.a
        for x in xs: a('v_sub_f32 %s, %s, %s' % (v(x), v(x), v(mean)))
        for i in range(0, len(xs), 2): s.rnd2(xs[i], xs[i + 1], t[0])
        s.div(xs, d, r, t)
        for i in range(0, len(xs), 2): s.rnd2(xs[i], xs[i + 1], t[0])
    R = [8, 40, 72, 104]; X = 136
    def tile_load(s, nblk, voff, sbase, step_blk, step_t, pace=0):
        a = s.a
        if step_t in s.skip or (step_t, step_blk) in s.skip: return
        for b in range(nblk):
            for t in range(8):
                a('s_add_u32 %s, %s, 0x%x' % (sT0, sbase, b * step_blk + t * step_t))
                if pace and 8 * b + t >= pace: a('s_waitcnt vmcnt(%d)' % (pace - 1))
                a('buffer_load_dwordx4 %s, %s, %s, %s offen %s' % (v(s.R[b] + 4 * t, 4), voff, SRD_W, sT0, s.nt))
    def tile_transpose(s, nblk, later=0, landed=None):
        a = s.a
        TB = [s.X] + s.R[:3]
        for b in range(nblk):
            s.vmwait((nblk - 1 - b) * 8 + later)
            if b == nblk - 1 and landed: landed()
            for e in range(8):
                for j in range(4):
                    a('v_perm_b32 %s, %s, %s, %s' % (v(TB[b] + 4 * e + j), v(s.R[b] + 4 * (2 * j + 1) + (e >> 1)),
                                                     v(s.R[b] + 4 * (2 * j) + (e >> 1)), sSELHI if e & 1 else sSELLO))
    def tile_mfma(s, nblk, vaddr, step, spin=False):
        a = s.a
        TB = [s.X] + s.R[:3]
        F = s.R[3]
        AF = F + 16
        rd = ['ds_read_b128 %s, %s offset:%d' % (v(AF + 4 * b, 4), vaddr, b * step) for b in range(nblk)]
        if spin: s.lds_spin(rd, [AF + 4 * b for b in range(nblk)], 4, sleep=1)
        else:
            for r_ in rd: a(r_)
        acc = [F + 4 * e for e in range(4)] + [TB[0] + 4 * e for e in range(4)]
        LS = a.newlabel('ms')
        a('s_cbranch_execz %s' % LS)
        for half in range(2):
            for b in range(nblk):
                if half == 0: a('s_waitcnt lgkmcnt(%d)' % (nblk - 1 - b))
                for e in range(4 * half, 4 * half + 4):
                    c = '0' if b == 0 else v(acc[e], 4)
                    a('v_mfma_f32_16x16x32_bf16 %s, %s, %s, %s' % (v(acc[e], 4), v(AF + 4 * b, 4), v(TB[b] + 4 * e, 4), c))
        a.label(LS)
        return acc
    def gemvC_partial(s, acc, slot_sgpr):
        a = s.a
        AF = s.R[3] + 16
        for e in range(8):
            a('v_add_f32_dpp %s, %s, %s row_ror:8 row_mask:0xf bank_mask:0xf' % (v(AF + e), v(acc[e] + 1), v(acc[e])))
        a('s_lshl_b32 %s, %s, 8' % (sT0, slot_sgpr))
        a('v_lshlrev_b32 v5, 5, v0')
        a('v_add_u32 v5, %s, v5' % sT0)
        s.ex(0xff)
        a('ds_write_b128 v5, %s offset:%d' % (v(AF, 4), L_RED))
        a('ds_write_b128 v5, %s offset:%d' % (v(AF + 4, 4), L_RED + 16))
        s.ex(-1)
    def gemvC_gather(s, nsrc, dst, tmp, slot0='0', spin=False):
        a = s.a
        a('v_and_b32 v5, 15, v0')
        a('v_lshlrev_b32 v5, 4, v5')
        if slot0 != '0': a('v_add_u32 v5, %s, v5' % slot0)
        rd = ['ds_read_b128 %s, v5 offset:%d' % (v(tmp + 4 * w, 4), L_RED + 256 * w) for w in range(nsrc)]
        if spin: s.lds_spin(rd, [tmp + 4 * w for w in range(nsrc)], 4, sleep=1)
        else:
            for r_ in rd: a(r_)
        for w in range(1, nsrc):
            a('s_waitcnt lgkmcnt(%d)' % (nsrc - 1 - w))
            for c in range(4):
                a('v_add_f32 %s, %s, %s' % (v(dst + c), v(tmp + c) if w == 1 else v(dst + c), v(tmp + 4 * w + c)))
    def mk_granule(s, g, x):
        a = s.a
        a('v_cvt_pk_bf16_f32 %s, %s, %s' % (v(g), v(x), v(x + 1)))
        a('v_cvt_pk_bf16_f32 %s, %s, %s' % (v(g + 2), v(x + 2), v(x + 3)))
        a('v_mov_b32 %s, %s' % (v(g + 1), sTAG))
        a('v_mov_b32 %s, %s' % (v(g + 3), sTAG))
    def st_ws(s, g, voff, soff, imm=0):
        L = s.a.newlabel('st')
        s.a('s_cbranch_execz %s' % L)
        s.a('buffer_store_dwordx4 %s, %s, %s, %s offen offset:%d sc1' % (v(g, 4), voff, SRD_WS, soff, imm))
        s.a.label(L)

    def build(s):
        a = s.a
        a.raw('; @launch grid=(256,1,1) block=(768,1,1) lds=%d' % LDS_BYTES)
        if s.stamps: a.raw('; TS 0x%x:%d:%d' % (OFF_TS, 256 * 12, NSTAMP))
        a.raw('.amdgcn_target "amdgcn-amd-amdhsa--gfx950"')
        a.raw('.text')
        a.raw('.globl %s_kernel' % NAME)
        a.raw('.p2align 8')
        a.raw('.type %s_kernel,@function' % NAME)
        a.raw('%s_kernel:' % NAME)
        a('s_cmp_ge_u32 s2, 256')
        a('s_cbranch_scc1 L_exit')
        if s.stamps:
            for i in range(NSTAMP): a('s_mov_b64 %s, 0' % sp(TS0 + 2 * i))
        s.stamp(0)
        a('s_load_dwordx16 s[32:47], s[0:1], 0')
        a('s_load_dwordx8 s[48:55], s[0:1], 64')
        a('s_load_dwordx4 s[56:59], s[0:1], 96')
        a('s_load_dwordx2 s[60:61], s[0:1], 112')
        a('v_lshrrev_b32 v1, 6, v0')
        a('v_and_b32 v0, 63, v0')
        a('v_mov_b32 v3, 0')
        a('v_readfirstlane_b32 s3, v1')
        a('v_lshlrev_b32 v2, 4, v0')
        a('s_mov_b32 %s, 0x05040100' % sSELLO)
        a('s_mov_b32 %s, 0x07060302' % sSELHI)
        a('s_waitcnt lgkmcnt(0)')
        a('s_load_dword %s, %s, 0' % (sTAG, sp(P_WS)))
        s.srd(SRD_WS, P_WS, 0x10000000)
        s.srd(SRD_OUT, P_OUT, 2048)
        a('s_and_b32 %s, s2, 63' % sU)
        a('s_lshr_b32 %s, s2, 6' % sG)
        a('s_mov_b64 %s, -1' % sLIVE)
        a('s_mov_b32 %s, 0' % sRET)
        a('s_cmp_ge_u32 s3, 8')
        a('s_cbranch_scc1 L_role')
        s.stream()
        a.label('L_role')
        s.role()
        a.label('L_dryret')
        if not s.rets: a('s_branch L_end')
        for rid in s.rets[:-1]:
            a('s_cmp_eq_u32 %s, %d' % (sRET, rid))
            a('s_cbranch_scc1 L_dret%d' % rid)
        if s.rets: a('s_branch L_dret%d' % s.rets[-1])
        a.label('L_fail')
        a('v_mov_b32 v4, 0xdead')
        a('v_mov_b32 v5, 0')
        a('s_mov_b64 exec, 1')
        a('global_store_dword v5, v4, %s' % sp(P_DBG))
        a('s_mov_b64 exec, -1')
        a.label('L_end')
        if s.stamps:
            s.stamp(NSTAMP - 1)
            a('s_mul_i32 %s, s2, 12' % sT0)
            a('s_add_u32 %s, %s, s3' % (sT0, sT0))
            a('s_mul_i32 %s, %s, %d' % (sT0, sT0, NSTAMP * 8))
            a('s_add_u32 %s, %s, 0x%x' % (sT0, sT0, OFF_TS))
            a('v_mov_b32 v5, 0')
            a('s_waitcnt lgkmcnt(0)')
            a('s_mov_b64 exec, 1')
            for i in range(0, NSTAMP, 2):
                for k in range(4): a('v_mov_b32 v%d, s%d' % (8 + k, TS0 + 2 * i + k))
                a('buffer_store_dwordx4 v[8:11], v5, %s, %s offen offset:%d' % (SRD_WS, sT0, 8 * i))
        a.label('L_exit')
        a('s_endpgm')
        a.raw('.section .rodata,"a"')
        a.raw('.p2align 6')
        a.raw('.amdhsa_kernel %s_kernel' % NAME)
        a.raw('  .amdhsa_next_free_vgpr 168')
        a.raw('  .amdhsa_next_free_sgpr 102')
        a.raw('  .amdhsa_accum_offset 168')
        a.raw('  .amdhsa_group_segment_fixed_size 0')
        a.raw('  .amdhsa_kernarg_size 120')
        a.raw('  .amdhsa_user_sgpr_count 2')
        a.raw('  .amdhsa_user_sgpr_kernarg_segment_ptr 1')
        a.raw('  .amdhsa_system_sgpr_workgroup_id_x 1')
        a.raw('.end_amdhsa_kernel')
        return a.finish()

    SP, O, T, BUF, NB, TK = 8, 28, 60, 76, 23, 27
    def stream(s):
        a = s.a
        a.c('---------------- stream wave')
        s.srd(SRD_K, P_K, 0x4000000)
        s.srd(SRD_V, P_V, 0x4000000)
        a('s_mov_b32 %s, s3' % sR)
        base = 0
        for ci, (u0, cnt, G) in enumerate(CLASSES):
            a('s_mul_i32 %s, %s, %d' % (sT1, sU, G))
            a('s_add_u32 %s, %s, 0x%x' % (sT1, sT1, (base - u0 * G) & 0xffffffff))
            if ci == 0:
                a('s_mov_b32 %s, %s' % (sT0, sT1)); a('s_mov_b32 %s, %d' % (sT2, G))
            else:
                a('s_cmp_ge_u32 %s, %d' % (sU, u0))
                a('s_cselect_b32 %s, %s, %s' % (sT0, sT1, sT0))
                a('s_cselect_b32 %s, %d, %s' % (sT2, G, sT2))
            base += cnt * G
        s.static = base
        assert max(c_[2] for c_ in CLASSES) <= 32
        assert (2048 - base) % s.ND == 0, base
        s.PS = (2048 - base) // s.ND
        assert min(c_[2] for c_ in CLASSES if c_[2] > 8) >= 24
        a('s_lshl_b32 s7, %s, 13' % sT0)
        a('s_lshl_b32 %s, %s, 24' % (sT0, sG))
        a('s_add_u32 s7, s7, %s' % sT0)
        a('s_lshl_b32 %s, s3, 12' % sT0)
        a('s_add_u32 s7, s7, %s' % sT0)
        a('s_and_b32 %s, %s, 7' % (sT1, sT2))
        a('s_lshr_b32 %s, %s, 3' % (sT2, sT2))
        a('s_sub_u32 %s, 8, %s' % (sT3, sT1))
        a('s_lshl_b32 %s, %s, 12' % (sLAST, sT1))
        a('s_lshl_b32 %s, %s, 12' % (sL0, sT3))
        a('s_cmp_ge_u32 s3, %s' % sT3)
        a('s_cselect_b32 %s, %s, 0x8000' % (sLAST, sLAST))
        a('s_cselect_b32 %s, %s, 0' % (sL0, sL0))
        a('s_addc_u32 %s, %s, 0' % (sT2, sT2))
        a('s_sub_u32 %s, %s, 1' % (sT0, sT2))
        a('s_lshl_b32 %s, %s, 16' % (sT0, sT0))
        a('s_add_u32 %s, %s, s7' % (sT0, sT0))
        a('s_sub_u32 %s, %s, %s' % (sL0, sT0, sL0))
        a('s_add_u32 %s, %s, %s' % (sLAST, sLAST, sL0))
        a('s_add_u32 %s, s7, 0x18000' % sH2)
        a('s_cmp_eq_u32 %s, 2' % sT2)
        a('s_cselect_b32 %s, %s, %s' % (sH2, sLAST, sH2))
        a('v_bfe_u32 v1, v0, 2, 2')
        a('v_lshlrev_b32 v1, 8, v1')
        a('v_lshrrev_b32 v4, 4, v0')
        a('v_lshl_add_u32 v1, v4, 6, v1')
        a('v_and_b32 v4, 3, v0')
        a('v_lshl_add_u32 v1, v4, 4, v1')
        a('v_and_b32 v5, 7, v0')
        a('v_lshlrev_b32 v5, 8, v5')
        a('v_lshrrev_b32 v6, 4, v0')
        a('v_lshl_add_u32 v5, v6, 6, v5')
        a('v_bfe_u32 v6, v0, 3, 1')
        a('v_lshl_add_u32 v5, v6, 4, v5')
        a('s_mov_b32 %s, %s' % (sC0, f32(128 ** -0.5)))
        a('s_mov_b32 %s, 0x%x' % (sC1, LOG2E))
        a('v_and_b32 v24, 3, v0')
        a('v_lshlrev_b32 v24, 10, v24')
        a('v_lshrrev_b32 v4, 2, v0')
        a('v_lshl_add_u32 v24, v4, 4, v24')
        a('s_lshr_b32 %s, s3, 2' % sT0)
        a('s_lshl_b32 %s, %s, 8' % (sT0, sT0))
        a('s_and_b32 %s, s3, 3' % sT1)
        a('s_lshl_b32 %s, %s, 2' % (sT1, sT1))
        a('s_add_u32 %s, %s, %s' % (sT0, sT0, sT1))
        a('s_add_u32 %s, %s, %d' % (sT0, sT0, L_OB))
        a('v_add_u32 v24, %s, v24' % sT0)
        a('v_lshrrev_b32 v25, 5, v0')
        a('v_lshlrev_b32 v26, 10, v25')
        a('v_lshlrev_b32 v25, 15, v25')
        a('v_bfe_u32 v4, v0, 3, 2')
        a('v_lshl_add_u32 v25, v4, 13, v25')
        a('v_and_b32 v4, 7, v0')
        a('v_lshl_add_u32 v25, v4, 4, v25')
        a('s_lshl_b32 %s, %s, 3' % (sT0, sG))
        a('s_add_u32 %s, %s, s3' % (sT0, sT0))
        a('s_lshl_b32 s82, %s, 16' % sT0)
        a('s_lshl_b32 %s, %s, 7' % (sT1, sU))
        a('s_add_u32 s82, s82, %s' % sT1)
        a('s_add_u32 s82, s82, 0x%x' % OFF_O)
        a('s_lshl_b32 s83, %s, 11' % sT0)
        a('s_lshl_b32 %s, %s, 4' % (sT1, sU))
        a('s_add_u32 s83, s83, %s' % sT1)
        a('s_add_u32 s83, s83, 0x%x' % OFF_ML)
        W, NB = s.W, s.NB
        def pre(j):
            so = sH2
            if j < 12:
                a('s_add_u32 %s, s7, 0x%x' % (sT0, (j >> 3) * 65536 + ((j >> 2) & 1) * 32768)); so = sT0
            a('buffer_load_dwordx4 %s, v1, %s, %s offen offset:%d %s' % (v(s.BUF + 4 * j, 4), SRD_K, so, (j & 3) * 1024, s.nt))
        a('s_sub_u32 %s, %s, 8' % (sT0, sU))
        if CLASSES[1][2] <= 8:
            a('s_cmp_lt_u32 %s, 14' % sT0)
            a('s_cbranch_scc1 L_st_dynonly')
        if s.hold >= 2:
            a('s_cmp_lt_u32 %s, 16' % sT0)
            a('s_cbranch_scc1 L_st_hold')
            a('s_cmp_ge_u32 %s, 32' % sU)
            a('s_cbranch_scc1 L_st_hold')
        elif s.hold == 1:
            a('s_sub_u32 %s, %s, 32' % (sT0, sU))
            a('s_cmp_lt_u32 %s, 16' % sT0)
            a('s_cbranch_scc1 L_st_hold')
        pre(0)
        a('s_waitcnt lgkmcnt(0)')
        a('s_barrier')
        for j in range(1, s.slow + 1):
            a('s_waitcnt vmcnt(0)')
            pre(j)
        a('s_branch L_st_go')
        a.label('L_st_hold')
        a('s_waitcnt lgkmcnt(0)')
        a('s_barrier')
        s.wait_lds(CNT_T, 4, sleep=1)
        for j in range(0, s.slow + 1): pre(j)
        a.label('L_st_go')
        a('s_add_u32 %s, %s, 1' % (sTAG, sTAG))
        for j in range(s.slow + 1, 16):
            a('s_waitcnt vmcnt(%d)' % (W - 1))
            pre(j)
            if j == s.kq: s.signal(CNT_K)
        s3norm = CLASSES[1][2] >= 24 and s.w2late
        if not s3norm:
            a('s_sub_u32 %s, %s, 8' % (sT0, sU))
            a('s_cmp_lt_u32 %s, 14' % sT0)
            a('s_cbranch_scc1 L_st_s3')
        a('s_cmp_eq_u32 %s, 3' % sT2)
        a('s_cbranch_scc1 L_st_n3l')
        s.stream_body(4, s.NL, 'a')
        a('s_branch L_st_dyn')
        a.label('L_st_n3l')
        s.stream_body(3, s.NL, 'b')
        a('s_branch L_st_dyn')
        a.label('L_st_s3')
        g3 = CLASSES[1][2]
        lo = g3 >> 3
        if s3norm:
            pass
        elif g3 <= 8:
            a.label('L_st_dynonly')
            a('s_waitcnt lgkmcnt(0)')
            a('s_barrier')
            if g3:
                s.wait_lds(CNT_T, 4, sleep=1)
                a('s_add_u32 %s, s7, 0x8000' % sT1)
                for i in range(8):
                    a('buffer_load_dwordx4 %s, v1, %s, %s offen offset:%d %s' % (v(s.BUF + 4 * i, 4), SRD_K, 's7' if i < 4 else sT1, (i & 3) * 1024, s.nt))
                    if i >= 3: a('s_waitcnt vmcnt(3)')
                for i in range(8):
                    a('buffer_load_dwordx4 %s, v2, %s, %s offen offset:%d %s' % (v(s.BUF + 32 + 4 * i, 4), SRD_V, 's7' if i < 4 else sT1, (i & 3) * 1024, s.nt))
                    a('s_waitcnt vmcnt(3)')
            a('s_add_u32 %s, %s, 1' % (sTAG, sTAG))
            for r_ in range(32): a('v_mov_b32 %s, 0' % v(s.O + r_))
            a('v_mov_b32 v6, %s' % f32(-3.0e38))
            a('v_mov_b32 v7, 0')
            s.stamp(1)
            a('s_cmp_ge_u32 s3, 4')
            a('s_cbranch_scc1 L_st_qwz')
            s.q_wait(s.BUF + 64, sleep=s.qsleep0)
            a.label('L_st_qwz')
            s.wait_lds(CNT_Q, 4, sleep=4)
            s.stamp(2)
            a('s_waitcnt vmcnt(0)')
            s.first_ticket(s.ND3)
        else:
            if g3 & 7:
                a('s_cmp_eq_u32 %s, %d' % (sT2, lo))
                a('s_cbranch_scc1 L_st_n3')
                s.stream_body(lo + 1, 0, 'c')
                a('s_branch L_st_dyn')
                a.label('L_st_n3')
            s.stream_body(lo, 0, 'd')
            if not s.s3dyn: a('s_branch L_st_fin')
        a.label('L_st_dyn')
        s.dyn_loop()
        a.label('L_st_fin')
        s.stream_fin()

    def first_ticket(s, nd=None):
        a = s.a; L = a.newlabel('tk')
        a('v_mov_b32 %s, -1' % v(s.TK))
        a('s_cmp_ge_u32 s3, %d' % (nd or s.ND))
        a('s_cbranch_scc1 %s' % L)
        s.ticket_addr()
        s.ticket()
        a.label(L)
    def ticket_addr(s):
        a = s.a
        a('s_lshl_b32 %s, %s, 3' % (sH2, sG))
        a('s_and_b32 %s, s3, %d' % (sT0, s.ND - 1))
        a('s_add_u32 %s, %s, %s' % (sH2, sH2, sT0))
        a('s_lshl_b32 %s, %s, 8' % (sH2, sH2))
        a('s_add_u32 %s, %s, 0x%x' % (sH2, sH2, OFF_CNT))
    def ticket(s):
        a = s.a
        a('v_mov_b32 %s, 1' % v(s.TK))
        s.ex(1)
        a('buffer_atomic_add %s, v3, %s, %s offen sc0 sc1' % (v(s.TK), SRD_WS, sH2))
        s.ex(-1)

    def dyn_loop(s):
        a = s.a
        SP, O, T, BUF = s.SP, s.O, s.T, s.BUF
        if s.PS == 0: return
        KS = [BUF + 4 * i for i in range(8)]; VS = [BUF + 32 + 4 * i for i in range(8)]
        D = BUF + 64; TU = BUF + 80; AL = BUF + 84; X0 = BUF + 88
        a('s_and_b32 %s, s3, %d' % (sT0, s.ND - 1))
        a('s_mul_i32 %s, %s, %d' % (sT0, sT0, s.PS))
        a('s_add_u32 %s, %s, %d' % (sT0, sT0, 2 * s.static))
        a('s_lshl_b32 s7, %s, 12' % sT0)
        a('s_lshl_b32 %s, %s, 24' % (sT0, sG))
        a('s_add_u32 s7, s7, %s' % sT0)
        a('v_and_b32 v5, 7, v0')
        a('v_lshlrev_b32 v5, 8, v5')
        a('v_lshrrev_b32 v4, 4, v0')
        a('v_lshl_add_u32 v5, v4, 6, v5')
        a('v_bfe_u32 v4, v0, 3, 1')
        a('v_lshl_add_u32 v5, v4, 4, v5')
        a('v_bfe_u32 v4, v0, 4, 1')
        a('v_lshlrev_b32 v4, 4, v4')
        if CLASSES[1][2] == 8:
            a('s_sub_u32 %s, %s, 8' % (sT0, sU))
            a('s_cmp_lt_u32 %s, 14' % sT0)
            a('s_cbranch_scc1 L_dyn_have')
        a.label('L_dyn')
        a('s_waitcnt vmcnt(0)')
        a('v_readfirstlane_b32 %s, %s' % (sT1, v(s.TK)))
        a('s_cmp_ge_u32 %s, %d' % (sT1, s.PS))
        a('s_cbranch_scc1 L_st_fin')
        a('s_lshl_b32 %s, %s, 12' % (sT1, sT1))
        a('s_add_u32 %s, %s, s7' % (sT0, sT1))
        a('s_add_u32 %s, %s, %d' % (sT1, sT0, s.PS * s.ND * 4096))
        for i in range(8):
            a('buffer_load_dwordx4 %s, v1, %s, %s offen offset:%d %s' % (v(KS[i], 4), SRD_K, sT0 if i < 4 else sT1, (i & 3) * 1024, s.nt))
        for i in range(8):
            a('buffer_load_dwordx4 %s, v2, %s, %s offen offset:%d %s' % (v(VS[i], 4), SRD_V, sT0 if i < 4 else sT1, (i & 3) * 1024, s.nt))
        s.ticket()
        a.label('L_dyn_have')
        a('ds_read_b128 %s, v5 offset:%d' % (v(T, 4), L_Q))
        a('ds_read_b128 %s, v5 offset:%d' % (v(T + 4, 4), L_Q + 32))
        a('s_waitcnt lgkmcnt(0)')
        for n in range(4):
            a('s_waitcnt vmcnt(%d)' % (6 - 2 * n + 9))
            for bb in range(2):
                for m in range(2):
                    a('v_mfma_f32_16x16x32_bf16 %s, %s, %s, 0' % (v(D + 8 * bb + 4 * m, 4), v(KS[2 * n + bb], 4), v(T + 4 * m, 4)))
            for bb in range(2):
                d0 = D + 8 * bb; d1 = d0 + 4
                a('v_add_f32 %s, %s, %s' % (v(TU + 2 * bb), v(d0), v(d1 + 2)))
                a('v_add_f32 %s, %s, %s' % (v(TU + 2 * bb + 1), v(d0 + 1), v(d1 + 3)))
            a('v_add_f32_dpp %s, %s, %s row_ror:8 row_mask:0xf bank_mask:0x3' % (v(SP + n), v(TU + 1), v(TU)))
            a('v_add_f32_dpp %s, %s, %s row_ror:8 row_mask:0xf bank_mask:0xc' % (v(SP + n), v(TU + 2), v(TU + 3)))
        for n in (0, 2):
            s.rnd2(SP + n, SP + n + 1, X0)
            a('v_mul_f32 %s, %s, %s' % (v(SP + n), sC0, v(SP + n)))
            a('v_mul_f32 %s, %s, %s' % (v(SP + n + 1), sC0, v(SP + n + 1)))
            s.rnd2(SP + n, SP + n + 1, X0)
        a('v_max3_f32 %s, %s, %s, %s' % (v(X0), v(SP), v(SP + 1), v(SP + 2)))
        a('v_max3_f32 %s, %s, %s, v6' % (v(X0), v(X0), v(SP + 3)))
        s.bfly('v_max_f32', [X0], [X0 + 1], [8, 16, 32])
        a('v_sub_f32 %s, v6, %s' % (v(X0 + 2), v(X0)))
        a('v_mul_f32 %s, %s, %s' % (v(X0 + 2), sC1, v(X0 + 2)))
        a('v_exp_f32 %s, %s' % (v(X0 + 2), v(X0 + 2)))
        a('v_mov_b32 v6, %s' % v(X0))
        for r in range(4):
            a('ds_bpermute_b32 %s, v4, %s offset:%d' % (v(AL + r), v(X0 + 2), 4 * r))
        a('v_mul_f32 %s, %s, %s' % (v(X0 + 1), sC1, v(X0)))
        for n in range(4): a('v_fma_f32 %s, %s, %s, -%s' % (v(SP + n), v(SP + n), sC1, v(X0 + 1)))
        for n in range(4): a('v_exp_f32 %s, %s' % (v(SP + n), v(SP + n)))
        a('v_add_f32 %s, %s, %s' % (v(X0), v(SP), v(SP + 1)))
        a('v_add_f32 %s, %s, %s' % (v(X0 + 1), v(SP + 2), v(SP + 3)))
        a('v_add_f32 %s, %s, %s' % (v(X0), v(X0), v(X0 + 1)))
        a('v_cvt_pk_bf16_f32 %s, %s, %s' % (v(SP), v(SP), v(SP + 1)))
        a('v_cvt_pk_bf16_f32 %s, %s, %s' % (v(SP + 1), v(SP + 2), v(SP + 3)))
        s.bfly('v_add_f32', [X0], [X0 + 1], [8, 16, 32])
        a('v_mov_b32_dpp %s, %s row_ror:8 row_mask:0xf bank_mask:0xf' % (v(SP + 2), v(SP)))
        a('v_mov_b32_dpp %s, %s row_ror:8 row_mask:0xf bank_mask:0xf' % (v(SP + 3), v(SP + 1)))
        a('v_fma_f32 v7, v7, %s, %s' % (v(X0 + 2), v(X0)))
        a('s_waitcnt lgkmcnt(0)')
        for e in range(8):
            for r in range(4):
                a('v_mul_f32 %s, %s, %s' % (v(O + 4 * e + r), v(O + 4 * e + r), v(AL + r)))
        a('s_waitcnt vmcnt(1)')
        beta = [0, 2, 4, 6, 1, 3, 5, 7]
        src = [VS[beta[t]] for t in range(8)]
        for half in range(2):
            for e in range(4 * half, 4 * half + 4):
                for j in range(4):
                    a('v_perm_b32 %s, %s, %s, %s' % (v(T + 4 * (e & 3) + j), v(src[2 * j + 1] + (e >> 1)), v(src[2 * j] + (e >> 1)),
                                                     sSELHI if e & 1 else sSELLO))
            for e in range(4 * half, 4 * half + 4):
                a('v_mfma_f32_16x16x32_bf16 %s, %s, %s, %s' % (v(O + 4 * e, 4), v(SP, 4), v(T + 4 * (e & 3), 4), v(O + 4 * e, 4)))
        a('s_branch L_dyn')

    def stream_body(s, ng, NL, tag):
        a = s.a
        SP, O, T, BUF, NB, W, W2 = s.SP, s.O, s.T, s.BUF, s.NB, s.W, s.W2
        QF = T; TU = T + 8
        nk = 8 * ng
        def addr(j, full):
            blk = j % nk
            imm = (blk & 3) * 1024
            if blk >= nk - 4: base, o = sLAST, 0
            elif blk >= nk - 8: base, o = sL0, 0
            else: base, o = 's7', (blk >> 3) * 65536 + ((blk >> 2) & 1) * 32768
            if full: o += imm; imm = 0
            a('s_add_u32 %s, %s, 0x%x' % (sT0, base, o))
            return imm
        for j in range(16, NB):
            o = addr(j, False)
            a('s_waitcnt vmcnt(%d)' % (W - 1))
            a('buffer_load_dwordx4 %s, %s, %s, %s offen offset:%d %s' % (v(BUF + 4 * j, 4), 'v1' if j < nk else 'v2',
                                                                        SRD_K if j < nk else SRD_V, sT0, o, s.nt))
            if j == s.kq: s.signal(CNT_K)
        if NL:
            a('s_mul_i32 %s, s3, %d' % (sT1, NL * 1024))
            a('s_add_u32 %s, %s, %d' % (sT1, sT1, L_W2))
            for i in range(NL):
                j = NB + i
                addr(j, True)
                a('s_add_u32 m0, %s, %d' % (sT1, i * 1024))
                a('s_waitcnt vmcnt(%d)' % (W - 1))
                a('buffer_load_dwordx4 %s, %s, %s offen %s lds' % ('v1' if j < nk else 'v2', SRD_K if j < nk else SRD_V, sT0, s.nt))
        s.stamp(1)
        LQ = 'L_st_qw' + tag
        a('s_cmp_ge_u32 s3, 4')
        a('s_cbranch_scc1 %s' % LQ)
        s.q_wait(s.O)
        a.label(LQ)
        s.wait_lds(CNT_Q, 4, sleep=2)
        s.stamp(2)
        a('ds_read_b128 %s, v5 offset:%d' % (v(s.T, 4), L_Q))
        a('ds_read_b128 %s, v5 offset:%d' % (v(s.T + 4, 4), L_Q + 32))
        if NL:
            a('s_mul_i32 %s, s3, %d' % (sT1, NL * 1024))
            a('s_add_u32 %s, %s, %d' % (sT1, sT1, L_W2))
            a('v_add_u32 v4, %s, v2' % sT1)
        issued = [NB + NL]
        where = {j: BUF + 4 * j for j in range(NB)}
        free = []
        pend = [False]; tk = [False]
        def slot(j): return where[j]
        def inlds(j): return NB <= j < NB + NL
        def landed(j):
            a('s_waitcnt vmcnt(%d)' % (issued[0] - 1 - j))
        def stage(j):
            r = free.pop(0); where[j] = r
            landed(j)
            a('ds_read_b128 %s, v4 offset:%d' % (v(r, 4), (j - NB) * 1024))
            pend[0] = True
        def issue():
            j = issued[0]
            r = free.pop(0); where[j] = r
            o = addr(j, False)
            a('s_waitcnt vmcnt(%d)' % (W2 - 1))
            a('buffer_load_dwordx4 %s, %s, %s, %s offen offset:%d %s' % (v(r, 4), 'v1' if j < nk else 'v2',
                                                                        SRD_K if j < nk else SRD_V, sT0, o, s.nt))
            issued[0] += 1
        def need(j0, j1):
            for j in range(j0, j1 + 1):
                if j not in where:
                    assert free, (ng, NL, j)
                    if inlds(j): stage(j)
                    else:
                        assert j == issued[0]
                        issue()
            top = max([j for j in range(j0, j1 + 1) if not inlds(j)], default=None)
            if top is not None: landed(top)
            if pend[0] and any(inlds(j) for j in range(j0, j1 + 1)):
                a('s_waitcnt lgkmcnt(0)'); pend[0] = False
        def done(j0, j1, look):
            for j in range(j0, j1 + 1): free.append(where[j])
            for j in range(j1 + 1, j1 + 1 + look):
                if inlds(j) and j not in where and free: stage(j)
            while free and issued[0] < 2 * nk:
                un = [j for j in range(NB, NB + NL) if j not in where]
                unk = [j for j in un if j < nk]; unv = [j for j in un if j >= nk]
                kleft = len([j for j in range(j1 + 1, nk) if j in where])
                res = min(len(unk), 2) + max(0, len(unv) - kleft)
                if len(free) <= res: break
                issue()
        a('s_waitcnt lgkmcnt(0)')
        npair = 4 * ng
        def qk_post(n):
            D = O + 16 * (n & 1)
            for bb in range(2):
                d0 = D + 8 * bb; d1 = d0 + 4
                t, u = TU + 2 * bb, TU + 2 * bb + 1
                a('v_add_f32 %s, %s, %s' % (v(t), v(d0), v(d1 + 2)))
                a('v_add_f32 %s, %s, %s' % (v(u), v(d0 + 1), v(d1 + 3)))
            a('v_add_f32_dpp %s, %s, %s row_ror:8 row_mask:0xf bank_mask:0x3' % (v(SP + n), v(TU + 1), v(TU)))
            a('v_add_f32_dpp %s, %s, %s row_ror:8 row_mask:0xf bank_mask:0xc' % (v(SP + n), v(TU + 2), v(TU + 3)))
        for n in range(npair):
            need(2 * n, 2 * n + 1)
            D = O + 16 * (n & 1)
            for bb in range(2):
                for m in range(2):
                    a('v_mfma_f32_16x16x32_bf16 %s, %s, %s, 0' % (v(D + 8 * bb + 4 * m, 4), v(slot(2 * n + bb), 4), v(QF + 4 * m, 4)))
            if n > 0: qk_post(n - 1)
            done(2 * n, 2 * n + 1, 2 if n < npair - 4 else 8)
        qk_post(npair - 1)
        s.stamp(3)
        for n in range(0, npair, 2):
            t = O + (n >> 1)
            s.rnd2(SP + n, SP + n + 1, t)
            a('v_mul_f32 %s, %s, %s' % (v(SP + n), sC0, v(SP + n)))
            a('v_mul_f32 %s, %s, %s' % (v(SP + n + 1), sC0, v(SP + n + 1)))
            s.rnd2(SP + n, SP + n + 1, t)
        a('v_max3_f32 v6, %s, %s, %s' % (v(SP), v(SP + 1), v(SP + 2)))
        for n in range(3, npair - 1, 2):
            a('v_max3_f32 v6, v6, %s, %s' % (v(SP + n), v(SP + n + 1)))
        a('v_max_f32 v6, v6, %s' % v(SP + npair - 1))
        s.bfly('v_max_f32', [6], [5], [8, 16, 32])
        a('v_mul_f32 v5, %s, v6' % sC1)
        for n in range(npair):
            a('v_fma_f32 %s, %s, %s, -v5' % (v(SP + n), v(SP + n), sC1))
        for n in range(npair):
            a('v_exp_f32 %s, %s' % (v(SP + n), v(SP + n)))
        a('v_add_f32 v7, %s, %s' % (v(SP), v(SP + 1)))
        for n in range(2, npair):
            a('v_add_f32 v7, v7, %s' % v(SP + n))
        for G in range(ng):
            p = SP + 4 * G
            a('v_cvt_pk_bf16_f32 %s, %s, %s' % (v(p), v(p), v(p + 1)))
            a('v_cvt_pk_bf16_f32 %s, %s, %s' % (v(p + 1), v(p + 2), v(p + 3)))
        for G in range(ng):
            p = SP + 4 * G
            a('v_mov_b32_dpp %s, %s row_ror:8 row_mask:0xf bank_mask:0xf' % (v(p + 2), v(p)))
            a('v_mov_b32_dpp %s, %s row_ror:8 row_mask:0xf bank_mask:0xf' % (v(p + 3), v(p + 1)))
        s.bfly('v_add_f32', [7], [5], [8, 16, 32])
        s.stamp(4)
        beta = [0, 2, 4, 6, 1, 3, 5, 7]
        for G in range(ng):
            if s.PS and G == ng - s.tkg and (NL or s.s3dyn):
                tk[0] = True
                s.first_ticket()
            need(nk + 8 * G, nk + 8 * G + 7)
            src = [slot(nk + 8 * G + beta[t]) for t in range(8)]
            for half in range(2):
                for e in range(4 * half, 4 * half + 4):
                    for j in range(4):
                        a('v_perm_b32 %s, %s, %s, %s' % (v(T + 4 * (e & 3) + j), v(src[2 * j + 1] + (e >> 1)), v(src[2 * j] + (e >> 1)),
                                                         sSELHI if e & 1 else sSELLO))
                for e in range(4 * half, 4 * half + 4):
                    c = '0' if G == 0 else v(O + 4 * e, 4)
                    a('v_mfma_f32_16x16x32_bf16 %s, %s, %s, %s' % (v(O + 4 * e, 4), v(SP + 4 * G, 4), v(T + 4 * (e & 3), 4), c))
            done(nk + 8 * G, nk + 8 * G + 7, 8)
        pass

    def stream_fin(s):
        a = s.a
        O = s.O
        s.stamp(5)
        a('s_lshl_b32 %s, s3, 12' % sT0)
        a('v_add_u32 v5, %s, v2' % sT0)
        a('v_lshlrev_b32 v4, 6, v0')
        a('s_lshl_b32 %s, s3, 3' % sT1)
        a('v_add_u32 v4, %s, v4' % sT1)
        s.ex('lo32')
        for e in range(8):
            a('ds_write_b128 v5, %s offset:%d' % (v(O + 4 * e, 4), L_OB + 512 * e))
        s.ex(0xff)
        a('ds_write_b64 v4, v[6:7] offset:%d' % L_ML)
        s.ex(-1)
        a('s_lshl_b32 %s, s3, 6' % sT0)
        a('v_mov_b32 v5, %s' % sT0)
        ML = 76; OB = 92; F = 108; G_ = 116
        for k in (1, 3, 5, 7): a('v_mov_b32 %s, %s' % (v(G_ + k), sTAG))
        a('s_mov_b32 %s, 1' % sT0); a('s_mov_b32 %s, 1' % sT1)
        s.lds_spin(['ds_read_b128 %s, v5 offset:%d' % (v(ML + 4 * k, 4), L_ML + 16 * k) for k in range(4)],
                   [ML + 2 * w + 1 for w in range(8)], 4, sleep=s.finsleep)
        for w in range(8):
            a('ds_read2st64_b32 %s, v24 offset0:%d offset1:%d' % (v(OB + 2 * w, 2), 16 * w, 16 * w + 2))
        if s.finst: s.stamp(1)
        M = G_ + 4
        a('v_max3_f32 %s, %s, %s, %s' % (v(M), v(ML), v(ML + 2), v(ML + 4)))
        a('v_max3_f32 %s, %s, %s, %s' % (v(M), v(M), v(ML + 6), v(ML + 8)))
        a('v_max3_f32 %s, %s, %s, %s' % (v(M), v(M), v(ML + 10), v(ML + 12)))
        a('v_max_f32 %s, %s, %s' % (v(M), v(M), v(ML + 14)))
        for w in range(8): a('v_sub_f32 %s, %s, %s' % (v(F + w), v(ML + 2 * w), v(M)))
        for w in range(8): a('v_mul_f32 %s, %s, %s' % (v(F + w), sC1, v(F + w)))
        for w in range(8): a('v_exp_f32 %s, %s' % (v(F + w), v(F + w)))
        Ls = G_ + 6
        a('v_mul_f32 %s, %s, %s' % (v(Ls), v(F), v(ML + 1)))
        for w in range(1, 8): a('v_fmac_f32 %s, %s, %s' % (v(Ls), v(F + w), v(ML + 2 * w + 1)))
        a('s_waitcnt lgkmcnt(0)')
        a('v_mul_f32 %s, %s, %s' % (v(G_), v(F), v(OB)))
        a('v_mul_f32 %s, %s, %s' % (v(G_ + 2), v(F), v(OB + 1)))
        for w in range(1, 8):
            a('v_fmac_f32 %s, %s, %s' % (v(G_), v(F + w), v(OB + 2 * w)))
            a('v_fmac_f32 %s, %s, %s' % (v(G_ + 2), v(F + w), v(OB + 2 * w + 1)))
        if s.finst: s.stamp(2)
        s.st_ws(G_, 'v25', 's82')
        s.ex('s[64:65]')
        s.st_ws(G_ + 4, 'v26', 's83')
        s.ex(-1)
        s.signal(CNT_PUB)
        s.stamp(6)
        a('s_cmp_ge_u32 %s, 48' % sU)
        a('s_cbranch_scc1 L_s1c')
        a('s_cbranch_execz L_w2')
        a('s_sub_u32 %s, %s, 8' % (sT0, sU))
        a('s_cmp_ge_u32 %s, 14' % sT0)
        a('s_cbranch_scc1 L_end')
        a('s_cmp_ge_u32 s3, 4')
        a('s_cbranch_scc1 L_end')
        a.label('L_w2')
        s.w2_stream()
        a.label('L_s1c')
        s.s1_combine()

    def s1_combine(s):
        a = s.a
        a.c('---------------- S1 combine (stream waves of u 48..63): wave w merges 8 dims of half a head over the 64 WGs of the kv head')
        a('s_lshl_b32 %s, %s, 4' % (sJ, sG))
        a('s_add_u32 %s, %s, %s' % (sJ, sJ, sU))
        a('s_sub_u32 %s, %s, 48' % (sJ, sJ))
        a('s_lshl_b32 %s, %s, 15' % (sC2, sJ))
        a('s_lshr_b32 %s, s3, 1' % sT0)
        a('s_lshl_b32 %s, %s, 13' % (sT0, sT0))
        a('s_add_u32 %s, %s, %s' % (sC2, sC2, sT0))
        a('s_and_b32 %s, s3, 1' % sT0)
        a('s_lshl_b32 %s, %s, 6' % (sT0, sT0))
        a('s_add_u32 %s, %s, %s' % (sC2, sC2, sT0))
        a('s_add_u32 %s, %s, 0x%x' % (sC2, sC2, OFF_O))
        a('s_add_u32 %s, %s, 4096' % (sC3, sC2))
        a('s_lshl_b32 %s, %s, 10' % (sC0, sJ))
        a('s_add_u32 %s, %s, 0x%x' % (sC0, sC0, OFF_ML))
        a('v_lshrrev_b32 v5, 2, v0')
        a('v_lshlrev_b32 v6, 2, v5')
        a('v_lshlrev_b32 v5, 7, v5')
        a('v_and_b32 v7, 3, v0')
        a('v_lshl_add_u32 v5, v7, 4, v5')
        a('v_lshlrev_b32 v7, 2, v7')
        a('s_lshl_b32 %s, s3, 4' % sT0)
        a('v_add_u32 v7, %s, v7' % sT0)
        P = 8; MLr = 24; W_ = 28
        s.wait_lds(CNT_PUB, 8)
        s.stamp(4)
        s.ppoll([(MLr, 'v2', sC0, 0)] + [(P + 4 * k, 'v5', sC2 if k < 2 else sC3, (k & 1) * 2048) for k in range(4)], s.pd)
        s.stamp(3)
        Mx, Fx, Lx, T_, FF, A0 = W_, W_ + 1, W_ + 2, W_ + 3, W_ + 4, W_ + 8
        a('v_mov_b32 %s, %s' % (v(Mx), v(MLr)))
        s.bfly('v_max_f32', [Mx], [T_], [1, 2, 4, 8, 16, 32])
        a('v_sub_f32 %s, %s, %s' % (v(Fx), v(MLr), v(Mx)))
        a('v_mul_f32 %s, %s, %s' % (v(Fx), sC1, v(Fx)))
        a('v_exp_f32 %s, %s' % (v(Fx), v(Fx)))
        for k in range(4):
            a('ds_bpermute_b32 %s, v6, %s offset:%d' % (v(FF + k), v(Fx), 64 * k))
        a('v_mul_f32 %s, %s, %s' % (v(Lx), v(MLr + 2), v(Fx)))
        s.bfly('v_add_f32', [Lx], [T_], [1, 2, 4, 8, 16, 32])
        a('v_rcp_f32 %s, %s' % (v(Mx), v(Lx)))
        a('s_waitcnt lgkmcnt(0)')
        a('v_mul_f32 %s, %s, %s' % (v(A0), v(P), v(FF)))
        a('v_mul_f32 %s, %s, %s' % (v(A0 + 1), v(P + 2), v(FF)))
        for k in range(1, 4):
            a('v_fmac_f32 %s, %s, %s' % (v(A0), v(P + 4 * k), v(FF + k)))
            a('v_fmac_f32 %s, %s, %s' % (v(A0 + 1), v(P + 4 * k + 2), v(FF + k)))
        for st in (4, 8):
            for r_ in (A0, A0 + 1):
                a('v_add_f32_dpp %s, %s, %s row_ror:%d row_mask:0xf bank_mask:0xf' % (v(r_), v(r_), v(r_), st))
        s.bfly('v_add_f32', [A0, A0 + 1], [A0 + 2, A0 + 3], [16, 32])
        s.div([A0, A0 + 1], Lx, Mx, [A0 + 2, A0 + 3])
        a('v_cvt_pk_bf16_f32 %s, %s, %s' % (v(A0), v(A0), v(A0 + 1)))
        s.ex(0xf)
        a('ds_write_b32 v7, %s offset:%d' % (v(A0), L_O))
        s.ex(-1)
        a('s_branch L_end')

    def gemvR_setup(s, xbase):
        a = s.a
        a('v_lshrrev_b32 v1, 5, v0')
        a('v_lshlrev_b32 v1, 4, v1')
        a('v_add_u32 v1, %s, v1' % xbase)
        a('v_lshrrev_b32 v4, 4, v0')
        a('v_xor_b32 v4, v4, v0')
        a('v_and_b32 v4, 1, v4')
        a('v_cmp_eq_u32 vcc, 0, v4')
        a('v_mov_b32 v4, %d' % L_ZERO)
        a('v_cndmask_b32 v1, v4, v1, vcc')
        a('v_lshrrev_b32 v4, 4, v0')
        a('v_cmp_eq_u32 %s, 1, v4' % sM0)
        a('v_cmp_eq_u32 %s, 2, v4' % sM1)
        a('v_cmp_eq_u32 s[82:83], 3, v4')
    def gemvR_publish(s, acc, voff):
        a = s.a
        G = s.R[3] + 16
        for mu in range(2):
            for k in range(2):
                d = G + 4 * mu + 2 * k
                a('v_cndmask_b32 %s, %s, %s, %s' % (v(d), v(acc[k] + mu), v(acc[2 + k] + mu), sM0))
                a('v_cndmask_b32 %s, %s, %s, %s' % (v(d), v(d), v(acc[4 + k] + mu), sM1))
                a('v_cndmask_b32 %s, %s, %s, %s' % (v(d), v(d), v(acc[6 + k] + mu), 's[82:83]'))
                a('v_mov_b32 %s, %s' % (v(d + 1), sTAG))
        s.st_ws(G, voff, sC2)
        s.st_ws(G + 4, voff, sC3)
    def w2_voff(s):
        a = s.a
        a('v_lshrrev_b32 v1, 5, v0')
        a('v_lshlrev_b32 v1, 14, v1')
        a('v_and_b32 v4, 31, v0')
        a('v_lshl_add_u32 v1, v4, 4, v1')
        a('s_lshl_b32 s7, %s, 17' % sJ)
        a('s_lshl_b32 %s, %s, 9' % (sT0, sR))
        a('s_add_u32 s7, s7, %s' % sT0)

    def w2_stream(s):
        a = s.a
        a.c('---------------- W2 (stream waves 0..3 of S3 WGs): hh = gelu(.), partial out = hh @ w2[64 rows, 256 cols per wave]')
        F = s.R[3]
        TB = [s.X] + s.R[:3]
        a('s_mul_i32 %s, %s, 14' % (sJ, sG))
        a('s_add_u32 %s, %s, %s' % (sJ, sJ, sU))
        a('s_sub_u32 %s, %s, 8' % (sJ, sJ))
        s.srd(SRD_W, P_W2, 3584 * 2048)
        if s.w2late:
            s.w2_voff()
            s.wait_lds(CNT_PUB, 8, sleep=1)
            s.tile_load(4, 'v1', 's7', 16 * 2048, 2048, s.w2pace)
            s.tile_transpose(4)
            s.wait_lds(CNT_W, 4, sleep=1)
        else:
            a('s_cbranch_execz L_w2a')
            a('s_cmp_lg_u32 s3, 3')
            a('s_cbranch_scc1 L_w2a')
            s.w2_voff()
            for t in range(8):
                a('s_add_u32 %s, s7, 0x%x' % (sT0, 3 * 16 * 2048 + t * 2048))
                a('buffer_load_dwordx4 %s, v1, %s, %s offen %s' % (v(F + 4 * t, 4), SRD_W, sT0, s.nt))
            a.label('L_w2a')
            s.wait_lds(CNT_W, 4, sleep=1)
            a('s_lshl_b32 %s, s3, 15' % sT0)
            a('s_add_u32 %s, %s, %d' % (sT0, sT0, L_W2))
            a('v_add_u32 v5, %s, v2' % sT0)
            for b in range(3):
                for e in range(8):
                    a('ds_read_b128 %s, v5 offset:%d' % (v(TB[b] + 4 * e, 4), 8192 * b + 1024 * e))
            a('s_cbranch_execz L_w2b')
            a('s_cmp_eq_u32 s3, 3')
            a('s_cbranch_scc1 L_w2c')
            a.label('L_w2b')
            for e in range(8):
                a('ds_read_b128 %s, v5 offset:%d' % (v(TB[3] + 4 * e, 4), 8192 * 3 + 1024 * e))
            a('s_cbranch_execnz L_w2d')
            a.label('L_w2c')
            s.vmwait(0)
            for e in range(8):
                for j in range(4):
                    a('v_perm_b32 %s, %s, %s, %s' % (v(TB[3] + 4 * e + j), v(F + 4 * (2 * j + 1) + (e >> 1)),
                                                     v(F + 4 * (2 * j) + (e >> 1)), sSELHI if e & 1 else sSELLO))
            a.label('L_w2d')
        a('s_lshl_b32 %s, s3, 7' % sT1)
        a('s_add_u32 %s, %s, %d' % (sT1, sT1, L_H))
        s.gemvR_setup(sT1)
        a('v_and_b32 v6, 15, v0')
        a('v_lshlrev_b32 v6, 3, v6')
        a('ds_read_b64 %s, v6 offset:%d' % (v(F + 30, 2), L_B1))
        a('v_add_u32 v6, %s, v6' % sT1)
        a('v_bfe_u32 v7, v0, 2, 2')
        a('v_mul_u32_u24 v7, 14336, v7')
        a('v_and_b32 v4, 3, v0')
        a('v_mul_u32_u24 v4, 3584, v4')
        a('v_add_u32 v7, v7, v4')
        a('v_lshrrev_b32 v4, 4, v0')
        a('v_lshl_add_u32 v7, v4, 4, v7')
        a('s_mul_i32 %s, s3, %d' % (sC2, 8 * 14336))
        a('s_lshl_b32 %s, %s, 6' % (sT0, sJ))
        a('s_add_u32 %s, %s, %s' % (sC2, sC2, sT0))
        a('s_add_u32 %s, %s, 0x%x' % (sC2, sC2, OFF_HH))
        a('s_add_u32 %s, %s, %d' % (sC3, sC2, 4 * 14336))
        a('s_mov_b32 %s, %s' % (sC0, f32(0.044715)))
        a('s_mov_b32 %s, %s' % (sC1, f32(-2.0 * math.sqrt(2.0 / math.pi) * math.log2(math.e))))
        a('s_waitcnt lgkmcnt(0)')
        B1 = F + 24; D = F + 16; TMP = F; T = F + 20
        s.unpack(F + 30, B1, B1 + 1); s.unpack(F + 31, B1 + 2, B1 + 3)
        s.gemvC_gather(4, D, TMP, spin=True)
        s.stamp(1)
        s.rnd2(D, D + 1, T); s.rnd2(D + 2, D + 3, T + 1)
        for c in range(4): a('v_add_f32 %s, %s, %s' % (v(D + c), v(D + c), v(B1 + c)))
        s.rnd2(D, D + 1, T); s.rnd2(D + 2, D + 3, T + 1)
        for c in range(4): a('v_mul_f32 %s, %s, %s' % (v(T + c), v(D + c), v(D + c)))
        for c in range(4): a('v_mul_f32 %s, %s, %s' % (v(T + c), v(T + c), v(D + c)))
        for c in range(4): a('v_fma_f32 %s, %s, %s, %s' % (v(T + c), v(T + c), sC0, v(D + c)))
        for c in range(4): a('v_mul_f32 %s, %s, %s' % (v(T + c), sC1, v(T + c)))
        for c in range(4): a('v_exp_f32 %s, %s' % (v(T + c), v(T + c)))
        for c in range(4): a('v_add_f32 %s, 1.0, %s' % (v(T + c), v(T + c)))
        for c in range(4): a('v_rcp_f32 %s, %s' % (v(T + c), v(T + c)))
        for c in range(4): a('v_mul_f32 %s, %s, %s' % (v(D + c), v(D + c), v(T + c)))
        a('v_cvt_pk_bf16_f32 %s, %s, %s' % (v(T), v(D), v(D + 1)))
        a('v_cvt_pk_bf16_f32 %s, %s, %s' % (v(T + 1), v(D + 2), v(D + 3)))
        s.ex(0xffff)
        a('ds_write_b64 v6, %s' % v(T, 2))
        s.ex(-1)
        acc = s.tile_mfma(4, 'v1', 32)
        s.gemvR_publish(acc, 'v7')
        s.seg_end()
        a('s_branch L_end')

    def role(s):
        a = s.a
        a.c('---------------- role wave')
        a('s_setprio 2')
        a('s_sub_u32 %s, s3, 8' % sR)
        a('v_lshlrev_b32 v4, 2, v0')
        a('ds_write_b32 v4, v3')
        for r_ in range(4): a('v_mov_b32 v%d, -1' % (8 + r_))
        a('ds_write_b128 v2, v[8:11] offset:%d' % L_RED)
        a('ds_write_b128 v2, v[8:11] offset:%d' % (L_RED + 1024))
        a('s_waitcnt lgkmcnt(0)')
        a('s_add_u32 %s, %s, 1' % (sTAG, sTAG))
        a('s_barrier')
        a('s_mov_b32 %s, 0' % sPASS)
        for r_ in (16, 17, 18, 20): a('v_mov_b32 v%d, 0' % r_)
        a('s_cmp_lt_u32 %s, 8' % sU)
        a('s_cbranch_scc1 L_mod')
        a('s_cmp_lt_u32 %s, 24' % sU)
        a('s_cbranch_scc1 L_p1a')
        a('s_cmp_lt_u32 %s, 28' % sU)
        a('s_cbranch_scc1 L_p1b')
        a('s_cmp_lt_u32 %s, 32' % sU)
        a('s_cbranch_scc1 L_mod')
        a('s_cmp_lt_u32 %s, 48' % sU)
        a('s_cbranch_scc1 L_p2')
        a.label('L_p1a'); s.p1a_role()
        a.label('L_p1b'); s.p1b_role()
        a.label('L_mod'); s.mod_role()
        a.label('L_p2'); s.p2_role()
        a.label('L_s1'); s.s1_role()
        a.label('L_s2'); s.s2_role()
        a.label('L_s3'); s.s3_role()
        a.label('L_warm_stream')
        s.warm_stream(20)
        a('s_branch L_end')

    def warm_stream(s, rid):
        if not s.dry: return
        s.dry_call('L_st_fin', rid)

    def gemvC_setup(s, ptr, pitch, nbytes, colbyte_sgpr, pace=0):
        a = s.a
        s.srd(SRD_W, ptr, nbytes)
        a('v_lshrrev_b32 v1, 3, v0')
        a('v_mul_u32_u24 v1, %d, v1' % (8 * pitch))
        a('v_and_b32 v4, 7, v0')
        a('v_lshl_add_u32 v1, v4, 4, v1')
        a('s_mul_i32 s7, %s, %d' % (sR, 256 * pitch))
        a('s_add_u32 s7, s7, %s' % colbyte_sgpr)
        s.tile_load(4, 'v1', 's7', 64 * pitch, pitch, pace)
    def afragC_addr(s):
        a = s.a
        a('v_lshrrev_b32 v1, 4, v0')
        a('v_lshlrev_b32 v1, 5, v1')
        a('v_and_b32 v4, 1, v0')
        a('v_lshl_add_u32 v1, v4, 4, v1')
        a('s_lshl_b32 %s, %s, 9' % (sT0, sR))
        a('s_add_u32 %s, %s, %d' % (sT0, sT0, L_X))
        a('v_add_u32 v1, %s, v1' % sT0)
    def xw_addr(s, dst):
        a = s.a
        a('s_lshl_b32 %s, %s, 9' % (sT0, sR))
        a('s_add_u32 %s, %s, %d' % (sT0, sT0, L_X))
        a('v_lshlrev_b32 %s, 3, v0' % dst)
        a('v_add_u32 %s, %s, %s' % (dst, sT0, dst))
    def q_wait(s, F, sleep=None):
        a = s.a
        a('s_lshl_b32 %s, s2, 12' % sC2)
        a('s_lshl_b32 %s, %s, 10' % (sT0, sR))
        a('s_add_u32 %s, %s, %s' % (sC2, sC2, sT0))
        a('s_add_u32 %s, %s, 0x%x' % (sC2, sC2, OFF_Q))
        s.poll([(F, 'v2', sC2, 0)], sleep=s.qsleep if sleep is None else sleep)
        a('v_mov_b32 %s, %s' % (v(F + 1), v(F + 2)))
        a('s_lshl_b32 %s, %s, 9' % (sT0, sR))
        a('v_lshlrev_b32 v4, 3, v0')
        a('v_add_u32 v4, %s, v4' % sT0)
        a('ds_write_b64 v4, %s offset:%d' % (v(F, 2), L_Q))
        s.signal(CNT_Q)

    def mod_role(s):
        a = s.a
        a.c('---------------- M2: mod slice = silu(c) @ w_mod[:, 64 cols]; S2 WGs (u 0..7): block 32+8g+u ; M WGs (u 24..31): block 64+8g+u-24')
        a('s_lshl_b32 %s, %s, 3' % (sT0, sG))
        a('s_add_u32 %s, %s, %s' % (sT0, sT0, sU))
        a('s_add_u32 %s, %s, 32' % (sT1, sT0))
        a('s_add_u32 %s, %s, 40' % (sT0, sT0))
        a('s_cmp_ge_u32 %s, 24' % sU)
        a('s_cselect_b32 %s, %s, %s' % (sJ, sT0, sT1))
        s.wait_lds(CNT_K, s.kqn, sleep=2)
        a('s_lshl_b32 %s, %s, 9' % (sT0, sR))
        a('v_lshlrev_b32 v4, 3, v0')
        a('v_add_u32 v4, %s, v4' % sT0)
        a('global_load_dwordx2 v[6:7], v4, %s' % sp(P_C))
        a('s_lshl_b32 %s, %s, 7' % (sT1, sJ))
        s.gemvC_setup(P_WM, 12288, 1024 * 12288, sT1, s.Wt)
        a('s_waitcnt vmcnt(32)')
        s.silu()
        s.afragC_addr()
        s.tile_transpose(4)
        s.stamp(1)
        acc = s.tile_mfma(4, 'v1', 128)
        s.gemvC_partial(acc, sR)
        s.signal(CNT_R1)
        s.wait_lds(CNT_R1, 4)
        D = 8; TMP = 16; G = 12
        s.gemvC_gather(4, D, TMP)
        s.mk_granule(G, D)
        a('v_and_b32 v5, 15, v0')
        a('v_lshlrev_b32 v5, 4, v5')
        a('v_lshrrev_b32 v6, 4, v0')
        a('s_lshl_b32 %s, %s, 4' % (sT0, sR))
        a('v_add_u32 v6, %s, v6' % sT0)
        a('s_cmp_lt_u32 %s, 48' % sJ)
        a('s_cbranch_scc1 L_pub_g')
        a('s_cmp_ge_u32 %s, 80' % sJ)
        a('s_cbranch_scc1 L_pub_g')
        a('s_sub_u32 %s, %s, 48' % (sT0, sJ))
        a('s_lshl_b32 %s, %s, 8' % (sT0, sT0))
        a('s_add_u32 %s, %s, 0x%x' % (sT0, sT0, OFF_SBCB))
        for k in range(4):
            a('v_add_u32 v7, %d, v6' % (4 * k))
            a('v_min_u32 v7, 55, v7')
            a('v_lshl_add_u32 v7, v7, 13, v5')
            s.st_ws(G, 'v7', sT0)
        a('s_branch L_pub_done')
        a.label('L_pub_g')
        a('s_cmp_lg_u32 %s, 0' % sR)
        a('s_cbranch_scc1 L_pub_done')
        a('s_and_b32 %s, %s, 15' % (sT0, sJ))
        a('s_lshl_b32 %s, %s, 9' % (sT0, sT0))
        a('s_cmp_ge_u32 %s, 80' % sJ)
        a('s_cselect_b32 %s, 128, 0' % sT1)
        a('s_add_u32 %s, %s, %s' % (sT0, sT0, sT1))
        a('s_add_u32 %s, %s, 0x%x' % (sT0, sT0, OFF_G))
        a('v_bfe_u32 v7, v0, 3, 1')
        a('v_lshlrev_b32 v7, 8, v7')
        a('v_and_b32 v6, 7, v0')
        a('v_lshl_add_u32 v7, v6, 4, v7')
        s.ex(0xffff)
        s.st_ws(G, 'v7', sT0)
        s.ex(-1)
        a.label('L_pub_done')
        s.stamp(2)
        a('s_cmp_lt_u32 %s, 8' % sU)
        a('s_cbranch_scc1 L_s2')
        a('s_branch L_warm_stream')

    def silu(s):
        a = s.a; X = s.X
        s.unpack(6, X, X + 1); s.unpack(7, X + 2, X + 3)
        a('s_mov_b32 %s, 0x%x' % (sC1, LOG2E))
        for c in range(4): a('v_mul_f32 %s, %s, -%s' % (v(X + 4 + c), sC1, v(X + c)))
        for c in range(4): a('v_min_f32 %s, %s, %s' % (v(X + 4 + c), f32(120.0), v(X + 4 + c)))
        for c in range(4): a('v_exp_f32 %s, %s' % (v(X + 4 + c), v(X + 4 + c)))
        for c in range(4): a('v_add_f32 %s, 1.0, %s' % (v(X + 4 + c), v(X + 4 + c)))
        for c in range(4): a('v_rcp_f32 %s, %s' % (v(X + 8 + c), v(X + 4 + c)))
        for c in range(4): s.div([X + c], X + 4 + c, X + 8 + c, [X + 12, X + 13])
        a('v_cvt_pk_bf16_f32 v6, %s, %s' % (v(X), v(X + 1)))
        a('v_cvt_pk_bf16_f32 v7, %s, %s' % (v(X + 2), v(X + 3)))
        s.xw_addr('v4')
        a('ds_write_b64 v4, v[6:7]')

    def p1a_role(s):
        a = s.a
        a.c('---------------- P1a (u 8..23, 48..63): partial sa/ca block cb over rows 256g..256g+255 (one 64-row block per wave)')
        a('s_sub_u32 %s, %s, 8' % (sT0, sU))
        a('s_sub_u32 %s, %s, 32' % (sT1, sU))
        a('s_cmp_ge_u32 %s, 48' % sU)
        a('s_cselect_b32 %s, %s, %s' % (sJ, sT1, sT0))
        a('s_lshl_b32 %s, %s, 9' % (sT0, sG))
        a('v_lshlrev_b32 v4, 3, v0')
        a('v_add_u32 v4, %s, v4' % sT0)
        a('global_load_dwordx2 v[6:7], v4, %s' % sp(P_C))
        s.srd(SRD_W, P_WM, 1024 * 12288)
        a('v_lshrrev_b32 v1, 3, v0')
        a('v_mul_u32_u24 v1, %d, v1' % (8 * 12288))
        a('v_and_b32 v4, 7, v0')
        a('v_lshl_add_u32 v1, v4, 4, v1')
        a('s_lshl_b32 %s, %s, 2' % (sT0, sG))
        a('s_add_u32 %s, %s, %s' % (sT0, sT0, sR))
        a('s_mul_i32 s7, %s, %d' % (sT0, 64 * 12288))
        a('s_lshl_b32 %s, %s, 7' % (sT1, sJ))
        a('s_add_u32 s7, s7, %s' % sT1)
        s.tile_load(1, 'v1', 's7', 0, 12288)
        a('s_waitcnt vmcnt(%d)' % (0 if 12288 in s.skip else 8))
        s.silu()
        s.afragC_addr()
        a('s_lshl_b32 %s, %s, 7' % (sT0, sR))
        a('v_add_u32 v1, %s, v1' % sT0)
        a('s_and_b32 %s, %s, 15' % (sC2, sJ))
        a('s_lshl_b32 %s, %s, 12' % (sC2, sC2))
        a('s_lshr_b32 %s, %s, 4' % (sT0, sJ))
        a('s_lshl_b32 %s, %s, 11' % (sT0, sT0))
        a('s_add_u32 %s, %s, %s' % (sC2, sC2, sT0))
        a('s_lshl_b32 %s, %s, 9' % (sT0, sG))
        a('s_add_u32 %s, %s, %s' % (sC2, sC2, sT0))
        a('s_add_u32 %s, %s, 0x%x' % (sC2, sC2, OFF_P))
        a('v_lshlrev_b32 v7, 5, v0')
        a('s_add_u32 %s, %s, 8' % (sC3, sR))
        a('s_mov_b32 %s, 2048' % sC0)
        s.tile_transpose(1, landed=lambda: s.signal(CNT_T))
        acc = s.tile_mfma(1, 'v1', 128)
        s.gemvC_partial(acc, sC3)
        s.signal(CNT_R1)
        a('s_cmp_lg_u32 %s, 0' % sR)
        a('s_cbranch_scc1 L_p1a_done')
        s.wait_lds(CNT_R1, 4)
        D = 8; TMP = 16; G = 32
        s.gemvC_gather(4, D, TMP, slot0=sC0)
        for k in range(4):
            a('v_mov_b32 %s, %s' % (v(G + 2 * k), v(D + k)))
            a('v_mov_b32 %s, %s' % (v(G + 2 * k + 1), sTAG))
        s.ex(0xffff)
        s.st_ws(G, 'v7', sC2)
        s.st_ws(G + 4, 'v7', sC2, 16)
        s.ex(-1)
        a.label('L_p1a_done')
        s.stamp(3)
        a('s_cmp_ge_u32 %s, 48' % sU)
        a('s_cbranch_scc1 L_s1')
        a('s_cmp_lt_u32 %s, 22' % sU)
        a('s_cbranch_scc1 L_s3')
        a('s_branch L_warm_stream')

    def p1b_role(s):
        a = s.a
        a.c('---------------- P1b (u 24..27): sum partial sa/ca of 64 columns, h = LN(x)*(1+ca)+sa, send to the 64 P2 WGs')
        X = s.X; F = s.R[3]
        a('s_lshl_b32 %s, %s, 2' % (sJ, sG))
        a('s_add_u32 %s, %s, %s' % (sJ, sJ, sU))
        a('s_sub_u32 %s, %s, 24' % (sJ, sJ))
        a('v_lshlrev_b32 v4, 5, v0')
        a('global_load_dwordx4 %s, v4, %s' % (v(X, 4), sp(P_X)))
        a('global_load_dwordx4 %s, v4, %s offset:16' % (v(X + 4, 4), sp(P_X)))
        a('s_lshl_b32 %s, %s, 7' % (sT0, sJ))
        a('v_and_b32 v4, 31, v0')
        a('v_lshlrev_b32 v4, 2, v4')
        a('v_add_u32 v4, %s, v4' % sT0)
        a('global_load_dword v6, v4, %s' % sp(P_X))
        a('s_lshl_b32 %s, %s, 11' % (sT0, sG))
        a('s_add_u32 %s, %s, 0x%x' % (sT0, sT0, OFF_CNT))
        a('v_lshlrev_b32 v4, 8, v0')
        s.ex(0xff)
        a('buffer_store_dword v3, v4, %s, %s offen sc0 sc1' % (SRD_WS, sT0))
        s.ex(-1)
        a('s_waitcnt vmcnt(0)')
        U = X + 8; S1 = X + 24; S2 = X + 25
        for k in range(8): s.unpack(X + k, U + 2 * k, U + 2 * k + 1)
        a('v_add_f32 %s, %s, %s' % (v(S1), v(U), v(U + 1)))
        a('v_mul_f32 %s, %s, %s' % (v(S2), v(U), v(U)))
        a('v_fmac_f32 %s, %s, %s' % (v(S2), v(U + 1), v(U + 1)))
        for k in range(2, 16):
            a('v_add_f32 %s, %s, %s' % (v(S1), v(S1), v(U + k)))
            a('v_fmac_f32 %s, %s, %s' % (v(S2), v(U + k), v(U + k)))
        s.bfly('v_add_f32', [S1, S2], [X + 26, X + 27], [1, 2, 4, 8, 16, 32])
        MEAN, DD, RR = X + 28, X + 29, X + 30
        s.ln_stats(S1, S2, MEAN, DD, RR, X + 31)
        s.unpack(6, X, X + 1)
        s.ln_apply([X, X + 1], MEAN, DD, RR, [X + 4, X + 5])
        a('s_lshl_b32 %s, %s, 12' % (sC2, sJ))
        a('s_add_u32 %s, %s, 0x%x' % (sC2, sC2, OFF_P))
        a('v_and_b32 v5, 15, v0')
        a('v_lshlrev_b32 v6, 3, v5')
        a('v_lshlrev_b32 v5, 4, v5')
        a('v_lshrrev_b32 v7, 4, v0')
        a('v_lshl_add_u32 v7, v7, 12, v5')
        a('s_lshl_b32 %s, %s, 16' % (sC3, sR))
        a('s_lshl_b32 %s, %s, 8' % (sT0, sJ))
        a('s_add_u32 %s, %s, %s' % (sC3, sC3, sT0))
        a('s_add_u32 %s, %s, 0x%x' % (sC3, sC3, OFF_H))
        G = F + 16
        a('v_mov_b32 %s, %s' % (v(G + 1), sTAG))
        a('v_mov_b32 %s, %s' % (v(G + 3), sTAG))
        s.poll([(F + 4 * k, 'v2', sC2, 1024 * k) for k in range(4)], sleep=s.psleep)
        s.stamp(3)
        a('v_add_f32 %s, %s, %s' % (v(F), v(F), v(F + 4)))
        a('v_add_f32 %s, %s, %s' % (v(F + 1), v(F + 2), v(F + 6)))
        a('v_add_f32 %s, %s, %s' % (v(F + 2), v(F + 8), v(F + 12)))
        a('v_add_f32 %s, %s, %s' % (v(F + 3), v(F + 10), v(F + 14)))
        s.bfly('v_add_f32', [F, F + 1, F + 2, F + 3], [F + 4, F + 5, F + 6, F + 7], [32])
        s.rnd2(F, F + 1, F + 4); s.rnd2(F + 2, F + 3, F + 5)
        a('v_add_f32 %s, 1.0, %s' % (v(F + 2), v(F + 2)))
        a('v_add_f32 %s, 1.0, %s' % (v(F + 3), v(F + 3)))
        s.rnd2(F + 2, F + 3, F + 5)
        a('v_mul_f32 %s, %s, %s' % (v(F + 2), v(F + 2), v(X)))
        a('v_mul_f32 %s, %s, %s' % (v(F + 3), v(F + 3), v(X + 1)))
        s.rnd2(F + 2, F + 3, F + 5)
        a('v_add_f32 %s, %s, %s' % (v(F), v(F), v(F + 2)))
        a('v_add_f32 %s, %s, %s' % (v(F + 1), v(F + 1), v(F + 3)))
        a('v_cvt_pk_bf16_f32 %s, %s, %s' % (v(F), v(F), v(F + 1)))
        a('ds_bpermute_b32 %s, v6, %s' % (v(G), v(F)))
        a('ds_bpermute_b32 %s, v6, %s offset:4' % (v(G + 2), v(F)))
        a('s_waitcnt lgkmcnt(0)')
        for k in range(4):
            a('s_add_u32 %s, %s, 0x%x' % (sT1, sC3, 4 * k * 4096))
            s.st_ws(G, 'v7', sT1)
        s.stamp(4)
        a('s_branch L_mod')

    def p2_role(s):
        a = s.a
        a.c('---------------- P2 (wg 0..63): q slice = h @ wq[:, 64 cols]')
        F = s.R[3]; X = s.X
        a('s_lshl_b32 %s, %s, 4' % (sJ, sG))
        a('s_add_u32 %s, %s, %s' % (sJ, sJ, sU))
        a('s_sub_u32 %s, %s, 32' % (sJ, sJ))
        a('s_lshl_b32 %s, %s, 7' % (sT1, sJ))
        s.gemvC_setup(P_WQ, 8192, 1024 * 8192, sT1)
        s.afragC_addr()
        s.tile_transpose(4, landed=lambda: s.signal(CNT_T))
        s.stamp(1)
        a('s_lshl_b32 %s, %s, 12' % (sC2, sJ))
        a('s_lshl_b32 %s, %s, 10' % (sT0, sR))
        a('s_add_u32 %s, %s, %s' % (sC2, sC2, sT0))
        a('s_add_u32 %s, %s, 0x%x' % (sC2, sC2, OFF_H))
        s.xw_addr('v5')
        s.poll([(F, 'v2', sC2, 0)], sleep=s.psleep)
        s.stamp(4)
        a('v_mov_b32 %s, %s' % (v(F + 1), v(F + 2)))
        a('ds_write_b64 v5, %s' % v(F, 2))
        acc = s.tile_mfma(4, 'v1', 128)
        s.gemvC_partial(acc, sR)
        s.signal(CNT_R1)
        s.wait_lds(CNT_R1, 4)
        D = 8; TMP = 16; G = 12
        s.gemvC_gather(4, D, TMP)
        s.mk_granule(G, D)
        a('v_and_b32 v5, 15, v0')
        a('v_lshlrev_b32 v5, 4, v5')
        a('v_lshrrev_b32 v6, 4, v0')
        a('v_lshl_add_u32 v7, v6, 12, v5')
        a('s_lshr_b32 %s, %s, 4' % (sT0, sJ))
        a('s_lshl_b32 %s, %s, 18' % (sT0, sT0))
        a('s_lshl_b32 %s, %s, 16' % (sT1, sR))
        a('s_add_u32 %s, %s, %s' % (sT0, sT0, sT1))
        a('s_and_b32 %s, %s, 15' % (sT1, sJ))
        a('s_lshl_b32 %s, %s, 8' % (sT1, sT1))
        a('s_add_u32 %s, %s, %s' % (sT0, sT0, sT1))
        a('s_add_u32 %s, %s, 0x%x' % (sT0, sT0, OFF_Q))
        for k in range(4):
            a('s_add_u32 %s, %s, 0x%x' % (sT1, sT0, 4 * k * 4096))
            s.st_ws(G, 'v7', sT1)
        s.seg_end()
        s.stamp(2)
        a('s_branch L_warm_stream')

    def s1_role(s):
        a = s.a
        a.c('---------------- S1 (wg 64..127): combine half a head over 64 WGs, partial attn = o_slice @ wo[64 rows, :]')
        F = s.R[3]
        a('s_lshl_b32 %s, %s, 4' % (sJ, sG))
        a('s_add_u32 %s, %s, %s' % (sJ, sJ, sU))
        a('s_sub_u32 %s, %s, 48' % (sJ, sJ))
        if s.touch:
            a('s_lshl_b32 %s, %s, 15' % (sC2, sJ))
            a('s_lshl_b32 %s, %s, 13' % (sT0, sR))
            a('s_add_u32 %s, %s, %s' % (sC2, sC2, sT0))
            a('s_add_u32 %s, %s, 0x%x' % (sC2, sC2, OFF_O))
            a('s_add_u32 %s, %s, 4096' % (sC3, sC2))
            a('s_lshl_b32 %s, %s, 10' % (sC0, sJ))
            a('s_add_u32 %s, %s, 0x%x' % (sC0, sC0, OFF_ML))
            for k in range(8):
                a('buffer_load_dwordx4 %s, v2, %s, %s offen offset:%d sc1' % (v(F + 4 * k, 4), SRD_WS, sC2 if k < 4 else sC3, (k & 3) * 1024))
            a('buffer_load_dwordx4 %s, v2, %s, %s offen sc1' % (v(s.X, 4), SRD_WS, sC0))
            a('s_waitcnt vmcnt(0)')
        s.wait_lds(CNT_K, s.kqn, sleep=2)
        s.srd(SRD_W, P_WO, 4096 * 2048)
        s.w2_voff()
        s.tile_load(4, 'v1', 's7', 16 * 2048, 2048, s.Wt)
        s.tile_transpose(4)
        s.stamp(1)
        s.gemvR_setup('%d' % L_O)
        a('v_bfe_u32 v5, v0, 2, 2')
        a('v_lshlrev_b32 v5, 14, v5')
        a('v_and_b32 v6, 3, v0')
        a('v_lshl_add_u32 v5, v6, 12, v5')
        a('v_lshrrev_b32 v6, 4, v0')
        a('v_lshl_add_u32 v5, v6, 4, v5')
        a('s_lshl_b32 %s, %s, 17' % (sC2, sR))
        a('s_lshl_b32 %s, %s, 6' % (sT0, sJ))
        a('s_add_u32 %s, %s, %s' % (sC2, sC2, sT0))
        a('s_add_u32 %s, %s, 0x%x' % (sC2, sC2, OFF_A))
        a('s_add_u32 %s, %s, 0x10000' % (sC3, sC2))
        s.wait_lds(CNT_PUB, 8, sleep=1)
        s.stamp(4)
        acc = s.tile_mfma(4, 'v1', 32, spin=True)
        s.gemvR_publish(acc, 'v5')
        s.seg_end()
        s.stamp(6)
        a('s_branch L_end')

    def s2_role(s):
        a = s.a
        a.c("---------------- S2 (u 0..7): x1 slice (32 cols, 8 per wave); later out slice = x1 + gb*(sum of w2 partials + b2)")
        a('s_lshl_b32 %s, %s, 3' % (sJ, sG))
        a('s_add_u32 %s, %s, %s' % (sJ, sJ, sU))
        XA, GA, GB, B2, A1, A2, A3, XO, OO, P = 8, 10, 12, 14, 16, 17, 18, 19, 20, 24
        a('v_and_b32 %s, 3, v0' % v(XO))
        a('v_lshlrev_b32 %s, 2, %s' % (v(XO), v(XO)))
        a('s_lshl_b32 %s, %s, 4' % (sT0, sR))
        a('v_add_u32 %s, %s, %s' % (v(XO), sT0, v(XO)))
        a('s_lshl_b32 %s, %s, 6' % (sT1, sJ))
        a('v_add_u32 %s, %s, %s' % (v(OO), sT1, v(XO)))
        a('global_load_dword v6, %s, %s' % (v(OO), sp(P_X)))
        a('global_load_dword v7, %s, %s' % (v(OO), sp(P_B2)))
        a('v_and_b32 v5, 15, v0')
        a('v_lshlrev_b32 v4, 4, v5')
        a('s_lshl_b32 %s, %s, 8' % (sC2, sJ))
        a('s_add_u32 %s, %s, 0x%x' % (sC2, sC2, OFF_G))
        s.poll([(P, 'v4', sC2, 0)], sleep=s.nsleep)
        a('v_mov_b32 %s, %s' % (v(P + 1), v(P + 2)))
        a('v_lshlrev_b32 v5, 3, v5')
        a('ds_write_b64 v5, %s offset:%d' % (v(P, 2), L_G))
        a('ds_read_b32 %s, %s offset:%d' % (v(P + 4), v(XO), L_G))
        a('ds_read_b32 %s, %s offset:%d' % (v(P + 5), v(XO), L_G + 64))
        a('s_waitcnt lgkmcnt(0)')
        s.unpack(6, XA, XA + 1)
        s.unpack(7, B2, B2 + 1)
        s.unpack(P + 4, GA, GA + 1)
        s.unpack(P + 5, GB, GB + 1)
        a('v_lshrrev_b32 v5, 1, v0')
        a('v_and_b32 v4, 1, v0')
        a('v_lshlrev_b32 v4, 4, v4')
        a('v_add_u32 %s, 32, v5' % v(A2))
        a('v_min_u32 %s, 55, %s' % (v(A2), v(A2)))
        a('v_lshl_add_u32 %s, v5, 12, v4' % v(A1))
        a('v_lshl_add_u32 %s, %s, 12, v4' % (v(A2), v(A2)))
        a('v_add_u32 %s, 192, v0' % v(A3))
        a('v_min_u32 %s, 223, %s' % (v(A3), v(A3)))
        a('v_lshlrev_b32 %s, 4, %s' % (v(A3), v(A3)))
        s.stamp(1)
        s.warm_stream(40)
        if s.dry:
            s.dry_call('L_s2_seg', 4)
            a('s_lshl_b32 %s, %s, 3' % (sJ, sG))
            a('s_add_u32 %s, %s, %s' % (sJ, sJ, sU))
        a.label('L_s2_seg')
        a('s_lshl_b32 %s, %s, 14' % (sC2, sJ))
        a('s_lshl_b32 %s, %s, 12' % (sT0, sR))
        a('s_add_u32 %s, %s, %s' % (sC2, sC2, sT0))
        a('s_add_u32 %s, %s, 0x%x' % (sC2, sC2, OFF_A))
        a('s_lshl_b32 %s, %s, 7' % (sC3, sJ))
        a('s_lshl_b32 %s, %s, 5' % (sT0, sR))
        a('s_add_u32 %s, %s, %s' % (sC3, sC3, sT0))
        a('s_add_u32 %s, %s, 0x%x' % (sC3, sC3, OFF_X1))
        a('s_mul_i32 %s, %s, 14336' % (sC0, sJ))
        a('s_mul_i32 %s, %s, 3584' % (sT0, sR))
        a('s_add_u32 %s, %s, %s' % (sC0, sC0, sT0))
        a('s_add_u32 %s, %s, 0x%x' % (sC0, sC0, OFF_HH))
        s.wait_lds(CNT_PUB, 8, sleep=1)
        s.stamp(4)
        Q = P + 20
        def reduce():
            a('v_add_f32 %s, %s, %s' % (v(Q), v(P), v(P + 4)))
            a('v_add_f32 %s, %s, %s' % (v(Q + 1), v(P + 2), v(P + 6)))
            a('v_add_f32 %s, %s, %s' % (v(Q), v(Q), v(P + 8)))
            a('v_add_f32 %s, %s, %s' % (v(Q + 1), v(Q + 1), v(P + 10)))
        def reduce2():
            for st in (4, 8):
                for r in (Q, Q + 1):
                    a('v_add_f32_dpp %s, %s, %s row_ror:%d row_mask:0xf bank_mask:0xf' % (v(r), v(r), v(r), st))
            s.bfly('v_add_f32', [Q, Q + 1], [Q + 2, Q + 3], [16, 32])
            s.rnd2(Q, Q + 1, Q + 2)
        G = P + 16
        a('v_mov_b32 %s, %s' % (v(G + 1), sTAG))
        a('v_mov_b32 %s, %s' % (v(G + 3), sTAG))
        if s.s2sleep: a('s_sleep %d' % s.s2sleep)
        s.ppoll([(P + 4 * k, 'v2', sC2, 1024 * k) for k in range(4)], s.pd)
        s.stamp(5)
        reduce()
        a('v_add_f32 %s, %s, %s' % (v(Q), v(Q), v(P + 12)))
        a('v_add_f32 %s, %s, %s' % (v(Q + 1), v(Q + 1), v(P + 14)))
        reduce2()
        a('v_mul_f32 %s, %s, %s' % (v(Q), v(Q), v(GA)))
        a('v_mul_f32 %s, %s, %s' % (v(Q + 1), v(Q + 1), v(GA + 1)))
        s.rnd2(Q, Q + 1, Q + 2)
        a('v_add_f32 %s, %s, %s' % (v(Q), v(Q), v(XA)))
        a('v_add_f32 %s, %s, %s' % (v(Q + 1), v(Q + 1), v(XA + 1)))
        a('v_cvt_pk_bf16_f32 %s, %s, %s' % (v(Q + 2), v(Q), v(Q + 1)))
        a('v_mov_b32_dpp %s, %s quad_perm:[0,2,0,2] row_mask:0xf bank_mask:0xf' % (v(G), v(Q + 2)))
        a('v_mov_b32_dpp %s, %s quad_perm:[1,3,1,3] row_mask:0xf bank_mask:0xf' % (v(G + 2), v(Q + 2)))
        s.st_ws(G, v(A1), sC3)
        s.st_ws(G, v(A2), sC3)
        s.unpack(Q + 2, XA, XA + 1)
        s.stamp(6)
        a('s_waitcnt vmcnt(0)')
        a('s_sleep %d' % s.fsleep)
        s.ppoll([(P + 4 * k, 'v2', sC0, 1024 * k) for k in range(3)] + [(P + 12, v(A3), sC0, 0)], s.pd)
        s.stamp(2)
        reduce()
        s.ex('lo32')
        a('v_add_f32 %s, %s, %s' % (v(Q), v(Q), v(P + 12)))
        a('v_add_f32 %s, %s, %s' % (v(Q + 1), v(Q + 1), v(P + 14)))
        s.ex(-1)
        reduce2()
        a('v_add_f32 %s, %s, %s' % (v(Q), v(Q), v(B2)))
        a('v_add_f32 %s, %s, %s' % (v(Q + 1), v(Q + 1), v(B2 + 1)))
        s.rnd2(Q, Q + 1, Q + 2)
        a('v_mul_f32 %s, %s, %s' % (v(Q), v(Q), v(GB)))
        a('v_mul_f32 %s, %s, %s' % (v(Q + 1), v(Q + 1), v(GB + 1)))
        s.rnd2(Q, Q + 1, Q + 2)
        a('v_add_f32 %s, %s, %s' % (v(Q), v(Q), v(XA)))
        a('v_add_f32 %s, %s, %s' % (v(Q + 1), v(Q + 1), v(XA + 1)))
        a('v_cvt_pk_bf16_f32 %s, %s, %s' % (v(Q + 2), v(Q), v(Q + 1)))
        s.ex(0xf)
        a('buffer_store_dword %s, %s, %s, 0 offen' % (v(Q + 2), v(OO), SRD_OUT))
        s.ex(-1)
        a('s_cmp_lg_u32 s2, 0')
        a('s_cbranch_scc1 L_end')
        a('s_cmp_lg_u32 %s, 0' % sR)
        a('s_cbranch_scc1 L_end')
        a('v_mov_b32 v4, %s' % sTAG)
        s.ex(1)
        a('buffer_store_dword v4, v3, %s, 0 offen sc1' % SRD_WS)
        s.ex(-1)
        a('s_branch L_end')

    def s3_role(s):
        a = s.a
        a.c('---------------- S3 (u 8..21): w2 rows -> LDS; x1 -> LN -> modulate -> LN -> y ; partial y @ w1[:, 64 cols]')
        F = s.R[3]
        TB = [s.X] + s.R[:3]
        a('s_mul_i32 %s, %s, 14' % (sJ, sG))
        a('s_add_u32 %s, %s, %s' % (sJ, sJ, sU))
        a('s_sub_u32 %s, %s, 8' % (sJ, sJ))
        a('s_lshl_b32 %s, %s, 7' % (sT1, sJ))
        a('v_and_b32 v5, 15, v0')
        a('v_lshlrev_b32 v5, 3, v5')
        a('v_add_u32 v4, %s, v5' % sT1)
        a('global_load_dwordx2 v[6:7], v4, %s' % sp(P_B1))
        if s.s3wait: s.wait_lds(CNT_K, s.kqn, sleep=2)
        if s.w2late:
            a('s_waitcnt vmcnt(0)')
            a('ds_write_b64 v5, v[6:7] offset:%d' % L_B1)
        else:
            s.srd(SRD_W, P_W2, 3584 * 2048)
            s.w2_voff()
            s.tile_load(4, 'v1', 's7', 16 * 2048, 2048, s.Wt)
            s.tile_transpose(4)
            a('s_waitcnt vmcnt(0)')
            a('ds_write_b64 v5, v[6:7] offset:%d' % L_B1)
            a('s_lshl_b32 %s, %s, 15' % (sT0, sR))
            a('s_add_u32 %s, %s, %d' % (sT0, sT0, L_W2))
            a('v_add_u32 v5, %s, v2' % sT0)
            for b in range(4):
                if b == 3:
                    a('s_cmp_eq_u32 %s, 3' % sR)
                    a('s_cbranch_scc1 L_s3_w')
                for e in range(8):
                    a('ds_write_b128 v5, %s offset:%d' % (v(TB[b] + 4 * e, 4), 8192 * b + 1024 * e))
            a.label('L_s3_w')
        s.signal(CNT_W)
        a('s_lshl_b32 %s, %s, 7' % (sT1, sJ))
        s.gemvC_setup(P_W1, 7168, 1024 * 7168, sT1, s.Wt)
        s.afragC_addr()
        s.tile_transpose(4)
        s.stamp(1)
        a('s_lshl_b32 %s, %s, 13' % (sC2, sJ))
        a('s_lshl_b32 %s, %s, 10' % (sT0, sR))
        a('s_add_u32 %s, %s, %s' % (sC2, sC2, sT0))
        a('s_add_u32 %s, %s, 0x%x' % (sC2, sC2, OFF_SBCB))
        a('s_add_u32 %s, %s, 4096' % (sC3, sC2))
        s.poll([(F, 'v2', sC2, 0), (F + 4, 'v2', sC3, 0)], sleep=s.nsleep)
        SB, CB, XX, T = F + 8, F + 12, F + 4, F + 16
        s.unpack(F, SB, SB + 1); s.unpack(F + 2, SB + 2, SB + 3)
        s.unpack(F + 4, CB, CB + 1); s.unpack(F + 6, CB + 2, CB + 3)
        for c in range(4): a('v_add_f32 %s, 1.0, %s' % (v(CB + c), v(CB + c)))
        s.rnd2(CB, CB + 1, T); s.rnd2(CB + 2, CB + 3, T)
        s.xw_addr('v6')
        a('s_lshl_b32 %s, %s, 3' % (sT0, sR))
        a('v_mov_b32 v7, %s' % sT0)
        s.stamp(2)
        s.warm_stream(50)
        if s.dry:
            s.dry_call('L_s3_seg', 5)
            a('s_mul_i32 %s, %s, 14' % (sJ, sG))
            a('s_add_u32 %s, %s, %s' % (sJ, sJ, sU))
            a('s_sub_u32 %s, %s, 8' % (sJ, sJ))
        a.label('L_s3_seg')
        a('s_lshl_b32 %s, %s, 12' % (sC2, sJ))
        a('s_lshl_b32 %s, %s, 10' % (sT0, sR))
        a('s_add_u32 %s, %s, %s' % (sC2, sC2, sT0))
        a('s_add_u32 %s, %s, 0x%x' % (sC2, sC2, OFF_X1))
        s.wait_lds(CNT_PUB, 8, sleep=1)
        s.stamp(4)
        if s.s3sleep: a('s_sleep %d' % s.s3sleep)
        s.ppoll([(F, 'v2', sC2, 0)], s.pd)
        s.stamp(5)
        s.unpack(F, XX, XX + 1); s.unpack(F + 2, XX + 2, XX + 3)
        S1, S2, MEAN, DD, RR, RD = F + 18, F + 19, F + 20, F + 21, F + 22, F + 24
        xs = [XX, XX + 1, XX + 2, XX + 3]
        for rnd, cnt in ((0, CNT_R2), (1, CNT_R3)):
            a('v_add_f32 %s, %s, %s' % (v(S1), v(XX), v(XX + 1)))
            a('v_mul_f32 %s, %s, %s' % (v(S2), v(XX), v(XX)))
            a('v_fmac_f32 %s, %s, %s' % (v(S2), v(XX + 1), v(XX + 1)))
            for k in (2, 3):
                a('v_add_f32 %s, %s, %s' % (v(S1), v(S1), v(XX + k)))
                a('v_fmac_f32 %s, %s, %s' % (v(S2), v(XX + k), v(XX + k)))
            s.bfly('v_add_f32', [S1, S2], [T, T + 1], [1, 2, 4, 8, 16, 32])
            s.ex(1)
            a('ds_write_b64 v7, %s offset:%d' % (v(S1, 2), L_ST + 32 * rnd))
            s.ex(-1)
            s.lds_spin(['ds_read_b128 %s, v3 offset:%d' % (v(RD, 4), L_ST + 32 * rnd),
                        'ds_read_b128 %s, v3 offset:%d' % (v(RD + 4, 4), L_ST + 32 * rnd + 16)], [RD + 1, RD + 3, RD + 5, RD + 7], 4)
            a('v_add_f32 %s, %s, %s' % (v(S1), v(RD), v(RD + 2)))
            a('v_add_f32 %s, %s, %s' % (v(S2), v(RD + 1), v(RD + 3)))
            a('v_add_f32 %s, %s, %s' % (v(RD), v(RD + 4), v(RD + 6)))
            a('v_add_f32 %s, %s, %s' % (v(RD + 1), v(RD + 5), v(RD + 7)))
            a('v_add_f32 %s, %s, %s' % (v(S1), v(S1), v(RD)))
            a('v_add_f32 %s, %s, %s' % (v(S2), v(S2), v(RD + 1)))
            s.ln_stats(S1, S2, MEAN, DD, RR, T)
            s.ln_apply(xs, MEAN, DD, RR, [T, T + 1])
            if rnd == 0:
                for c in range(4): a('v_mul_f32 %s, %s, %s' % (v(XX + c), v(XX + c), v(CB + c)))
                s.rnd2(XX, XX + 1, T); s.rnd2(XX + 2, XX + 3, T + 1)
                for c in range(4): a('v_add_f32 %s, %s, %s' % (v(XX + c), v(XX + c), v(SB + c)))
                s.rnd2(XX, XX + 1, T); s.rnd2(XX + 2, XX + 3, T + 1)
        a('v_cvt_pk_bf16_f32 %s, %s, %s' % (v(T), v(XX), v(XX + 1)))
        a('v_cvt_pk_bf16_f32 %s, %s, %s' % (v(T + 1), v(XX + 2), v(XX + 3)))
        a('ds_write_b64 v6, %s' % v(T, 2))
        s.stamp(6)
        a('s_waitcnt vmcnt(0)')
        acc = s.tile_mfma(4, 'v1', 128)
        s.gemvC_partial(acc, sR)
        a('s_branch L_end')

if __name__ == '__main__':
    import argparse
    ap = argparse.ArgumentParser()
    ap.add_argument('-o', default='k.s')
    ap.add_argument('--W', type=int, default=4)
    ap.add_argument('--W2', type=int, default=8)
    ap.add_argument('--slow', type=int, default=0)
    ap.add_argument('--stamps', action='store_true')
    ap.add_argument('--skip', default='')
    ap.add_argument('--dry', action='store_true')
    ap.add_argument('--kq', type=int, default=22)
    ap.add_argument('--Wt', type=int, default=16)
    ap.add_argument('--NL', type=int, default=15)
    ap.add_argument('--tkg', type=int, default=1)
    ap.add_argument('--pd', type=int, default=1)
    ap.add_argument('--w2pace', type=int, default=0)
    ap.add_argument('--w2early', action='store_true')
    ap.add_argument('--ND3', type=int, default=2)
    ap.add_argument('--touch', action='store_true')
    ap.add_argument('--hold', type=int, default=2)
    ap.add_argument('--ND', type=int, default=2)
    ap.add_argument('--s2sleep', type=int, default=0)
    ap.add_argument('--s3sleep', type=int, default=0)
    ap.add_argument('--finst', action='store_true')
    ap.add_argument('--finsleep', type=int, default=2)
    ap.add_argument('--tsleep', type=int, default=0)
    ap.add_argument('--fsleep', type=int, default=20)
    ap.add_argument('--s3wait', action='store_true')
    ap.add_argument('--nos3dyn', action='store_true')
    ap.add_argument('--classes', default='')
    ap.add_argument('--nsleep', type=int, default=100)
    ap.add_argument('--psleep', type=int, default=0)
    ap.add_argument('--kqn', type=int, default=8)
    ap.add_argument('--qsleep', type=int, default=16)
    args = ap.parse_args()
    if args.classes:
        for i, x in enumerate(args.classes.split(',')): CLASSES[i] = (CLASSES[i][0], CLASSES[i][1], int(x))
    g = Gen(W=args.W, W2=args.W2, slow=args.slow, stamps=args.stamps, qsleep=args.qsleep)
    g.dry = args.dry; g.kq = args.kq; g.Wt = args.Wt; g.NL = args.NL; g.tkg = args.tkg; g.pd = args.pd; g.w2pace = args.w2pace; g.w2late = not args.w2early; g.ND3 = args.ND3; g.touch = args.touch; g.hold = args.hold; g.ND = args.ND; g.s2sleep = args.s2sleep; g.s3sleep = args.s3sleep; g.finst = args.finst; g.finsleep = args.finsleep; g.tsleep = args.tsleep; g.fsleep = args.fsleep; g.s3wait = args.s3wait; g.s3dyn = not args.nos3dyn; g.nsleep = args.nsleep; g.psleep = args.psleep; g.kqn = args.kqn
    for x in args.skip.split(','):
        if x == 'wm': g.skip.add(12288)
        if x == 'wq': g.skip.add(8192)
        if x == 'w1': g.skip.add(7168)
        if x == 'wo': g.skip.add((2048, 16 * 2048))
    open(args.o, 'w').write(g.build())
```

```python
import sys, math
sys.path.insert(0, 'work')
from asmlib import Asm
NAME = 'adaLN_cond__gqa_block_cached__mixer_channel_mlp__decode'

OFF_MOD, OFF_Q, OFF_SBCB, OFF_G, OFF_ML = 0x010000, 0x100000, 0x200000, 0x280000, 0x290000
OFF_O, OFF_A, OFF_X1, OFF_HH, OFF_TS = 0x300000, 0x500000, 0x580000, 0x600000, 0x8000000
OFF_P = 0x2a0000
OFF_H = OFF_MOD
CNT_Q, CNT_ATT, CNT_R1, CNT_R2, CNT_R3, CNT_X, CNT_S, CNT_T, CNT_W, CNT_K, CNT_PUB = 0, 4, 8, 12, 16, 20, 24, 28, 32, 36, 40
L_ZERO, L_Q, L_X, L_RED, L_ML, L_ST, L_O, L_G, L_B1, L_H, L_OB = 64, 256, 2304, 4352, 5376, 5888, 5952, 7424, 7552, 7680, 8192
L_W2 = L_OB + 8 * 4096
LDS_BYTES = L_W2 + 15 * 8192
assert LDS_BYTES <= 163840
CLASSES = [(0, 8, 29), (8, 14, 24), (22, 2, 32), (24, 8, 29), (32, 16, 29), (48, 16, 29)]
OFF_CNT = 0x2b0000
sWG, sWAVE, sTAG = 's2', 's3', 's4'
sR = 's5'
sJ = 's6'
sU, sG = 's24', 's25'
sLIVE = 's[26:27]'
sRET, sPASS = 's69', 's100'
sLAST, sH2, sL0 = 's100', 's101', 's28'
SRD_K, SRD_V, SRD_WS, SRD_W, SRD_OUT = 's[8:11]', 's[12:15]', 's[16:19]', 's[20:23]', 's[28:31]'
P_X, P_K, P_V, P_WQ, P_WO, P_W1, P_B1, P_W2, P_B2, P_C, P_WM, P_OUT, P_DBG, P_WS = 32, 34, 36, 38, 40, 44, 46, 48, 50, 52, 54, 56, 58, 60
sSELLO, sSELHI = 's62', 's63'
sT0, sT1, sT2, sT3, sTO = 's64', 's65', 's66', 's67', 's68'
sACC = 's[70:71]'
sM0, sM1, sM2 = 's[72:73]', 's[74:75]', 's[76:77]'
sC0, sC1, sC2, sC3 = 's78', 's79', 's80', 's81'
TS0 = 84
NSTAMP = 8
LOG2E = 0x3fb8aa3b
def f32(x):
    import struct
    return '0x%08x' % struct.unpack('<I', struct.pack('<f', x))[0]

def v(i, n=1): return 'v%d' % i if n == 1 else 'v[%d:%d]' % (i, i + n - 1)
def sp(i): return 's[%d:%d]' % (i, i + 1)

class Gen:
    def __init__(s, W=4, W2=8, slow=3, stamps=False, qsleep=8, nt=True):
        s.a = Asm(); s.W = W; s.W2 = W2; s.slow = slow; s.stamps = stamps; s.qsleep = qsleep
        s.nt = 'nt' if nt else ''
        s.skip = set(); s.rets = []; s.dry = True; s.kq = 22; s.kqn = 8; s.Wt = 4; s.tkg = 1; s.pd = 1; s.w2pace = 0; s.w2late = True; s.ND3 = 8; s.touch = False; s.hold = 1; s.ND = 4; s.s2sleep = 0; s.s3sleep = 0; s.finst = False; s.finsleep = 2; s.tsleep = 0; s.fsleep = 20; s.qsleep0 = 40; s.s3wait = False; s.s3dyn = True; s.NL = 15; s.nsleep = 64; s.psleep = 0
    def stamp(s, i):
        if s.stamps:
            s.a('s_memrealtime %s' % sp(TS0 + 2 * i))
    def srd(s, srd, ptr, nbytes):
        a = s.a; b = int(srd[2:srd.index(':')])
        a('s_mov_b32 s%d, s%d' % (b, ptr)); a('s_and_b32 s%d, s%d, 0xffff' % (b + 1, ptr + 1))
        a('s_mov_b32 s%d, 0x%x' % (b + 2, nbytes)); a('s_mov_b32 s%d, 0x20000' % (b + 3))
    def ex(s, m):
        a = s.a
        if m == -1: a('s_mov_b64 exec, %s' % sLIVE)
        elif m == 'lo32': a('s_mov_b32 exec_lo, s26'); a('s_mov_b32 exec_hi, 0')
        elif isinstance(m, str): a('s_and_b64 exec, %s, %s' % (sLIVE, m))
        else: a('s_and_b64 exec, %s, 0x%x' % (sLIVE, m))
    def dry_call(s, seg, rid):
        a = s.a
        a('s_mov_b32 %s, %d' % (sRET, rid))
        a('s_mov_b64 %s, 0' % sLIVE)
        a('s_mov_b64 exec, 0')
        a('s_branch %s' % seg)
        a.label('L_dret%d' % rid)
        a('s_mov_b64 %s, -1' % sLIVE)
        a('s_mov_b64 exec, -1')
        s.rets.append(rid)
    def seg_end(s):
        s.a('s_cbranch_execz L_dryret')
    def vmwait(s, n):
        a = s.a; L = a.newlabel('vw')
        a('s_cbranch_execz %s' % L)
        a('s_waitcnt vmcnt(%d)' % n)
        a.label(L)
    def signal(s, cnt, vz='v3', vone='v4'):
        a = s.a
        a('v_mov_b32 %s, 1' % vone)
        a('s_waitcnt lgkmcnt(0)')
        s.ex(1)
        a('ds_add_u32 %s, %s offset:%d' % (vz, vone, cnt))
        s.ex(-1)
    def wait_lds(s, cnt, target, vz='v3', vt='v4', sleep=0):
        a = s.a; L = a.newlabel('w'); LD = a.newlabel('wd')
        a('s_mov_b32 %s, 0' % sTO)
        a.label(L)
        if sleep: a('s_sleep %d' % sleep)
        a('s_add_u32 %s, %s, 1' % (sTO, sTO))
        a('s_cmp_gt_u32 %s, 0x400000' % sTO)
        a('s_cbranch_scc1 L_fail')
        a('ds_read_b32 %s, %s offset:%d' % (vt, vz, cnt))
        a('s_waitcnt lgkmcnt(0)')
        a('v_readfirstlane_b32 %s, %s' % (sT3, vt))
        a('s_cmp_ge_u32 %s, %s' % (sT3, target))
        a('s_cbranch_execz %s' % LD)
        a('s_cbranch_scc0 %s' % L)
        a.label(LD)
    def poll(s, loads, sleep=0):
        a = s.a; L = a.newlabel('p'); n = len(loads)
        a('s_mov_b32 %s, 0' % sTO)
        a.label(L)
        a('s_add_u32 %s, %s, 1' % (sTO, sTO))
        a('s_cmp_gt_u32 %s, 0x40000' % sTO)
        a('s_cbranch_scc1 L_fail')
        LS = a.newlabel('ps')
        a('s_cbranch_execz %s' % LS)
        for d, vo, so, imm in loads:
            a('buffer_load_dwordx4 %s, %s, %s, %s offen offset:%d sc1' % (v(d, 4), vo, SRD_WS, so, imm))
        a('s_waitcnt vmcnt(%d)' % (n - 1))
        a.label(LS)
        a('s_mov_b64 %s, -1' % sACC)
        for i, (d, vo, so, imm) in enumerate(loads):
            if i: s.vmwait(n - 1 - i)
            a('v_cmp_eq_u32 vcc, %s, %s' % (sTAG, v(d + 1)))
            a('v_cmp_eq_u32 %s, %s, %s' % (sM2, sTAG, v(d + 3)))
            a('s_and_b64 %s, %s, vcc' % (sACC, sACC))
            a('s_and_b64 %s, %s, %s' % (sACC, sACC, sM2))
        a('s_cmp_eq_u64 %s, -1' % sACC)
        L2 = a.newlabel('pd')
        a('s_cbranch_execz %s' % L2)
        if sleep:
            a('s_cbranch_scc1 %s' % L2)
            a('s_sleep %d' % sleep)
            a('s_branch %s' % L)
        else:
            a('s_cbranch_scc0 %s' % L)
        a.label(L2)
    def ppoll(s, loads, depth=3, gap=5):
        a = s.a; L = a.newlabel('pp'); n = len(loads)
        def sweep():
            for d, vo, so, imm in loads:
                a('buffer_load_dwordx4 %s, %s, %s, %s offen offset:%d sc1' % (v(d, 4), vo, SRD_WS, so, imm))
        for i in range(depth - 1):
            sweep()
            a('s_sleep %d' % gap)
        a('s_mov_b32 %s, 0' % sTO)
        a.label(L)
        sweep()
        a('s_add_u32 %s, %s, 1' % (sTO, sTO))
        a('s_cmp_gt_u32 %s, 0x80000' % sTO)
        a('s_cbranch_scc1 L_fail')
        a('s_mov_b64 %s, -1' % sACC)
        a('s_waitcnt vmcnt(%d)' % ((depth - 1) * n))
        for i, (d, vo, so, imm) in enumerate(loads):
            a('v_cmp_eq_u32 vcc, %s, %s' % (sTAG, v(d + 1)))
            a('v_cmp_eq_u32 %s, %s, %s' % (sM2, sTAG, v(d + 3)))
            a('s_and_b64 %s, %s, vcc' % (sACC, sACC))
            a('s_and_b64 %s, %s, %s' % (sACC, sACC, sM2))
        a('s_cmp_eq_u64 %s, -1' % sACC)
        if s.tsleep:
            L2 = a.newlabel('ppd')
            a('s_cbranch_scc1 %s' % L2)
            a('s_sleep %d' % s.tsleep)
            a('s_branch %s' % L)
            a.label(L2)
        else:
            a('s_cbranch_scc0 %s' % L)
        if depth > 1: a('s_nop 7')
    def lds_spin(s, reads, checks, tmp, sleep=0):
        a = s.a; L = a.newlabel('ls')
        a('s_mov_b32 %s, 0' % sTO)
        a.label(L)
        if sleep: a('s_sleep %d' % sleep)
        for r_ in reads: a(r_)
        a('s_add_u32 %s, %s, 1' % (sTO, sTO))
        a('s_cmp_gt_u32 %s, 0x400000' % sTO)
        a('s_cbranch_scc1 L_fail')
        a('s_waitcnt lgkmcnt(0)')
        c = list(checks)
        a('v_max3_u32 %s, %s, %s, %s' % (v(tmp), v(c[0]), v(c[1]), v(c[2])))
        c = c[3:]
        while len(c) >= 2:
            a('v_max3_u32 %s, %s, %s, %s' % (v(tmp), v(tmp), v(c[0]), v(c[1]))); c = c[2:]
        if c: a('v_max_u32 %s, %s, %s' % (v(tmp), v(tmp), v(c[0])))
        a('v_cmp_eq_u32 vcc, -1, %s' % v(tmp))
        a('s_cmp_eq_u64 vcc, 0')
        a('s_cbranch_scc0 %s' % L)
    def bfly(s, op, regs, tmps, steps):
        a = s.a
        for st in steps:
            if st in (1, 2, 4, 8):
                mod = {1: 'quad_perm:[1,0,3,2]', 2: 'quad_perm:[2,3,0,1]', 4: None, 8: 'row_ror:8'}[st]
                for r, t in zip(regs, tmps):
                    if st == 4:
                        a('%s_dpp %s, %s, %s row_half_mirror row_mask:0xf bank_mask:0xf' % (op, v(r), v(r), v(r)))
                    else:
                        a('%s_dpp %s, %s, %s %s row_mask:0xf bank_mask:0xf' % (op, v(r), v(r), v(r), mod))
            else:
                sw = 'v_permlane16_swap_b32' if st == 16 else 'v_permlane32_swap_b32'
                for r, t in zip(regs, tmps): a('v_mov_b32 %s, %s' % (v(t), v(r)))
                for r, t in zip(regs, tmps): a('%s %s, %s' % (sw, v(r), v(t)))
                for r, t in zip(regs, tmps): a('%s %s, %s, %s' % (op, v(r), v(r), v(t)))
    def rnd2(s, x, y, t):
        a = s.a
        a('v_cvt_pk_bf16_f32 %s, %s, %s' % (v(t), v(x), v(y)))
        a('v_lshlrev_b32 %s, 16, %s' % (v(x), v(t)))
        a('v_and_b32 %s, 0xffff0000, %s' % (v(y), v(t)))
    def rnd1(s, x):
        a = s.a
        a('v_cvt_pk_bf16_f32 %s, %s, %s' % (v(x), v(x), v(x)))
        a('v_and_b32 %s, 0xffff0000, %s' % (v(x), v(x)))
    def unpack(s, src, lo, hi):
        a = s.a
        a('v_lshlrev_b32 %s, 16, %s' % (v(lo), v(src)))
        a('v_and_b32 %s, 0xffff0000, %s' % (v(hi), v(src)))
    def div(s, xs, d, r, t):
        a = s.a
        for x in xs:
            a('v_mul_f32 %s, %s, %s' % (v(t[0]), v(x), v(r)))
            a('v_fma_f32 %s, -%s, %s, %s' % (v(t[1]), v(t[0]), v(d), v(x)))
            a('v_fma_f32 %s, %s, %s, %s' % (v(x), v(t[1]), v(r), v(t[0])))
    def ln_stats(s, s1, s2, mean, d, r, t):
        a = s.a
        a('v_mul_f32 %s, %s, %s' % (v(mean), f32(1.0 / 1024), v(s1)))
        a('v_mul_f32 %s, %s, %s' % (v(d), f32(1.0 / 1024), v(s2)))
        a('v_fma_f32 %s, -%s, %s, %s' % (v(d), v(mean), v(mean), v(d)))
        a('v_max_f32 %s, 0, %s' % (v(d), v(d)))
        s.rnd2(mean, d, t)
        a('v_add_f32 %s, %s, %s' % (v(d), f32(1e-5), v(d)))
        s.rnd1(d)
        a('v_sqrt_f32 %s, %s' % (v(d), v(d)))
        s.rnd1(d)
        a('v_rcp_f32 %s, %s' % (v(r), v(d)))
    def ln_apply(s, xs, mean, d, r, t):
        a = s.a
        for x in xs: a('v_sub_f32 %s, %s, %s' % (v(x), v(x), v(mean)))
        for i in range(0, len(xs), 2): s.rnd2(xs[i], xs[i + 1], t[0])
        s.div(xs, d, r, t)
        for i in range(0, len(xs), 2): s.rnd2(xs[i], xs[i + 1], t[0])
    R = [8, 40, 72, 104]; X = 136
    def tile_load(s, nblk, voff, sbase, step_blk, step_t, pace=0, rowf=None):
        a = s.a
        if step_t in s.skip or (step_t, step_blk) in s.skip: return
        for b in range(nblk):
            for t in range(8):
                a('s_add_u32 %s, %s, 0x%x' % (sT0, sbase, rowf(b, t) * step_t if rowf else b * step_blk + t * step_t))
                if pace and 8 * b + t >= pace: a('s_waitcnt vmcnt(%d)' % (pace - 1))
                a('buffer_load_dwordx4 %s, %s, %s, %s offen %s' % (v(s.R[b] + 4 * t, 4), voff, SRD_W, sT0, s.nt))
    def tile_transpose(s, nblk, later=0, landed=None):
        a = s.a
        TB = [s.X] + s.R[:3]
        for b in range(nblk):
            s.vmwait((nblk - 1 - b) * 8 + later)
            if b == nblk - 1 and landed: landed()
            for e in range(8):
                for j in range(4):
                    a('v_perm_b32 %s, %s, %s, %s' % (v(TB[b] + 4 * e + j), v(s.R[b] + 4 * (2 * j + 1) + (e >> 1)),
                                                     v(s.R[b] + 4 * (2 * j) + (e >> 1)), sSELHI if e & 1 else sSELLO))
    def tile_mfma(s, nblk, vaddr, step, spin=False):
        a = s.a
        TB = [s.X] + s.R[:3]
        F = s.R[3]
        AF = F + 16
        rd = ['ds_read_b128 %s, %s offset:%d' % (v(AF + 4 * b, 4), vaddr, b * step) for b in range(nblk)]
        if spin: s.lds_spin(rd, [AF + 4 * b for b in range(nblk)], 4, sleep=1)
        else:
            for r_ in rd: a(r_)
        acc = [F + 4 * e for e in range(4)] + [TB[0] + 4 * e for e in range(4)]
        LS = a.newlabel('ms')
        a('s_cbranch_execz %s' % LS)
        for half in range(2):
            for b in range(nblk):
                if half == 0: a('s_waitcnt lgkmcnt(%d)' % (nblk - 1 - b))
                for e in range(4 * half, 4 * half + 4):
                    c = '0' if b == 0 else v(acc[e], 4)
                    a('v_mfma_f32_16x16x32_bf16 %s, %s, %s, %s' % (v(acc[e], 4), v(AF + 4 * b, 4), v(TB[b] + 4 * e, 4), c))
        a.label(LS)
        return acc
    def gemvC_partial(s, acc, slot_sgpr):
        a = s.a
        AF = s.R[3] + 16
        for e in range(8):
            a('v_add_f32_dpp %s, %s, %s row_ror:8 row_mask:0xf bank_mask:0xf' % (v(AF + e), v(acc[e] + 1), v(acc[e])))
        a('s_lshl_b32 %s, %s, 8' % (sT0, slot_sgpr))
        a('v_lshlrev_b32 v5, 5, v0')
        a('v_add_u32 v5, %s, v5' % sT0)
        s.ex(0xff)
        a('ds_write_b128 v5, %s offset:%d' % (v(AF, 4), L_RED))
        a('ds_write_b128 v5, %s offset:%d' % (v(AF + 4, 4), L_RED + 16))
        s.ex(-1)
    def gemvC_gather(s, nsrc, dst, tmp, slot0='0', spin=False):
        a = s.a
        a('v_and_b32 v5, 15, v0')
        a('v_lshlrev_b32 v5, 4, v5')
        if slot0 != '0': a('v_add_u32 v5, %s, v5' % slot0)
        rd = ['ds_read_b128 %s, v5 offset:%d' % (v(tmp + 4 * w, 4), L_RED + 256 * w) for w in range(nsrc)]
        if spin: s.lds_spin(rd, [tmp + 4 * w for w in range(nsrc)], 4, sleep=1)
        else:
            for r_ in rd: a(r_)
        for w in range(1, nsrc):
            a('s_waitcnt lgkmcnt(%d)' % (nsrc - 1 - w))
            for c in range(4):
                a('v_add_f32 %s, %s, %s' % (v(dst + c), v(tmp + c) if w == 1 else v(dst + c), v(tmp + 4 * w + c)))
    def mk_granule(s, g, x):
        a = s.a
        a('v_cvt_pk_bf16_f32 %s, %s, %s' % (v(g), v(x), v(x + 1)))
        a('v_cvt_pk_bf16_f32 %s, %s, %s' % (v(g + 2), v(x + 2), v(x + 3)))
        a('v_mov_b32 %s, %s' % (v(g + 1), sTAG))
        a('v_mov_b32 %s, %s' % (v(g + 3), sTAG))
    def st_ws(s, g, voff, soff, imm=0):
        L = s.a.newlabel('st')
        s.a('s_cbranch_execz %s' % L)
        s.a('buffer_store_dwordx4 %s, %s, %s, %s offen offset:%d sc1' % (v(g, 4), voff, SRD_WS, soff, imm))
        s.a.label(L)

    def build(s):
        a = s.a
        a.raw('; @launch grid=(256,1,1) block=(768,1,1) lds=%d' % LDS_BYTES)
        if s.stamps: a.raw('; TS 0x%x:%d:%d' % (OFF_TS, 256 * 12, NSTAMP))
        a.raw('.amdgcn_target "amdgcn-amd-amdhsa--gfx950"')
        a.raw('.text')
        a.raw('.globl %s_kernel' % NAME)
        a.raw('.p2align 8')
        a.raw('.type %s_kernel,@function' % NAME)
        a.raw('%s_kernel:' % NAME)
        a('s_cmp_ge_u32 s2, 256')
        a('s_cbranch_scc1 L_exit')
        if s.stamps:
            for i in range(NSTAMP): a('s_mov_b64 %s, 0' % sp(TS0 + 2 * i))
        s.stamp(0)
        a('s_load_dwordx16 s[32:47], s[0:1], 0')
        a('s_load_dwordx8 s[48:55], s[0:1], 64')
        a('s_load_dwordx4 s[56:59], s[0:1], 96')
        a('s_load_dwordx2 s[60:61], s[0:1], 112')
        a('v_lshrrev_b32 v1, 6, v0')
        a('v_and_b32 v0, 63, v0')
        a('v_mov_b32 v3, 0')
        a('v_readfirstlane_b32 s3, v1')
        a('v_lshlrev_b32 v2, 4, v0')
        a('s_mov_b32 %s, 0x05040100' % sSELLO)
        a('s_mov_b32 %s, 0x07060302' % sSELHI)
        a('s_and_b32 %s, s2, 63' % sU)
        a('s_lshr_b32 %s, s2, 6' % sG)
        a('s_mov_b64 %s, -1' % sLIVE)
        a('s_mov_b32 %s, 0' % sRET)
        a('s_cmp_ge_u32 s3, 8')
        a('s_cbranch_scc1 L_role')
        s.stream()
        a.label('L_role')
        s.role()
        a.label('L_dryret')
        if not s.rets: a('s_branch L_end')
        for rid in s.rets[:-1]:
            a('s_cmp_eq_u32 %s, %d' % (sRET, rid))
            a('s_cbranch_scc1 L_dret%d' % rid)
        if s.rets: a('s_branch L_dret%d' % s.rets[-1])
        a.label('L_fail')
        a('v_mov_b32 v4, 0xdead')
        a('v_mov_b32 v5, 0')
        a('s_mov_b64 exec, 1')
        a('global_store_dword v5, v4, %s' % sp(P_DBG))
        a('s_mov_b64 exec, -1')
        a.label('L_end')
        if s.stamps:
            s.stamp(NSTAMP - 1)
            a('s_mul_i32 %s, s2, 12' % sT0)
            a('s_add_u32 %s, %s, s3' % (sT0, sT0))
            a('s_mul_i32 %s, %s, %d' % (sT0, sT0, NSTAMP * 8))
            a('s_add_u32 %s, %s, 0x%x' % (sT0, sT0, OFF_TS))
            a('v_mov_b32 v5, 0')
            a('s_waitcnt lgkmcnt(0)')
            a('s_mov_b64 exec, 1')
            for i in range(0, NSTAMP, 2):
                for k in range(4): a('v_mov_b32 v%d, s%d' % (8 + k, TS0 + 2 * i + k))
                a('buffer_store_dwordx4 v[8:11], v5, %s, %s offen offset:%d' % (SRD_WS, sT0, 8 * i))
        a.label('L_exit')
        a('s_endpgm')
        a.raw('.section .rodata,"a"')
        a.raw('.p2align 6')
        a.raw('.amdhsa_kernel %s_kernel' % NAME)
        a.raw('  .amdhsa_next_free_vgpr 168')
        a.raw('  .amdhsa_next_free_sgpr 102')
        a.raw('  .amdhsa_accum_offset 168')
        a.raw('  .amdhsa_group_segment_fixed_size 0')
        a.raw('  .amdhsa_kernarg_size 120')
        a.raw('  .amdhsa_user_sgpr_count 2')
        a.raw('  .amdhsa_user_sgpr_kernarg_segment_ptr 1')
        a.raw('  .amdhsa_system_sgpr_workgroup_id_x 1')
        a.raw('.end_amdhsa_kernel')
        return a.finish()

    SP, O, T, BUF, NB, TK = 8, 28, 60, 76, 23, 27
    def tag_ready(s):
        s.a('s_waitcnt lgkmcnt(0)')
        s.a('s_add_u32 %s, %s, 1' % (sTAG, sTAG))
    def ptrs_ready(s):
        a = s.a
        a('s_waitcnt lgkmcnt(0)')
        a('s_load_dword %s, %s, 0' % (sTAG, sp(P_WS)))
        s.srd(SRD_WS, P_WS, 0x10000000)
    def stream(s):
        a = s.a
        a.c('---------------- stream wave')
        a('s_mov_b32 %s, s3' % sR)
        base = 0
        for ci, (u0, cnt, G) in enumerate(CLASSES):
            a('s_mul_i32 %s, %s, %d' % (sT1, sU, G))
            a('s_add_u32 %s, %s, 0x%x' % (sT1, sT1, (base - u0 * G) & 0xffffffff))
            if ci == 0:
                a('s_mov_b32 %s, %s' % (sT0, sT1)); a('s_mov_b32 %s, %d' % (sT2, G))
            else:
                a('s_cmp_ge_u32 %s, %d' % (sU, u0))
                a('s_cselect_b32 %s, %s, %s' % (sT0, sT1, sT0))
                a('s_cselect_b32 %s, %d, %s' % (sT2, G, sT2))
            base += cnt * G
        s.static = base
        assert max(c_[2] for c_ in CLASSES) <= 32
        assert (2048 - base) % s.ND == 0, base
        s.PS = (2048 - base) // s.ND
        assert min(c_[2] for c_ in CLASSES if c_[2] > 8) >= 24
        a('s_lshl_b32 s7, %s, 13' % sT0)
        a('s_lshl_b32 %s, %s, 24' % (sT0, sG))
        a('s_add_u32 s7, s7, %s' % sT0)
        a('s_lshl_b32 %s, s3, 12' % sT0)
        a('s_add_u32 s7, s7, %s' % sT0)
        a('s_and_b32 %s, %s, 7' % (sT1, sT2))
        a('s_lshr_b32 %s, %s, 3' % (sT2, sT2))
        a('s_sub_u32 %s, 8, %s' % (sT3, sT1))
        a('s_lshl_b32 %s, %s, 12' % (sLAST, sT1))
        a('s_lshl_b32 %s, %s, 12' % (sL0, sT3))
        a('s_cmp_ge_u32 s3, %s' % sT3)
        a('s_cselect_b32 %s, %s, 0x8000' % (sLAST, sLAST))
        a('s_cselect_b32 %s, %s, 0' % (sL0, sL0))
        a('s_addc_u32 %s, %s, 0' % (sT2, sT2))
        a('s_sub_u32 %s, %s, 1' % (sT0, sT2))
        a('s_lshl_b32 %s, %s, 16' % (sT0, sT0))
        a('s_add_u32 %s, %s, s7' % (sT0, sT0))
        a('s_sub_u32 %s, %s, %s' % (sL0, sT0, sL0))
        a('s_add_u32 %s, %s, %s' % (sLAST, sLAST, sL0))
        a('s_add_u32 %s, s7, 0x18000' % sH2)
        a('s_cmp_eq_u32 %s, 2' % sT2)
        a('s_cselect_b32 %s, %s, %s' % (sH2, sLAST, sH2))
        a('v_bfe_u32 v1, v0, 2, 2')
        a('v_lshlrev_b32 v1, 8, v1')
        a('v_lshrrev_b32 v4, 4, v0')
        a('v_lshl_add_u32 v1, v4, 6, v1')
        a('v_and_b32 v4, 3, v0')
        a('v_lshl_add_u32 v1, v4, 4, v1')
        a('v_and_b32 v5, 7, v0')
        a('v_lshlrev_b32 v5, 8, v5')
        a('v_lshrrev_b32 v6, 4, v0')
        a('v_lshl_add_u32 v5, v6, 6, v5')
        a('v_bfe_u32 v6, v0, 3, 1')
        a('v_lshl_add_u32 v5, v6, 4, v5')
        a('s_mov_b32 %s, %s' % (sC0, f32(128 ** -0.5)))
        a('s_mov_b32 %s, 0x%x' % (sC1, LOG2E))
        a('s_lshl_b32 %s, s3, 9' % sT0)
        a('v_lshlrev_b32 v24, 3, v0')
        a('v_add_u32 v24, %s, v24' % sT0)
        a('v_lshrrev_b32 v26, 5, v0')
        a('v_lshlrev_b32 v26, 10, v26')
        a('v_lshrrev_b32 v4, 3, v0')
        a('v_subrev_u32 v4, s3, v4')
        a('v_and_b32 v4, 7, v4')
        a('v_and_b32 v25, 3, v4')
        a('v_lshlrev_b32 v25, 4, v25')
        a('v_lshrrev_b32 v4, 2, v4')
        a('v_lshl_add_u32 v25, v4, 13, v25')
        a('v_and_b32 v4, 1, v0')
        a('v_lshl_add_u32 v25, v4, 14, v25')
        a('v_bfe_u32 v4, v0, 1, 1')
        a('v_lshl_add_u32 v25, v4, 6, v25')
        a('v_bfe_u32 v4, v0, 2, 1')
        a('v_lshl_add_u32 v25, v4, 15, v25')
        a('s_lshl_b32 %s, %s, 3' % (sT0, sG))
        a('s_add_u32 %s, %s, s3' % (sT0, sT0))
        a('s_lshl_b32 s82, %s, 16' % sT0)
        a('s_lshl_b32 %s, %s, 7' % (sT1, sU))
        a('s_add_u32 s82, s82, %s' % sT1)
        a('s_add_u32 s82, s82, 0x%x' % OFF_O)
        a('s_lshl_b32 s83, %s, 11' % sT0)
        a('s_lshl_b32 %s, %s, 4' % (sT1, sU))
        a('s_add_u32 s83, s83, %s' % sT1)
        a('s_add_u32 s83, s83, 0x%x' % OFF_ML)
        s.ptrs_ready()
        s.srd(SRD_K, P_K, 0x4000000)
        s.srd(SRD_V, P_V, 0x4000000)
        W, NB = s.W, s.NB
        def pre(j):
            so = sH2
            if j < 12:
                a('s_add_u32 %s, s7, 0x%x' % (sT0, (j >> 3) * 65536 + ((j >> 2) & 1) * 32768)); so = sT0
            a('buffer_load_dwordx4 %s, v1, %s, %s offen offset:%d %s' % (v(s.BUF + 4 * j, 4), SRD_K, so, (j & 3) * 1024, s.nt))
        a('s_sub_u32 %s, %s, 8' % (sT0, sU))
        if CLASSES[1][2] <= 8:
            a('s_cmp_lt_u32 %s, 14' % sT0)
            a('s_cbranch_scc1 L_st_dynonly')
        if s.hold >= 2:
            a('s_cmp_lt_u32 %s, 16' % sT0)
            a('s_cbranch_scc1 L_st_hold')
            a('s_cmp_ge_u32 %s, 32' % sU)
            a('s_cbranch_scc1 L_st_hold')
        elif s.hold == 1:
            a('s_sub_u32 %s, %s, 32' % (sT0, sU))
            a('s_cmp_lt_u32 %s, 16' % sT0)
            a('s_cbranch_scc1 L_st_hold')
        pre(0)
        a('s_barrier')
        for j in range(1, s.slow + 1):
            a('s_waitcnt vmcnt(0)')
            pre(j)
        a('s_branch L_st_go')
        a.label('L_st_hold')
        a('s_barrier')
        s.wait_lds(CNT_T, 4, sleep=1)
        for j in range(0, s.slow + 1): pre(j)
        a.label('L_st_go')
        for j in range(s.slow + 1, 16):
            a('s_waitcnt vmcnt(%d)' % (W - 1))
            pre(j)
            if j == 8: s.tag_ready()
            if j == s.kq: s.signal(CNT_K)
        s3norm = CLASSES[1][2] >= 24 and s.w2late
        if not s3norm:
            a('s_sub_u32 %s, %s, 8' % (sT0, sU))
            a('s_cmp_lt_u32 %s, 14' % sT0)
            a('s_cbranch_scc1 L_st_s3')
        a('s_cmp_eq_u32 %s, 3' % sT2)
        a('s_cbranch_scc1 L_st_n3l')
        s.stream_body(4, s.NL, 'a')
        a('s_branch L_st_dyn')
        a.label('L_st_n3l')
        s.stream_body(3, s.NL, 'b')
        a('s_branch L_st_dyn')
        a.label('L_st_s3')
        g3 = CLASSES[1][2]
        lo = g3 >> 3
        if s3norm:
            pass
        elif g3 <= 8:
            a.label('L_st_dynonly')
            a('s_waitcnt lgkmcnt(0)')
            a('s_barrier')
            if g3:
                s.wait_lds(CNT_T, 4, sleep=1)
                a('s_add_u32 %s, s7, 0x8000' % sT1)
                for i in range(8):
                    a('buffer_load_dwordx4 %s, v1, %s, %s offen offset:%d %s' % (v(s.BUF + 4 * i, 4), SRD_K, 's7' if i < 4 else sT1, (i & 3) * 1024, s.nt))
                    if i >= 3: a('s_waitcnt vmcnt(3)')
                for i in range(8):
                    a('buffer_load_dwordx4 %s, v2, %s, %s offen offset:%d %s' % (v(s.BUF + 32 + 4 * i, 4), SRD_V, 's7' if i < 4 else sT1, (i & 3) * 1024, s.nt))
                    a('s_waitcnt vmcnt(3)')
            a('s_add_u32 %s, %s, 1' % (sTAG, sTAG))
            for r_ in range(32): a('v_mov_b32 %s, 0' % v(s.O + r_))
            a('v_mov_b32 v6, %s' % f32(-3.0e38))
            a('v_mov_b32 v7, 0')
            s.stamp(1)
            a('s_cmp_ge_u32 s3, 4')
            a('s_cbranch_scc1 L_st_qwz')
            s.q_wait(s.BUF + 64, sleep=s.qsleep0)
            a.label('L_st_qwz')
            s.wait_lds(CNT_Q, 4, sleep=4)
            s.stamp(2)
            a('s_waitcnt vmcnt(0)')
            s.first_ticket(s.ND3)
        else:
            if g3 & 7:
                a('s_cmp_eq_u32 %s, %d' % (sT2, lo))
                a('s_cbranch_scc1 L_st_n3')
                s.stream_body(lo + 1, 0, 'c')
                a('s_branch L_st_dyn')
                a.label('L_st_n3')
            s.stream_body(lo, 0, 'd')
            if not s.s3dyn: a('s_branch L_st_fin')
        a.label('L_st_dyn')
        s.dyn_loop()
        a.label('L_st_fin')
        s.stream_fin()

    def first_ticket(s, nd=None):
        a = s.a; L = a.newlabel('tk')
        a('v_mov_b32 %s, -1' % v(s.TK))
        a('s_cmp_ge_u32 s3, %d' % (nd or s.ND))
        a('s_cbranch_scc1 %s' % L)
        s.ticket_addr()
        s.ticket()
        a.label(L)
    def ticket_addr(s):
        a = s.a
        a('s_lshl_b32 %s, %s, 3' % (sH2, sG))
        a('s_and_b32 %s, s3, %d' % (sT0, s.ND - 1))
        a('s_add_u32 %s, %s, %s' % (sH2, sH2, sT0))
        a('s_lshl_b32 %s, %s, 8' % (sH2, sH2))
        a('s_add_u32 %s, %s, 0x%x' % (sH2, sH2, OFF_CNT))
    def ticket(s):
        a = s.a
        a('v_mov_b32 %s, 1' % v(s.TK))
        s.ex(1)
        a('buffer_atomic_add %s, v3, %s, %s offen sc0 sc1' % (v(s.TK), SRD_WS, sH2))
        s.ex(-1)

    def dyn_loop(s):
        a = s.a
        SP, O, T, BUF = s.SP, s.O, s.T, s.BUF
        if s.PS == 0: return
        KS = [BUF + 4 * i for i in range(8)]; VS = [BUF + 32 + 4 * i for i in range(8)]
        D = BUF + 64; TU = BUF + 80; AL = BUF + 84; X0 = BUF + 88
        a('s_and_b32 %s, s3, %d' % (sT0, s.ND - 1))
        a('s_mul_i32 %s, %s, %d' % (sT0, sT0, s.PS))
        a('s_add_u32 %s, %s, %d' % (sT0, sT0, 2 * s.static))
        a('s_lshl_b32 s7, %s, 12' % sT0)
        a('s_lshl_b32 %s, %s, 24' % (sT0, sG))
        a('s_add_u32 s7, s7, %s' % sT0)
        a('v_and_b32 v5, 7, v0')
        a('v_lshlrev_b32 v5, 8, v5')
        a('v_lshrrev_b32 v4, 4, v0')
        a('v_lshl_add_u32 v5, v4, 6, v5')
        a('v_bfe_u32 v4, v0, 3, 1')
        a('v_lshl_add_u32 v5, v4, 4, v5')
        if CLASSES[1][2] == 8:
            a('s_sub_u32 %s, %s, 8' % (sT0, sU))
            a('s_cmp_lt_u32 %s, 14' % sT0)
            a('s_cbranch_scc1 L_dyn_have')
        a.label('L_dyn')
        a('s_waitcnt vmcnt(0)')
        a('v_readfirstlane_b32 %s, %s' % (sT1, v(s.TK)))
        a('s_cmp_ge_u32 %s, %d' % (sT1, s.PS))
        a('s_cbranch_scc1 L_st_fin')
        a('s_lshl_b32 %s, %s, 12' % (sT1, sT1))
        a('s_add_u32 %s, %s, s7' % (sT0, sT1))
        a('s_add_u32 %s, %s, %d' % (sT1, sT0, s.PS * s.ND * 4096))
        for i in range(8):
            a('buffer_load_dwordx4 %s, v1, %s, %s offen offset:%d %s' % (v(KS[i], 4), SRD_K, sT0 if i < 4 else sT1, (i & 3) * 1024, s.nt))
        for i in range(8):
            a('buffer_load_dwordx4 %s, v2, %s, %s offen offset:%d %s' % (v(VS[i], 4), SRD_V, sT0 if i < 4 else sT1, (i & 3) * 1024, s.nt))
        s.ticket()
        a.label('L_dyn_have')
        a('ds_read_b128 %s, v5 offset:%d' % (v(T, 4), L_Q))
        a('ds_read_b128 %s, v5 offset:%d' % (v(T + 4, 4), L_Q + 32))
        a('s_waitcnt lgkmcnt(0)')
        for n in range(4):
            a('s_waitcnt vmcnt(%d)' % (6 - 2 * n + 9))
            for bb in range(2):
                for m in range(2):
                    a('v_mfma_f32_16x16x32_bf16 %s, %s, %s, 0' % (v(D + 8 * bb + 4 * m, 4), v(KS[2 * n + bb], 4), v(T + 4 * m, 4)))
            for bb in range(2):
                d0 = D + 8 * bb; d1 = d0 + 4
                a('v_add_f32 %s, %s, %s' % (v(TU + 2 * bb), v(d0), v(d1 + 2)))
                a('v_add_f32 %s, %s, %s' % (v(TU + 2 * bb + 1), v(d0 + 1), v(d1 + 3)))
            a('v_add_f32_dpp %s, %s, %s row_ror:8 row_mask:0xf bank_mask:0x3' % (v(SP + n), v(TU + 1), v(TU)))
            a('v_add_f32_dpp %s, %s, %s row_ror:8 row_mask:0xf bank_mask:0xc' % (v(SP + n), v(TU + 2), v(TU + 3)))
        for n in (0, 2):
            s.rnd2(SP + n, SP + n + 1, X0)
            a('v_mul_f32 %s, %s, %s' % (v(SP + n), sC0, v(SP + n)))
            a('v_mul_f32 %s, %s, %s' % (v(SP + n + 1), sC0, v(SP + n + 1)))
            s.rnd2(SP + n, SP + n + 1, X0)
        a('v_max3_f32 %s, %s, %s, %s' % (v(X0), v(SP), v(SP + 1), v(SP + 2)))
        a('v_max3_f32 %s, %s, %s, v6' % (v(X0), v(X0), v(SP + 3)))
        s.bfly('v_max_f32', [X0], [X0 + 1], [8, 16, 32])
        a('v_sub_f32 %s, v6, %s' % (v(X0 + 2), v(X0)))
        a('v_mul_f32 %s, %s, %s' % (v(X0 + 2), sC1, v(X0 + 2)))
        a('v_exp_f32 %s, %s' % (v(X0 + 2), v(X0 + 2)))
        a('v_mov_b32 v6, %s' % v(X0))
        a('v_mul_f32 %s, %s, %s' % (v(X0 + 1), sC1, v(X0)))
        for n in range(4): a('v_fma_f32 %s, %s, %s, -%s' % (v(SP + n), v(SP + n), sC1, v(X0 + 1)))
        for n in range(4): a('v_exp_f32 %s, %s' % (v(SP + n), v(SP + n)))
        a('v_add_f32 %s, %s, %s' % (v(X0), v(SP), v(SP + 1)))
        a('v_add_f32 %s, %s, %s' % (v(X0 + 1), v(SP + 2), v(SP + 3)))
        a('v_add_f32 %s, %s, %s' % (v(X0), v(X0), v(X0 + 1)))
        a('v_cvt_pk_bf16_f32 %s, %s, %s' % (v(SP), v(SP), v(SP + 1)))
        a('v_cvt_pk_bf16_f32 %s, %s, %s' % (v(SP + 1), v(SP + 2), v(SP + 3)))
        s.bfly('v_add_f32', [X0], [X0 + 1], [8, 16, 32])
        a('v_mov_b32_dpp %s, %s row_ror:8 row_mask:0xf bank_mask:0xf' % (v(SP + 2), v(SP)))
        a('v_mov_b32_dpp %s, %s row_ror:8 row_mask:0xf bank_mask:0xf' % (v(SP + 3), v(SP + 1)))
        a('v_fma_f32 v7, v7, %s, %s' % (v(X0 + 2), v(X0)))
        for e in range(8):
            for r in range(4):
                a('v_mul_f32 %s, %s, %s' % (v(O + 4 * e + r), v(O + 4 * e + r), v(X0 + 2)))
        a('s_waitcnt vmcnt(1)')
        beta = [0, 2, 4, 6, 1, 3, 5, 7]
        src = [VS[beta[t]] for t in range(8)]
        for half in range(2):
            for e in range(4 * half, 4 * half + 4):
                for j in range(4):
                    a('v_perm_b32 %s, %s, %s, %s' % (v(T + 4 * (e & 3) + j), v(src[2 * j + 1] + (e >> 1)), v(src[2 * j] + (e >> 1)),
                                                     sSELHI if e & 1 else sSELLO))
            for e in range(4 * half, 4 * half + 4):
                a('v_mfma_f32_16x16x32_bf16 %s, %s, %s, %s' % (v(O + 4 * e, 4), v(T + 4 * (e & 3), 4), v(SP, 4), v(O + 4 * e, 4)))
        a('s_branch L_dyn')

    def stream_body(s, ng, NL, tag):
        a = s.a
        SP, O, T, BUF, NB, W, W2 = s.SP, s.O, s.T, s.BUF, s.NB, s.W, s.W2
        QF = T; TU = T + 8
        nk = 8 * ng
        def addr(j, full):
            blk = j % nk
            imm = (blk & 3) * 1024
            if blk >= nk - 4: base, o = sLAST, 0
            elif blk >= nk - 8: base, o = sL0, 0
            else: base, o = 's7', (blk >> 3) * 65536 + ((blk >> 2) & 1) * 32768
            if full: o += imm; imm = 0
            a('s_add_u32 %s, %s, 0x%x' % (sT0, base, o))
            return imm
        for j in range(16, NB):
            o = addr(j, False)
            a('s_waitcnt vmcnt(%d)' % (W - 1))
            a('buffer_load_dwordx4 %s, %s, %s, %s offen offset:%d %s' % (v(BUF + 4 * j, 4), 'v1' if j < nk else 'v2',
                                                                        SRD_K if j < nk else SRD_V, sT0, o, s.nt))
            if j == s.kq: s.signal(CNT_K)
        if NL:
            a('s_mul_i32 %s, s3, %d' % (sT1, NL * 1024))
            a('s_add_u32 %s, %s, %d' % (sT1, sT1, L_W2))
            for i in range(NL):
                j = NB + i
                addr(j, True)
                a('s_add_u32 m0, %s, %d' % (sT1, i * 1024))
                a('s_waitcnt vmcnt(%d)' % (W - 1))
                a('buffer_load_dwordx4 %s, %s, %s offen %s lds' % ('v1' if j < nk else 'v2', SRD_K if j < nk else SRD_V, sT0, s.nt))
        s.stamp(1)
        LQ = 'L_st_qw' + tag
        a('s_cmp_ge_u32 s3, 4')
        a('s_cbranch_scc1 %s' % LQ)
        s.q_wait(s.O)
        a.label(LQ)
        s.wait_lds(CNT_Q, 4, sleep=2)
        s.stamp(2)
        a('ds_read_b128 %s, v5 offset:%d' % (v(s.T, 4), L_Q))
        a('ds_read_b128 %s, v5 offset:%d' % (v(s.T + 4, 4), L_Q + 32))
        if NL:
            a('s_mul_i32 %s, s3, %d' % (sT1, NL * 1024))
            a('s_add_u32 %s, %s, %d' % (sT1, sT1, L_W2))
            a('v_add_u32 v4, %s, v2' % sT1)
        issued = [NB + NL]
        where = {j: BUF + 4 * j for j in range(NB)}
        free = []
        pend = [False]; tk = [False]
        def slot(j): return where[j]
        def inlds(j): return NB <= j < NB + NL
        def landed(j):
            a('s_waitcnt vmcnt(%d)' % (issued[0] - 1 - j))
        def stage(j):
            r = free.pop(0); where[j] = r
            landed(j)
            a('ds_read_b128 %s, v4 offset:%d' % (v(r, 4), (j - NB) * 1024))
            pend[0] = True
        def issue():
            j = issued[0]
            r = free.pop(0); where[j] = r
            o = addr(j, False)
            a('s_waitcnt vmcnt(%d)' % (W2 - 1))
            a('buffer_load_dwordx4 %s, %s, %s, %s offen offset:%d %s' % (v(r, 4), 'v1' if j < nk else 'v2',
                                                                        SRD_K if j < nk else SRD_V, sT0, o, s.nt))
            issued[0] += 1
        def need(j0, j1):
            for j in range(j0, j1 + 1):
                if j not in where:
                    assert free, (ng, NL, j)
                    if inlds(j): stage(j)
                    else:
                        assert j == issued[0]
                        issue()
            top = max([j for j in range(j0, j1 + 1) if not inlds(j)], default=None)
            if top is not None: landed(top)
            if pend[0] and any(inlds(j) for j in range(j0, j1 + 1)):
                a('s_waitcnt lgkmcnt(0)'); pend[0] = False
        def done(j0, j1, look):
            for j in range(j0, j1 + 1): free.append(where[j])
            for j in range(j1 + 1, j1 + 1 + look):
                if inlds(j) and j not in where and free: stage(j)
            while free and issued[0] < 2 * nk:
                un = [j for j in range(NB, NB + NL) if j not in where]
                unk = [j for j in un if j < nk]; unv = [j for j in un if j >= nk]
                kleft = len([j for j in range(j1 + 1, nk) if j in where])
                res = min(len(unk), 2) + max(0, len(unv) - kleft)
                if len(free) <= res: break
                issue()
        a('s_waitcnt lgkmcnt(0)')
        npair = 4 * ng
        def qk_post(n):
            D = O + 16 * (n & 1)
            for bb in range(2):
                d0 = D + 8 * bb; d1 = d0 + 4
                t, u = TU + 2 * bb, TU + 2 * bb + 1
                a('v_add_f32 %s, %s, %s' % (v(t), v(d0), v(d1 + 2)))
                a('v_add_f32 %s, %s, %s' % (v(u), v(d0 + 1), v(d1 + 3)))
            a('v_add_f32_dpp %s, %s, %s row_ror:8 row_mask:0xf bank_mask:0x3' % (v(SP + n), v(TU + 1), v(TU)))
            a('v_add_f32_dpp %s, %s, %s row_ror:8 row_mask:0xf bank_mask:0xc' % (v(SP + n), v(TU + 2), v(TU + 3)))
        for n in range(npair):
            need(2 * n, 2 * n + 1)
            D = O + 16 * (n & 1)
            for bb in range(2):
                for m in range(2):
                    a('v_mfma_f32_16x16x32_bf16 %s, %s, %s, 0' % (v(D + 8 * bb + 4 * m, 4), v(slot(2 * n + bb), 4), v(QF + 4 * m, 4)))
            if n > 0: qk_post(n - 1)
            done(2 * n, 2 * n + 1, 2 if n < npair - 4 else 8)
        qk_post(npair - 1)
        s.stamp(3)
        for n in range(0, npair, 2):
            t = O + (n >> 1)
            s.rnd2(SP + n, SP + n + 1, t)
            a('v_mul_f32 %s, %s, %s' % (v(SP + n), sC0, v(SP + n)))
            a('v_mul_f32 %s, %s, %s' % (v(SP + n + 1), sC0, v(SP + n + 1)))
            s.rnd2(SP + n, SP + n + 1, t)
        a('v_max3_f32 v6, %s, %s, %s' % (v(SP), v(SP + 1), v(SP + 2)))
        for n in range(3, npair - 1, 2):
            a('v_max3_f32 v6, v6, %s, %s' % (v(SP + n), v(SP + n + 1)))
        a('v_max_f32 v6, v6, %s' % v(SP + npair - 1))
        s.bfly('v_max_f32', [6], [5], [8, 16, 32])
        a('v_mul_f32 v5, %s, v6' % sC1)
        for n in range(npair):
            a('v_fma_f32 %s, %s, %s, -v5' % (v(SP + n), v(SP + n), sC1))
        for n in range(npair):
            a('v_exp_f32 %s, %s' % (v(SP + n), v(SP + n)))
        a('v_add_f32 v7, %s, %s' % (v(SP), v(SP + 1)))
        for n in range(2, npair):
            a('v_add_f32 v7, v7, %s' % v(SP + n))
        for G in range(ng):
            p = SP + 4 * G
            a('v_cvt_pk_bf16_f32 %s, %s, %s' % (v(p), v(p), v(p + 1)))
            a('v_cvt_pk_bf16_f32 %s, %s, %s' % (v(p + 1), v(p + 2), v(p + 3)))
        for G in range(ng):
            p = SP + 4 * G
            a('v_mov_b32_dpp %s, %s row_ror:8 row_mask:0xf bank_mask:0xf' % (v(p + 2), v(p)))
            a('v_mov_b32_dpp %s, %s row_ror:8 row_mask:0xf bank_mask:0xf' % (v(p + 3), v(p + 1)))
        s.bfly('v_add_f32', [7], [5], [8, 16, 32])
        s.stamp(4)
        beta = [0, 2, 4, 6, 1, 3, 5, 7]
        for G in range(ng):
            if s.PS and G == ng - s.tkg and (NL or s.s3dyn):
                tk[0] = True
                s.first_ticket()
            need(nk + 8 * G, nk + 8 * G + 7)
            src = [slot(nk + 8 * G + beta[t]) for t in range(8)]
            for half in range(2):
                for e in range(4 * half, 4 * half + 4):
                    for j in range(4):
                        a('v_perm_b32 %s, %s, %s, %s' % (v(T + 4 * (e & 3) + j), v(src[2 * j + 1] + (e >> 1)), v(src[2 * j] + (e >> 1)),
                                                         sSELHI if e & 1 else sSELLO))
                for e in range(4 * half, 4 * half + 4):
                    c = '0' if G == 0 else v(O + 4 * e, 4)
                    a('v_mfma_f32_16x16x32_bf16 %s, %s, %s, %s' % (v(O + 4 * e, 4), v(T + 4 * (e & 3), 4), v(SP + 4 * G, 4), c))
            done(nk + 8 * G, nk + 8 * G + 7, 8)
        pass

    def stream_fin(s):
        a = s.a
        O = s.O
        s.stamp(5)
        AD = s.BUF + 64
        a('v_and_b32 v4, 7, v0')
        a('v_lshlrev_b32 v5, 9, v4')
        a('v_lshlrev_b32 v4, 6, v4')
        a('v_lshrrev_b32 %s, 4, v0' % v(AD))
        a('v_lshl_add_u32 v5, %s, 4, v5' % v(AD))
        a('s_lshl_b32 %s, s3, 12' % sT0)
        a('v_add_u32 v5, %s, v5' % sT0)
        a('s_movk_i32 %s, 0x1c0' % sT2)
        for e in range(8):
            a('v_add_u32 %s, %d, v4' % (v(AD + e), 64 * e))
            a('v_and_or_b32 %s, %s, %s, v5' % (v(AD + e), v(AD + e), sT2))
        a('s_lshl_b32 %s, s3, 3' % sT1)
        a('v_add_u32 v4, %s, v4' % sT1)
        a('s_mov_b32 %s, 0x00ff00ff' % sT0); a('s_mov_b32 %s, 0x00ff00ff' % sT1)
        s.ex('s[64:65]')
        for e in range(8):
            a('ds_write_b128 %s, %s offset:%d' % (v(AD + e), v(O + 4 * e, 4), L_OB))
        s.ex(0xff)
        a('ds_write_b64 v4, v[6:7] offset:%d' % L_ML)
        s.ex(-1)
        a('s_lshl_b32 %s, s3, 6' % sT0)
        a('v_mov_b32 v5, %s' % sT0)
        ML = 76; OB = 92; F = 108; G_ = 116
        for k in (1, 3, 5, 7): a('v_mov_b32 %s, %s' % (v(G_ + k), sTAG))
        a('s_mov_b32 %s, 1' % sT0); a('s_mov_b32 %s, 1' % sT1)
        s.lds_spin(['ds_read_b128 %s, v5 offset:%d' % (v(ML + 4 * k, 4), L_ML + 16 * k) for k in range(4)],
                   [ML + 2 * w + 1 for w in range(8)], 4, sleep=s.finsleep)
        for w in range(8):
            a('ds_read_b64 %s, v24 offset:%d' % (v(OB + 2 * w, 2), L_OB + 4096 * w))
        if s.finst: s.stamp(1)
        M = G_ + 4
        a('v_max3_f32 %s, %s, %s, %s' % (v(M), v(ML), v(ML + 2), v(ML + 4)))
        a('v_max3_f32 %s, %s, %s, %s' % (v(M), v(M), v(ML + 6), v(ML + 8)))
        a('v_max3_f32 %s, %s, %s, %s' % (v(M), v(M), v(ML + 10), v(ML + 12)))
        a('v_max_f32 %s, %s, %s' % (v(M), v(M), v(ML + 14)))
        for w in range(8): a('v_sub_f32 %s, %s, %s' % (v(F + w), v(ML + 2 * w), v(M)))
        for w in range(8): a('v_mul_f32 %s, %s, %s' % (v(F + w), sC1, v(F + w)))
        for w in range(8): a('v_exp_f32 %s, %s' % (v(F + w), v(F + w)))
        Ls = G_ + 6
        a('v_mul_f32 %s, %s, %s' % (v(Ls), v(F), v(ML + 1)))
        for w in range(1, 8): a('v_fmac_f32 %s, %s, %s' % (v(Ls), v(F + w), v(ML + 2 * w + 1)))
        a('s_waitcnt lgkmcnt(0)')
        a('v_mul_f32 %s, %s, %s' % (v(G_), v(F), v(OB)))
        a('v_mul_f32 %s, %s, %s' % (v(G_ + 2), v(F), v(OB + 1)))
        for w in range(1, 8):
            a('v_fmac_f32 %s, %s, %s' % (v(G_), v(F + w), v(OB + 2 * w)))
            a('v_fmac_f32 %s, %s, %s' % (v(G_ + 2), v(F + w), v(OB + 2 * w + 1)))
        if s.finst: s.stamp(2)
        s.st_ws(G_, 'v25', 's82')
        s.ex('s[64:65]')
        s.st_ws(G_ + 4, 'v26', 's83')
        s.ex(-1)
        s.signal(CNT_PUB)
        s.stamp(6)
        a('s_cmp_ge_u32 %s, 48' % sU)
        a('s_cbranch_scc1 L_s1c')
        a('s_cbranch_execz L_w2')
        a('s_sub_u32 %s, %s, 8' % (sT0, sU))
        a('s_cmp_ge_u32 %s, 14' % sT0)
        a('s_cbranch_scc1 L_end')
        a('s_cmp_ge_u32 s3, 4')
        a('s_cbranch_scc1 L_end')
        a.label('L_w2')
        s.w2_stream()
        a.label('L_s1c')
        s.s1_combine()

    def s1_combine(s):
        a = s.a
        a.c('---------------- S1 combine (stream waves of u 48..63): wave w merges 8 dims of half a head over the 64 WGs of the kv head')
        a('s_lshl_b32 %s, %s, 4' % (sJ, sG))
        a('s_add_u32 %s, %s, %s' % (sJ, sJ, sU))
        a('s_sub_u32 %s, %s, 48' % (sJ, sJ))
        a('s_lshl_b32 %s, %s, 15' % (sC2, sJ))
        a('s_lshr_b32 %s, s3, 1' % sT0)
        a('s_lshl_b32 %s, %s, 13' % (sT0, sT0))
        a('s_add_u32 %s, %s, %s' % (sC2, sC2, sT0))
        a('s_and_b32 %s, s3, 1' % sT0)
        a('s_lshl_b32 %s, %s, 6' % (sT0, sT0))
        a('s_add_u32 %s, %s, %s' % (sC2, sC2, sT0))
        a('s_add_u32 %s, %s, 0x%x' % (sC2, sC2, OFF_O))
        a('s_add_u32 %s, %s, 4096' % (sC3, sC2))
        a('s_lshl_b32 %s, %s, 10' % (sC0, sJ))
        a('s_add_u32 %s, %s, 0x%x' % (sC0, sC0, OFF_ML))
        a('v_lshrrev_b32 v5, 2, v0')
        a('v_lshlrev_b32 v6, 2, v5')
        a('v_lshlrev_b32 v5, 7, v5')
        a('v_and_b32 v7, 3, v0')
        a('v_lshl_add_u32 v5, v7, 4, v5')
        a('v_lshlrev_b32 v7, 2, v7')
        a('s_lshl_b32 %s, s3, 4' % sT0)
        a('v_add_u32 v7, %s, v7' % sT0)
        P = 8; MLr = 24; W_ = 28
        s.wait_lds(CNT_PUB, 8)
        s.stamp(4)
        s.ppoll([(MLr, 'v2', sC0, 0)] + [(P + 4 * k, 'v5', sC2 if k < 2 else sC3, (k & 1) * 2048) for k in range(4)], s.pd)
        s.stamp(3)
        Mx, Fx, Lx, T_, FF, A0 = W_, W_ + 1, W_ + 2, W_ + 3, W_ + 4, W_ + 8
        a('v_mov_b32 %s, %s' % (v(Mx), v(MLr)))
        s.bfly('v_max_f32', [Mx], [T_], [1, 2, 4, 8, 16, 32])
        a('v_sub_f32 %s, %s, %s' % (v(Fx), v(MLr), v(Mx)))
        a('v_mul_f32 %s, %s, %s' % (v(Fx), sC1, v(Fx)))
        a('v_exp_f32 %s, %s' % (v(Fx), v(Fx)))
        for k in range(4):
            a('ds_bpermute_b32 %s, v6, %s offset:%d' % (v(FF + k), v(Fx), 64 * k))
        a('v_mul_f32 %s, %s, %s' % (v(Lx), v(MLr + 2), v(Fx)))
        s.bfly('v_add_f32', [Lx], [T_], [1, 2, 4, 8, 16, 32])
        a('v_rcp_f32 %s, %s' % (v(Mx), v(Lx)))
        a('s_waitcnt lgkmcnt(0)')
        a('v_mul_f32 %s, %s, %s' % (v(A0), v(P), v(FF)))
        a('v_mul_f32 %s, %s, %s' % (v(A0 + 1), v(P + 2), v(FF)))
        for k in range(1, 4):
            a('v_fmac_f32 %s, %s, %s' % (v(A0), v(P + 4 * k), v(FF + k)))
            a('v_fmac_f32 %s, %s, %s' % (v(A0 + 1), v(P + 4 * k + 2), v(FF + k)))
        for st in (4, 8):
            for r_ in (A0, A0 + 1):
                a('v_add_f32_dpp %s, %s, %s row_ror:%d row_mask:0xf bank_mask:0xf' % (v(r_), v(r_), v(r_), st))
        s.bfly('v_add_f32', [A0, A0 + 1], [A0 + 2, A0 + 3], [16, 32])
        s.div([A0, A0 + 1], Lx, Mx, [A0 + 2, A0 + 3])
        a('v_cvt_pk_bf16_f32 %s, %s, %s' % (v(A0), v(A0), v(A0 + 1)))
        s.ex(0xf)
        a('ds_write_b32 v7, %s offset:%d' % (v(A0), L_O))
        s.ex(-1)
        a('s_branch L_end')

    def gemvR_setup(s, xbase):
        a = s.a
        a('v_lshrrev_b32 v1, 5, v0')
        a('v_lshlrev_b32 v1, 4, v1')
        a('v_add_u32 v1, %s, v1' % xbase)
        a('v_lshrrev_b32 v4, 4, v0')
        a('v_xor_b32 v4, v4, v0')
        a('v_and_b32 v4, 1, v4')
        a('v_cmp_eq_u32 vcc, 0, v4')
        a('v_mov_b32 v4, %d' % L_ZERO)
        a('v_cndmask_b32 v1, v4, v1, vcc')
        a('v_lshrrev_b32 v4, 4, v0')
        a('v_cmp_eq_u32 %s, 1, v4' % sM0)
        a('v_cmp_eq_u32 %s, 2, v4' % sM1)
        a('v_cmp_eq_u32 s[82:83], 3, v4')
    def gemvR_publish(s, acc, voff):
        a = s.a
        G = s.R[3] + 16
        for mu in range(2):
            for k in range(2):
                d = G + 4 * mu + 2 * k
                a('v_cndmask_b32 %s, %s, %s, %s' % (v(d), v(acc[k] + mu), v(acc[2 + k] + mu), sM0))
                a('v_cndmask_b32 %s, %s, %s, %s' % (v(d), v(d), v(acc[4 + k] + mu), sM1))
                a('v_cndmask_b32 %s, %s, %s, %s' % (v(d), v(d), v(acc[6 + k] + mu), 's[82:83]'))
                a('v_mov_b32 %s, %s' % (v(d + 1), sTAG))
        s.st_ws(G, voff, sC2)
        s.st_ws(G + 4, voff, sC3)
    def w2_voff(s, sh=14):
        a = s.a
        a('v_lshrrev_b32 v1, 5, v0')
        a('v_lshlrev_b32 v1, %d, v1' % sh)
        a('v_and_b32 v4, 31, v0')
        a('v_lshl_add_u32 v1, v4, 4, v1')
        a('s_lshl_b32 s7, %s, 17' % sJ)
        a('s_lshl_b32 %s, %s, 9' % (sT0, sR))
        a('s_add_u32 s7, s7, %s' % sT0)

    def w2_stream(s):
        a = s.a
        a.c('---------------- W2 (stream waves 0..3 of S3 WGs): hh = gelu(.), partial out = hh @ w2[64 rows, 256 cols per wave]')
        F = s.R[3]
        TB = [s.X] + s.R[:3]
        a('s_mul_i32 %s, %s, 14' % (sJ, sG))
        a('s_add_u32 %s, %s, %s' % (sJ, sJ, sU))
        a('s_sub_u32 %s, %s, 8' % (sJ, sJ))
        s.srd(SRD_W, P_W2, 3584 * 2048)
        if s.w2late:
            s.w2_voff()
            s.wait_lds(CNT_PUB, 8, sleep=1)
            s.tile_load(4, 'v1', 's7', 16 * 2048, 2048, s.w2pace)
            s.tile_transpose(4)
            s.wait_lds(CNT_W, 4, sleep=1)
        else:
            a('s_cbranch_execz L_w2a')
            a('s_cmp_lg_u32 s3, 3')
            a('s_cbranch_scc1 L_w2a')
            s.w2_voff()
            for t in range(8):
                a('s_add_u32 %s, s7, 0x%x' % (sT0, 3 * 16 * 2048 + t * 2048))
                a('buffer_load_dwordx4 %s, v1, %s, %s offen %s' % (v(F + 4 * t, 4), SRD_W, sT0, s.nt))
            a.label('L_w2a')
            s.wait_lds(CNT_W, 4, sleep=1)
            a('s_lshl_b32 %s, s3, 15' % sT0)
            a('s_add_u32 %s, %s, %d' % (sT0, sT0, L_W2))
            a('v_add_u32 v5, %s, v2' % sT0)
            for b in range(3):
                for e in range(8):
                    a('ds_read_b128 %s, v5 offset:%d' % (v(TB[b] + 4 * e, 4), 8192 * b + 1024 * e))
            a('s_cbranch_execz L_w2b')
            a('s_cmp_eq_u32 s3, 3')
            a('s_cbranch_scc1 L_w2c')
            a.label('L_w2b')
            for e in range(8):
                a('ds_read_b128 %s, v5 offset:%d' % (v(TB[3] + 4 * e, 4), 8192 * 3 + 1024 * e))
            a('s_cbranch_execnz L_w2d')
            a.label('L_w2c')
            s.vmwait(0)
            for e in range(8):
                for j in range(4):
                    a('v_perm_b32 %s, %s, %s, %s' % (v(TB[3] + 4 * e + j), v(F + 4 * (2 * j + 1) + (e >> 1)),
                                                     v(F + 4 * (2 * j) + (e >> 1)), sSELHI if e & 1 else sSELLO))
            a.label('L_w2d')
        a('s_lshl_b32 %s, s3, 7' % sT1)
        a('s_add_u32 %s, %s, %d' % (sT1, sT1, L_H))
        s.gemvR_setup(sT1)
        a('v_and_b32 v6, 15, v0')
        a('v_lshlrev_b32 v6, 3, v6')
        a('ds_read_b64 %s, v6 offset:%d' % (v(F + 30, 2), L_B1))
        a('v_add_u32 v6, %s, v6' % sT1)
        a('v_bfe_u32 v7, v0, 2, 2')
        a('v_mul_u32_u24 v7, 14336, v7')
        a('v_and_b32 v4, 3, v0')
        a('v_mul_u32_u24 v4, 3584, v4')
        a('v_add_u32 v7, v7, v4')
        a('v_lshrrev_b32 v4, 4, v0')
        a('v_lshl_add_u32 v7, v4, 4, v7')
        a('s_mul_i32 %s, s3, %d' % (sC2, 8 * 14336))
        a('s_lshl_b32 %s, %s, 6' % (sT0, sJ))
        a('s_add_u32 %s, %s, %s' % (sC2, sC2, sT0))
        a('s_add_u32 %s, %s, 0x%x' % (sC2, sC2, OFF_HH))
        a('s_add_u32 %s, %s, %d' % (sC3, sC2, 4 * 14336))
        a('s_mov_b32 %s, %s' % (sC0, f32(0.044715)))
        a('s_mov_b32 %s, %s' % (sC1, f32(-2.0 * math.sqrt(2.0 / math.pi) * math.log2(math.e))))
        a('s_waitcnt lgkmcnt(0)')
        B1 = F + 24; D = F + 16; TMP = F; T = F + 20
        s.unpack(F + 30, B1, B1 + 1); s.unpack(F + 31, B1 + 2, B1 + 3)
        s.gemvC_gather(4, D, TMP, spin=True)
        s.stamp(1)
        s.rnd2(D, D + 1, T); s.rnd2(D + 2, D + 3, T + 1)
        for c in range(4): a('v_add_f32 %s, %s, %s' % (v(D + c), v(D + c), v(B1 + c)))
        s.rnd2(D, D + 1, T); s.rnd2(D + 2, D + 3, T + 1)
        for c in range(4): a('v_mul_f32 %s, %s, %s' % (v(T + c), v(D + c), v(D + c)))
        for c in range(4): a('v_mul_f32 %s, %s, %s' % (v(T + c), v(T + c), v(D + c)))
        for c in range(4): a('v_fma_f32 %s, %s, %s, %s' % (v(T + c), v(T + c), sC0, v(D + c)))
        for c in range(4): a('v_mul_f32 %s, %s, %s' % (v(T + c), sC1, v(T + c)))
        for c in range(4): a('v_exp_f32 %s, %s' % (v(T + c), v(T + c)))
        for c in range(4): a('v_add_f32 %s, 1.0, %s' % (v(T + c), v(T + c)))
        for c in range(4): a('v_rcp_f32 %s, %s' % (v(T + c), v(T + c)))
        for c in range(4): a('v_mul_f32 %s, %s, %s' % (v(D + c), v(D + c), v(T + c)))
        a('v_cvt_pk_bf16_f32 %s, %s, %s' % (v(T), v(D), v(D + 1)))
        a('v_cvt_pk_bf16_f32 %s, %s, %s' % (v(T + 1), v(D + 2), v(D + 3)))
        s.ex(0xffff)
        a('ds_write_b64 v6, %s' % v(T, 2))
        s.ex(-1)
        acc = s.tile_mfma(4, 'v1', 32)
        s.gemvR_publish(acc, 'v7')
        s.seg_end()
        a('s_branch L_end')

    def role(s):
        a = s.a
        a.c('---------------- role wave')
        a('s_setprio 2')
        a('s_sub_u32 %s, s3, 8' % sR)
        a('v_lshlrev_b32 v4, 2, v0')
        a('ds_write_b32 v4, v3')
        for r_ in range(4): a('v_mov_b32 v%d, -1' % (8 + r_))
        a('ds_write_b128 v2, v[8:11] offset:%d' % L_RED)
        a('ds_write_b128 v2, v[8:11] offset:%d' % (L_RED + 1024))
        s.ptrs_ready()
        a('s_barrier')
        s.srd(SRD_OUT, P_OUT, 2048)
        a('s_mov_b32 %s, 0' % sPASS)
        for r_ in (16, 17, 18, 20): a('v_mov_b32 v%d, 0' % r_)
        a('s_cmp_lt_u32 %s, 8' % sU)
        a('s_cbranch_scc1 L_mod')
        a('s_cmp_lt_u32 %s, 24' % sU)
        a('s_cbranch_scc1 L_p1a')
        a('s_cmp_lt_u32 %s, 28' % sU)
        a('s_cbranch_scc1 L_p1b')
        a('s_cmp_lt_u32 %s, 32' % sU)
        a('s_cbranch_scc1 L_mod')
        a('s_cmp_lt_u32 %s, 48' % sU)
        a('s_cbranch_scc1 L_p2')
        a.label('L_p1a'); s.p1a_role()
        a.label('L_p1b'); s.p1b_role()
        a.label('L_mod'); s.tag_ready()
        a.label('L_mod2'); s.mod_role()
        a.label('L_p2'); s.p2_role()
        a.label('L_s1'); s.s1_role()
        a.label('L_s2'); s.s2_role()
        a.label('L_s3'); s.s3_role()
        a.label('L_warm_stream')
        s.warm_stream(20)
        a('s_branch L_end')

    def warm_stream(s, rid):
        if not s.dry: return
        s.dry_call('L_st_fin', rid)

    def gemvC_setup(s, ptr, pitch, nbytes, colbyte_sgpr, pace=0):
        a = s.a
        s.srd(SRD_W, ptr, nbytes)
        a('v_lshrrev_b32 v1, 3, v0')
        a('v_mul_u32_u24 v1, %d, v1' % (8 * pitch))
        a('v_and_b32 v4, 7, v0')
        a('v_lshl_add_u32 v1, v4, 4, v1')
        a('s_mul_i32 s7, %s, %d' % (sR, 256 * pitch))
        a('s_add_u32 s7, s7, %s' % colbyte_sgpr)
        s.tile_load(4, 'v1', 's7', 64 * pitch, pitch, pace)
    def afragC_addr(s):
        a = s.a
        a('v_lshrrev_b32 v1, 4, v0')
        a('v_lshlrev_b32 v1, 5, v1')
        a('v_and_b32 v4, 1, v0')
        a('v_lshl_add_u32 v1, v4, 4, v1')
        a('s_lshl_b32 %s, %s, 9' % (sT0, sR))
        a('s_add_u32 %s, %s, %d' % (sT0, sT0, L_X))
        a('v_add_u32 v1, %s, v1' % sT0)
    def xw_addr(s, dst):
        a = s.a
        a('s_lshl_b32 %s, %s, 9' % (sT0, sR))
        a('s_add_u32 %s, %s, %d' % (sT0, sT0, L_X))
        a('v_lshlrev_b32 %s, 3, v0' % dst)
        a('v_add_u32 %s, %s, %s' % (dst, sT0, dst))
    def q_wait(s, F, sleep=None):
        a = s.a
        a('s_lshl_b32 %s, s2, 12' % sC2)
        a('s_lshl_b32 %s, %s, 10' % (sT0, sR))
        a('s_add_u32 %s, %s, %s' % (sC2, sC2, sT0))
        a('s_add_u32 %s, %s, 0x%x' % (sC2, sC2, OFF_Q))
        s.poll([(F, 'v2', sC2, 0)], sleep=s.qsleep if sleep is None else sleep)
        a('v_mov_b32 %s, %s' % (v(F + 1), v(F + 2)))
        a('s_lshl_b32 %s, %s, 9' % (sT0, sR))
        a('v_lshlrev_b32 v4, 3, v0')
        a('v_add_u32 v4, %s, v4' % sT0)
        a('ds_write_b64 v4, %s offset:%d' % (v(F, 2), L_Q))
        s.signal(CNT_Q)

    def mod_role(s):
        a = s.a
        a.c('---------------- M2: mod slice = silu(c) @ w_mod[:, 64 cols]; S2 WGs (u 0..7): block 32+8g+u ; M WGs (u 24..31): block 64+8g+u-24')
        a('s_lshl_b32 %s, %s, 3' % (sT0, sG))
        a('s_add_u32 %s, %s, %s' % (sT0, sT0, sU))
        a('s_add_u32 %s, %s, 32' % (sT1, sT0))
        a('s_add_u32 %s, %s, 40' % (sT0, sT0))
        a('s_cmp_ge_u32 %s, 24' % sU)
        a('s_cselect_b32 %s, %s, %s' % (sJ, sT0, sT1))
        s.wait_lds(CNT_K, s.kqn, sleep=2)
        a('s_lshl_b32 %s, %s, 9' % (sT0, sR))
        a('v_lshlrev_b32 v4, 3, v0')
        a('v_add_u32 v4, %s, v4' % sT0)
        a('global_load_dwordx2 v[6:7], v4, %s' % sp(P_C))
        a('s_lshl_b32 %s, %s, 7' % (sT1, sJ))
        s.gemvC_setup(P_WM, 12288, 1024 * 12288, sT1, s.Wt)
        a('s_waitcnt vmcnt(32)')
        s.silu()
        s.afragC_addr()
        s.tile_transpose(4)
        s.stamp(1)
        acc = s.tile_mfma(4, 'v1', 128)
        s.gemvC_partial(acc, sR)
        s.signal(CNT_R1)
        s.wait_lds(CNT_R1, 4)
        D = 8; TMP = 16; G = 12
        s.gemvC_gather(4, D, TMP)
        s.mk_granule(G, D)
        a('v_and_b32 v5, 15, v0')
        a('v_lshlrev_b32 v5, 4, v5')
        a('v_lshrrev_b32 v6, 4, v0')
        a('s_lshl_b32 %s, %s, 4' % (sT0, sR))
        a('v_add_u32 v6, %s, v6' % sT0)
        a('s_cmp_lt_u32 %s, 48' % sJ)
        a('s_cbranch_scc1 L_pub_g')
        a('s_cmp_ge_u32 %s, 80' % sJ)
        a('s_cbranch_scc1 L_pub_g')
        a('s_sub_u32 %s, %s, 48' % (sT0, sJ))
        a('s_lshl_b32 %s, %s, 8' % (sT0, sT0))
        a('s_add_u32 %s, %s, 0x%x' % (sT0, sT0, OFF_SBCB))
        for k in range(4):
            a('v_add_u32 v7, %d, v6' % (4 * k))
            a('v_min_u32 v7, 55, v7')
            a('v_lshl_add_u32 v7, v7, 13, v5')
            s.st_ws(G, 'v7', sT0)
        a('s_branch L_pub_done')
        a.label('L_pub_g')
        a('s_cmp_lg_u32 %s, 0' % sR)
        a('s_cbranch_scc1 L_pub_done')
        a('s_and_b32 %s, %s, 15' % (sT0, sJ))
        a('s_lshl_b32 %s, %s, 9' % (sT0, sT0))
        a('s_cmp_ge_u32 %s, 80' % sJ)
        a('s_cselect_b32 %s, 128, 0' % sT1)
        a('s_add_u32 %s, %s, %s' % (sT0, sT0, sT1))
        a('s_add_u32 %s, %s, 0x%x' % (sT0, sT0, OFF_G))
        a('v_bfe_u32 v7, v0, 3, 1')
        a('v_lshlrev_b32 v7, 8, v7')
        a('v_and_b32 v6, 7, v0')
        a('v_lshl_add_u32 v7, v6, 4, v7')
        s.ex(0xffff)
        s.st_ws(G, 'v7', sT0)
        s.ex(-1)
        a.label('L_pub_done')
        s.stamp(2)
        a('s_cmp_lt_u32 %s, 8' % sU)
        a('s_cbranch_scc1 L_s2')
        a('s_branch L_warm_stream')

    def silu(s):
        a = s.a; X = s.X
        s.unpack(6, X, X + 1); s.unpack(7, X + 2, X + 3)
        a('s_mov_b32 %s, 0x%x' % (sC1, LOG2E))
        for c in range(4): a('v_mul_f32 %s, %s, -%s' % (v(X + 4 + c), sC1, v(X + c)))
        for c in range(4): a('v_min_f32 %s, %s, %s' % (v(X + 4 + c), f32(120.0), v(X + 4 + c)))
        for c in range(4): a('v_exp_f32 %s, %s' % (v(X + 4 + c), v(X + 4 + c)))
        for c in range(4): a('v_add_f32 %s, 1.0, %s' % (v(X + 4 + c), v(X + 4 + c)))
        for c in range(4): a('v_rcp_f32 %s, %s' % (v(X + 8 + c), v(X + 4 + c)))
        for c in range(4): s.div([X + c], X + 4 + c, X + 8 + c, [X + 12, X + 13])
        a('v_cvt_pk_bf16_f32 v6, %s, %s' % (v(X), v(X + 1)))
        a('v_cvt_pk_bf16_f32 v7, %s, %s' % (v(X + 2), v(X + 3)))
        s.xw_addr('v4')
        a('ds_write_b64 v4, v[6:7]')

    def p1a_role(s):
        a = s.a
        a.c('---------------- P1a (u 8..23, 48..63): partial sa/ca block cb over rows 256g..256g+255 (one 64-row block per wave)')
        a('s_sub_u32 %s, %s, 8' % (sT0, sU))
        a('s_sub_u32 %s, %s, 32' % (sT1, sU))
        a('s_cmp_ge_u32 %s, 48' % sU)
        a('s_cselect_b32 %s, %s, %s' % (sJ, sT1, sT0))
        a('s_lshl_b32 %s, %s, 9' % (sT0, sG))
        a('v_lshlrev_b32 v4, 3, v0')
        a('v_add_u32 v4, %s, v4' % sT0)
        a('global_load_dwordx2 v[6:7], v4, %s' % sp(P_C))
        s.srd(SRD_W, P_WM, 1024 * 12288)
        a('v_lshrrev_b32 v1, 3, v0')
        a('v_mul_u32_u24 v1, %d, v1' % (8 * 12288))
        a('v_and_b32 v4, 7, v0')
        a('v_lshl_add_u32 v1, v4, 4, v1')
        a('s_lshl_b32 %s, %s, 2' % (sT0, sG))
        a('s_add_u32 %s, %s, %s' % (sT0, sT0, sR))
        a('s_mul_i32 s7, %s, %d' % (sT0, 64 * 12288))
        a('s_lshl_b32 %s, %s, 7' % (sT1, sJ))
        a('s_add_u32 s7, s7, %s' % sT1)
        s.tile_load(1, 'v1', 's7', 0, 12288)
        s.tag_ready()
        a('s_waitcnt vmcnt(%d)' % (0 if 12288 in s.skip else 8))
        s.silu()
        s.afragC_addr()
        a('s_lshl_b32 %s, %s, 7' % (sT0, sR))
        a('v_add_u32 v1, %s, v1' % sT0)
        a('s_and_b32 %s, %s, 15' % (sC2, sJ))
        a('s_lshl_b32 %s, %s, 12' % (sC2, sC2))
        a('s_lshr_b32 %s, %s, 4' % (sT0, sJ))
        a('s_lshl_b32 %s, %s, 11' % (sT0, sT0))
        a('s_add_u32 %s, %s, %s' % (sC2, sC2, sT0))
        a('s_lshl_b32 %s, %s, 9' % (sT0, sG))
        a('s_add_u32 %s, %s, %s' % (sC2, sC2, sT0))
        a('s_add_u32 %s, %s, 0x%x' % (sC2, sC2, OFF_P))
        a('v_lshlrev_b32 v7, 5, v0')
        a('s_add_u32 %s, %s, 8' % (sC3, sR))
        a('s_mov_b32 %s, 2048' % sC0)
        s.tile_transpose(1, landed=lambda: s.signal(CNT_T))
        acc = s.tile_mfma(1, 'v1', 128)
        s.gemvC_partial(acc, sC3)
        s.signal(CNT_R1)
        a('s_cmp_lg_u32 %s, 0' % sR)
        a('s_cbranch_scc1 L_p1a_done')
        s.wait_lds(CNT_R1, 4)
        D = 8; TMP = 16; G = 32
        s.gemvC_gather(4, D, TMP, slot0=sC0)
        for k in range(4):
            a('v_mov_b32 %s, %s' % (v(G + 2 * k), v(D + k)))
            a('v_mov_b32 %s, %s' % (v(G + 2 * k + 1), sTAG))
        s.ex(0xffff)
        s.st_ws(G, 'v7', sC2)
        s.st_ws(G + 4, 'v7', sC2, 16)
        s.ex(-1)
        a.label('L_p1a_done')
        s.stamp(3)
        a('s_cmp_ge_u32 %s, 48' % sU)
        a('s_cbranch_scc1 L_s1')
        a('s_cmp_lt_u32 %s, 22' % sU)
        a('s_cbranch_scc1 L_s3')
        a('s_branch L_warm_stream')

    def p1b_role(s):
        a = s.a
        a.c('---------------- P1b (u 24..27): sum partial sa/ca of 64 columns, h = LN(x)*(1+ca)+sa, send to the 64 P2 WGs')
        X = s.X; F = s.R[3]
        a('s_lshl_b32 %s, %s, 2' % (sJ, sG))
        a('s_add_u32 %s, %s, %s' % (sJ, sJ, sU))
        a('s_sub_u32 %s, %s, 24' % (sJ, sJ))
        a('v_lshlrev_b32 v4, 5, v0')
        a('global_load_dwordx4 %s, v4, %s' % (v(X, 4), sp(P_X)))
        a('global_load_dwordx4 %s, v4, %s offset:16' % (v(X + 4, 4), sp(P_X)))
        a('s_lshl_b32 %s, %s, 7' % (sT0, sJ))
        a('v_and_b32 v4, 31, v0')
        a('v_lshlrev_b32 v4, 2, v4')
        a('v_add_u32 v4, %s, v4' % sT0)
        a('global_load_dword v6, v4, %s' % sp(P_X))
        a('s_lshl_b32 %s, %s, 11' % (sT0, sG))
        a('s_add_u32 %s, %s, 0x%x' % (sT0, sT0, OFF_CNT))
        a('v_lshlrev_b32 v4, 8, v0')
        s.ex(0xff)
        a('buffer_store_dword v3, v4, %s, %s offen sc0 sc1' % (SRD_WS, sT0))
        s.ex(-1)
        s.tag_ready()
        a('s_waitcnt vmcnt(0)')
        U = X + 8; S1 = X + 24; S2 = X + 25
        for k in range(8): s.unpack(X + k, U + 2 * k, U + 2 * k + 1)
        a('v_add_f32 %s, %s, %s' % (v(S1), v(U), v(U + 1)))
        a('v_mul_f32 %s, %s, %s' % (v(S2), v(U), v(U)))
        a('v_fmac_f32 %s, %s, %s' % (v(S2), v(U + 1), v(U + 1)))
        for k in range(2, 16):
            a('v_add_f32 %s, %s, %s' % (v(S1), v(S1), v(U + k)))
            a('v_fmac_f32 %s, %s, %s' % (v(S2), v(U + k), v(U + k)))
        s.bfly('v_add_f32', [S1, S2], [X + 26, X + 27], [1, 2, 4, 8, 16, 32])
        MEAN, DD, RR = X + 28, X + 29, X + 30
        s.ln_stats(S1, S2, MEAN, DD, RR, X + 31)
        s.unpack(6, X, X + 1)
        s.ln_apply([X, X + 1], MEAN, DD, RR, [X + 4, X + 5])
        a('s_lshl_b32 %s, %s, 12' % (sC2, sJ))
        a('s_add_u32 %s, %s, 0x%x' % (sC2, sC2, OFF_P))
        a('v_and_b32 v5, 15, v0')
        a('v_lshlrev_b32 v6, 3, v5')
        a('v_lshlrev_b32 v5, 4, v5')
        a('v_lshrrev_b32 v7, 4, v0')
        a('v_lshl_add_u32 v7, v7, 12, v5')
        a('s_lshl_b32 %s, %s, 16' % (sC3, sR))
        a('s_lshl_b32 %s, %s, 8' % (sT0, sJ))
        a('s_add_u32 %s, %s, %s' % (sC3, sC3, sT0))
        a('s_add_u32 %s, %s, 0x%x' % (sC3, sC3, OFF_H))
        G = F + 16
        a('v_mov_b32 %s, %s' % (v(G + 1), sTAG))
        a('v_mov_b32 %s, %s' % (v(G + 3), sTAG))
        s.poll([(F + 4 * k, 'v2', sC2, 1024 * k) for k in range(4)], sleep=s.psleep)
        s.stamp(3)
        a('v_add_f32 %s, %s, %s' % (v(F), v(F), v(F + 4)))
        a('v_add_f32 %s, %s, %s' % (v(F + 1), v(F + 2), v(F + 6)))
        a('v_add_f32 %s, %s, %s' % (v(F + 2), v(F + 8), v(F + 12)))
        a('v_add_f32 %s, %s, %s' % (v(F + 3), v(F + 10), v(F + 14)))
        s.bfly('v_add_f32', [F, F + 1, F + 2, F + 3], [F + 4, F + 5, F + 6, F + 7], [32])
        s.rnd2(F, F + 1, F + 4); s.rnd2(F + 2, F + 3, F + 5)
        a('v_add_f32 %s, 1.0, %s' % (v(F + 2), v(F + 2)))
        a('v_add_f32 %s, 1.0, %s' % (v(F + 3), v(F + 3)))
        s.rnd2(F + 2, F + 3, F + 5)
        a('v_mul_f32 %s, %s, %s' % (v(F + 2), v(F + 2), v(X)))
        a('v_mul_f32 %s, %s, %s' % (v(F + 3), v(F + 3), v(X + 1)))
        s.rnd2(F + 2, F + 3, F + 5)
        a('v_add_f32 %s, %s, %s' % (v(F), v(F), v(F + 2)))
        a('v_add_f32 %s, %s, %s' % (v(F + 1), v(F + 1), v(F + 3)))
        a('v_cvt_pk_bf16_f32 %s, %s, %s' % (v(F), v(F), v(F + 1)))
        a('ds_bpermute_b32 %s, v6, %s' % (v(G), v(F)))
        a('ds_bpermute_b32 %s, v6, %s offset:4' % (v(G + 2), v(F)))
        a('s_waitcnt lgkmcnt(0)')
        for k in range(4):
            a('s_add_u32 %s, %s, 0x%x' % (sT1, sC3, 4 * k * 4096))
            s.st_ws(G, 'v7', sT1)
        s.stamp(4)
        a('s_branch L_mod2')

    def p2_role(s):
        a = s.a
        a.c('---------------- P2 (wg 0..63): q slice = h @ wq[:, 64 cols]')
        F = s.R[3]; X = s.X
        a('s_lshl_b32 %s, %s, 4' % (sJ, sG))
        a('s_add_u32 %s, %s, %s' % (sJ, sJ, sU))
        a('s_sub_u32 %s, %s, 32' % (sJ, sJ))
        a('s_lshl_b32 %s, %s, 7' % (sT1, sJ))
        s.gemvC_setup(P_WQ, 8192, 1024 * 8192, sT1)
        s.tag_ready()
        s.afragC_addr()
        s.tile_transpose(4, landed=lambda: s.signal(CNT_T))
        s.stamp(1)
        a('s_lshl_b32 %s, %s, 12' % (sC2, sJ))
        a('s_lshl_b32 %s, %s, 10' % (sT0, sR))
        a('s_add_u32 %s, %s, %s' % (sC2, sC2, sT0))
        a('s_add_u32 %s, %s, 0x%x' % (sC2, sC2, OFF_H))
        s.xw_addr('v5')
        s.poll([(F, 'v2', sC2, 0)], sleep=s.psleep)
        s.stamp(4)
        a('v_mov_b32 %s, %s' % (v(F + 1), v(F + 2)))
        a('ds_write_b64 v5, %s' % v(F, 2))
        acc = s.tile_mfma(4, 'v1', 128)
        s.gemvC_partial(acc, sR)
        s.signal(CNT_R1)
        s.wait_lds(CNT_R1, 4)
        D = 8; TMP = 16; G = 12
        s.gemvC_gather(4, D, TMP)
        s.mk_granule(G, D)
        a('v_and_b32 v5, 15, v0')
        a('v_lshlrev_b32 v5, 4, v5')
        a('v_lshrrev_b32 v6, 4, v0')
        a('v_lshl_add_u32 v7, v6, 12, v5')
        a('s_lshr_b32 %s, %s, 4' % (sT0, sJ))
        a('s_lshl_b32 %s, %s, 18' % (sT0, sT0))
        a('s_lshl_b32 %s, %s, 16' % (sT1, sR))
        a('s_add_u32 %s, %s, %s' % (sT0, sT0, sT1))
        a('s_and_b32 %s, %s, 15' % (sT1, sJ))
        a('s_lshl_b32 %s, %s, 8' % (sT1, sT1))
        a('s_add_u32 %s, %s, %s' % (sT0, sT0, sT1))
        a('s_add_u32 %s, %s, 0x%x' % (sT0, sT0, OFF_Q))
        for k in range(4):
            a('s_add_u32 %s, %s, 0x%x' % (sT1, sT0, 4 * k * 4096))
            s.st_ws(G, 'v7', sT1)
        s.seg_end()
        s.stamp(2)
        a('s_branch L_warm_stream')

    def s1_role(s):
        a = s.a
        a.c('---------------- S1 (wg 64..127): combine half a head over 64 WGs, partial attn = o_slice @ wo[64 rows, :]')
        F = s.R[3]
        a('s_lshl_b32 %s, %s, 4' % (sJ, sG))
        a('s_add_u32 %s, %s, %s' % (sJ, sJ, sU))
        a('s_sub_u32 %s, %s, 48' % (sJ, sJ))
        if s.touch:
            a('s_lshl_b32 %s, %s, 15' % (sC2, sJ))
            a('s_lshl_b32 %s, %s, 13' % (sT0, sR))
            a('s_add_u32 %s, %s, %s' % (sC2, sC2, sT0))
            a('s_add_u32 %s, %s, 0x%x' % (sC2, sC2, OFF_O))
            a('s_add_u32 %s, %s, 4096' % (sC3, sC2))
            a('s_lshl_b32 %s, %s, 10' % (sC0, sJ))
            a('s_add_u32 %s, %s, 0x%x' % (sC0, sC0, OFF_ML))
            for k in range(8):
                a('buffer_load_dwordx4 %s, v2, %s, %s offen offset:%d sc1' % (v(F + 4 * k, 4), SRD_WS, sC2 if k < 4 else sC3, (k & 3) * 1024))
            a('buffer_load_dwordx4 %s, v2, %s, %s offen sc1' % (v(s.X, 4), SRD_WS, sC0))
            a('s_waitcnt vmcnt(0)')
        s.wait_lds(CNT_K, s.kqn, sleep=2)
        s.srd(SRD_W, P_WO, 4096 * 2048)
        s.w2_voff(16)
        s.tile_load(4, 'v1', 's7', 16 * 2048, 2048, s.Wt, rowf=lambda b, t: 16 * (b >> 1) + 4 * (b & 1) + 8 * (t & 1) + (t >> 1))
        s.tile_transpose(4)
        s.stamp(1)
        s.gemvR_setup('%d' % L_O)
        a('v_bfe_u32 v5, v0, 2, 2')
        a('v_lshlrev_b32 v5, 14, v5')
        a('v_and_b32 v6, 3, v0')
        a('v_lshl_add_u32 v5, v6, 12, v5')
        a('v_lshrrev_b32 v6, 4, v0')
        a('v_lshl_add_u32 v5, v6, 4, v5')
        a('s_lshl_b32 %s, %s, 17' % (sC2, sR))
        a('s_lshl_b32 %s, %s, 6' % (sT0, sJ))
        a('s_add_u32 %s, %s, %s' % (sC2, sC2, sT0))
        a('s_add_u32 %s, %s, 0x%x' % (sC2, sC2, OFF_A))
        a('s_add_u32 %s, %s, 0x10000' % (sC3, sC2))
        s.wait_lds(CNT_PUB, 8, sleep=1)
        s.stamp(4)
        acc = s.tile_mfma(4, 'v1', 32, spin=True)
        s.gemvR_publish(acc, 'v5')
        s.seg_end()
        s.stamp(6)
        a('s_branch L_end')

    def s2_role(s):
        a = s.a
        a.c("---------------- S2 (u 0..7): x1 slice (32 cols, 8 per wave); later out slice = x1 + gb*(sum of w2 partials + b2)")
        a('s_lshl_b32 %s, %s, 3' % (sJ, sG))
        a('s_add_u32 %s, %s, %s' % (sJ, sJ, sU))
        XA, GA, GB, B2, A1, A2, A3, XO, OO, P = 8, 10, 12, 14, 16, 17, 18, 19, 20, 24
        a('v_and_b32 %s, 3, v0' % v(XO))
        a('v_lshlrev_b32 %s, 2, %s' % (v(XO), v(XO)))
        a('s_lshl_b32 %s, %s, 4' % (sT0, sR))
        a('v_add_u32 %s, %s, %s' % (v(XO), sT0, v(XO)))
        a('s_lshl_b32 %s, %s, 6' % (sT1, sJ))
        a('v_add_u32 %s, %s, %s' % (v(OO), sT1, v(XO)))
        a('global_load_dword v6, %s, %s' % (v(OO), sp(P_X)))
        a('global_load_dword v7, %s, %s' % (v(OO), sp(P_B2)))
        a('v_and_b32 v5, 15, v0')
        a('v_lshlrev_b32 v4, 4, v5')
        a('s_lshl_b32 %s, %s, 8' % (sC2, sJ))
        a('s_add_u32 %s, %s, 0x%x' % (sC2, sC2, OFF_G))
        s.poll([(P, 'v4', sC2, 0)], sleep=s.nsleep)
        a('v_mov_b32 %s, %s' % (v(P + 1), v(P + 2)))
        a('v_lshlrev_b32 v5, 3, v5')
        a('ds_write_b64 v5, %s offset:%d' % (v(P, 2), L_G))
        a('ds_read_b32 %s, %s offset:%d' % (v(P + 4), v(XO), L_G))
        a('ds_read_b32 %s, %s offset:%d' % (v(P + 5), v(XO), L_G + 64))
        a('s_waitcnt lgkmcnt(0)')
        s.unpack(6, XA, XA + 1)
        s.unpack(7, B2, B2 + 1)
        s.unpack(P + 4, GA, GA + 1)
        s.unpack(P + 5, GB, GB + 1)
        a('v_lshrrev_b32 v5, 1, v0')
        a('v_and_b32 v4, 1, v0')
        a('v_lshlrev_b32 v4, 4, v4')
        a('v_add_u32 %s, 32, v5' % v(A2))
        a('v_min_u32 %s, 55, %s' % (v(A2), v(A2)))
        a('v_lshl_add_u32 %s, v5, 12, v4' % v(A1))
        a('v_lshl_add_u32 %s, %s, 12, v4' % (v(A2), v(A2)))
        a('v_add_u32 %s, 192, v0' % v(A3))
        a('v_min_u32 %s, 223, %s' % (v(A3), v(A3)))
        a('v_lshlrev_b32 %s, 4, %s' % (v(A3), v(A3)))
        s.stamp(1)
        s.warm_stream(40)
        if s.dry:
            s.dry_call('L_s2_seg', 4)
            a('s_lshl_b32 %s, %s, 3' % (sJ, sG))
            a('s_add_u32 %s, %s, %s' % (sJ, sJ, sU))
        a.label('L_s2_seg')
        a('s_lshl_b32 %s, %s, 14' % (sC2, sJ))
        a('s_lshl_b32 %s, %s, 12' % (sT0, sR))
        a('s_add_u32 %s, %s, %s' % (sC2, sC2, sT0))
        a('s_add_u32 %s, %s, 0x%x' % (sC2, sC2, OFF_A))
        a('s_lshl_b32 %s, %s, 7' % (sC3, sJ))
        a('s_lshl_b32 %s, %s, 5' % (sT0, sR))
        a('s_add_u32 %s, %s, %s' % (sC3, sC3, sT0))
        a('s_add_u32 %s, %s, 0x%x' % (sC3, sC3, OFF_X1))
        a('s_mul_i32 %s, %s, 14336' % (sC0, sJ))
        a('s_mul_i32 %s, %s, 3584' % (sT0, sR))
        a('s_add_u32 %s, %s, %s' % (sC0, sC0, sT0))
        a('s_add_u32 %s, %s, 0x%x' % (sC0, sC0, OFF_HH))
        s.wait_lds(CNT_PUB, 8, sleep=1)
        s.stamp(4)
        Q = P + 20
        def reduce():
            a('v_add_f32 %s, %s, %s' % (v(Q), v(P), v(P + 4)))
            a('v_add_f32 %s, %s, %s' % (v(Q + 1), v(P + 2), v(P + 6)))
            a('v_add_f32 %s, %s, %s' % (v(Q), v(Q), v(P + 8)))
            a('v_add_f32 %s, %s, %s' % (v(Q + 1), v(Q + 1), v(P + 10)))
        def reduce2():
            for st in (4, 8):
                for r in (Q, Q + 1):
                    a('v_add_f32_dpp %s, %s, %s row_ror:%d row_mask:0xf bank_mask:0xf' % (v(r), v(r), v(r), st))
            s.bfly('v_add_f32', [Q, Q + 1], [Q + 2, Q + 3], [16, 32])
            s.rnd2(Q, Q + 1, Q + 2)
        G = P + 16
        a('v_mov_b32 %s, %s' % (v(G + 1), sTAG))
        a('v_mov_b32 %s, %s' % (v(G + 3), sTAG))
        if s.s2sleep: a('s_sleep %d' % s.s2sleep)
        s.ppoll([(P + 4 * k, 'v2', sC2, 1024 * k) for k in range(4)], s.pd)
        s.stamp(5)
        reduce()
        a('v_add_f32 %s, %s, %s' % (v(Q), v(Q), v(P + 12)))
        a('v_add_f32 %s, %s, %s' % (v(Q + 1), v(Q + 1), v(P + 14)))
        reduce2()
        a('v_mul_f32 %s, %s, %s' % (v(Q), v(Q), v(GA)))
        a('v_mul_f32 %s, %s, %s' % (v(Q + 1), v(Q + 1), v(GA + 1)))
        s.rnd2(Q, Q + 1, Q + 2)
        a('v_add_f32 %s, %s, %s' % (v(Q), v(Q), v(XA)))
        a('v_add_f32 %s, %s, %s' % (v(Q + 1), v(Q + 1), v(XA + 1)))
        a('v_cvt_pk_bf16_f32 %s, %s, %s' % (v(Q + 2), v(Q), v(Q + 1)))
        a('v_mov_b32_dpp %s, %s quad_perm:[0,2,0,2] row_mask:0xf bank_mask:0xf' % (v(G), v(Q + 2)))
        a('v_mov_b32_dpp %s, %s quad_perm:[1,3,1,3] row_mask:0xf bank_mask:0xf' % (v(G + 2), v(Q + 2)))
        s.st_ws(G, v(A1), sC3)
        s.st_ws(G, v(A2), sC3)
        s.unpack(Q + 2, XA, XA + 1)
        s.stamp(6)
        a('s_waitcnt vmcnt(0)')
        a('s_sleep %d' % s.fsleep)
        s.ppoll([(P + 4 * k, 'v2', sC0, 1024 * k) for k in range(3)] + [(P + 12, v(A3), sC0, 0)], s.pd)
        s.stamp(2)
        reduce()
        s.ex('lo32')
        a('v_add_f32 %s, %s, %s' % (v(Q), v(Q), v(P + 12)))
        a('v_add_f32 %s, %s, %s' % (v(Q + 1), v(Q + 1), v(P + 14)))
        s.ex(-1)
        reduce2()
        a('v_add_f32 %s, %s, %s' % (v(Q), v(Q), v(B2)))
        a('v_add_f32 %s, %s, %s' % (v(Q + 1), v(Q + 1), v(B2 + 1)))
        s.rnd2(Q, Q + 1, Q + 2)
        a('v_mul_f32 %s, %s, %s' % (v(Q), v(Q), v(GB)))
        a('v_mul_f32 %s, %s, %s' % (v(Q + 1), v(Q + 1), v(GB + 1)))
        s.rnd2(Q, Q + 1, Q + 2)
        a('v_add_f32 %s, %s, %s' % (v(Q), v(Q), v(XA)))
        a('v_add_f32 %s, %s, %s' % (v(Q + 1), v(Q + 1), v(XA + 1)))
        a('v_cvt_pk_bf16_f32 %s, %s, %s' % (v(Q + 2), v(Q), v(Q + 1)))
        s.ex(0xf)
        a('buffer_store_dword %s, %s, %s, 0 offen' % (v(Q + 2), v(OO), SRD_OUT))
        s.ex(-1)
        a('s_cmp_lg_u32 s2, 0')
        a('s_cbranch_scc1 L_end')
        a('s_cmp_lg_u32 %s, 0' % sR)
        a('s_cbranch_scc1 L_end')
        a('v_mov_b32 v4, %s' % sTAG)
        s.ex(1)
        a('buffer_store_dword v4, v3, %s, 0 offen sc1' % SRD_WS)
        s.ex(-1)
        a('s_branch L_end')

    def s3_role(s):
        a = s.a
        a.c('---------------- S3 (u 8..21): w2 rows -> LDS; x1 -> LN -> modulate -> LN -> y ; partial y @ w1[:, 64 cols]')
        F = s.R[3]
        TB = [s.X] + s.R[:3]
        a('s_mul_i32 %s, %s, 14' % (sJ, sG))
        a('s_add_u32 %s, %s, %s' % (sJ, sJ, sU))
        a('s_sub_u32 %s, %s, 8' % (sJ, sJ))
        a('s_lshl_b32 %s, %s, 7' % (sT1, sJ))
        a('v_and_b32 v5, 15, v0')
        a('v_lshlrev_b32 v5, 3, v5')
        a('v_add_u32 v4, %s, v5' % sT1)
        a('global_load_dwordx2 v[6:7], v4, %s' % sp(P_B1))
        if s.s3wait: s.wait_lds(CNT_K, s.kqn, sleep=2)
        if s.w2late:
            a('s_waitcnt vmcnt(0)')
            a('ds_write_b64 v5, v[6:7] offset:%d' % L_B1)
        else:
            s.srd(SRD_W, P_W2, 3584 * 2048)
            s.w2_voff()
            s.tile_load(4, 'v1', 's7', 16 * 2048, 2048, s.Wt)
            s.tile_transpose(4)
            a('s_waitcnt vmcnt(0)')
            a('ds_write_b64 v5, v[6:7] offset:%d' % L_B1)
            a('s_lshl_b32 %s, %s, 15' % (sT0, sR))
            a('s_add_u32 %s, %s, %d' % (sT0, sT0, L_W2))
            a('v_add_u32 v5, %s, v2' % sT0)
            for b in range(4):
                if b == 3:
                    a('s_cmp_eq_u32 %s, 3' % sR)
                    a('s_cbranch_scc1 L_s3_w')
                for e in range(8):
                    a('ds_write_b128 v5, %s offset:%d' % (v(TB[b] + 4 * e, 4), 8192 * b + 1024 * e))
            a.label('L_s3_w')
        s.signal(CNT_W)
        a('s_lshl_b32 %s, %s, 7' % (sT1, sJ))
        s.gemvC_setup(P_W1, 7168, 1024 * 7168, sT1, s.Wt)
        s.afragC_addr()
        s.tile_transpose(4)
        s.stamp(1)
        a('s_lshl_b32 %s, %s, 13' % (sC2, sJ))
        a('s_lshl_b32 %s, %s, 10' % (sT0, sR))
        a('s_add_u32 %s, %s, %s' % (sC2, sC2, sT0))
        a('s_add_u32 %s, %s, 0x%x' % (sC2, sC2, OFF_SBCB))
        a('s_add_u32 %s, %s, 4096' % (sC3, sC2))
        s.poll([(F, 'v2', sC2, 0), (F + 4, 'v2', sC3, 0)], sleep=s.nsleep)
        SB, CB, XX, T = F + 8, F + 12, F + 4, F + 16
        s.unpack(F, SB, SB + 1); s.unpack(F + 2, SB + 2, SB + 3)
        s.unpack(F + 4, CB, CB + 1); s.unpack(F + 6, CB + 2, CB + 3)
        for c in range(4): a('v_add_f32 %s, 1.0, %s' % (v(CB + c), v(CB + c)))
        s.rnd2(CB, CB + 1, T); s.rnd2(CB + 2, CB + 3, T)
        s.xw_addr('v6')
        a('s_lshl_b32 %s, %s, 3' % (sT0, sR))
        a('v_mov_b32 v7, %s' % sT0)
        s.stamp(2)
        s.warm_stream(50)
        if s.dry:
            s.dry_call('L_s3_seg', 5)
            a('s_mul_i32 %s, %s, 14' % (sJ, sG))
            a('s_add_u32 %s, %s, %s' % (sJ, sJ, sU))
            a('s_sub_u32 %s, %s, 8' % (sJ, sJ))
        a.label('L_s3_seg')
        a('s_lshl_b32 %s, %s, 12' % (sC2, sJ))
        a('s_lshl_b32 %s, %s, 10' % (sT0, sR))
        a('s_add_u32 %s, %s, %s' % (sC2, sC2, sT0))
        a('s_add_u32 %s, %s, 0x%x' % (sC2, sC2, OFF_X1))
        s.wait_lds(CNT_PUB, 8, sleep=1)
        s.stamp(4)
        if s.s3sleep: a('s_sleep %d' % s.s3sleep)
        s.ppoll([(F, 'v2', sC2, 0)], s.pd)
        s.stamp(5)
        s.unpack(F, XX, XX + 1); s.unpack(F + 2, XX + 2, XX + 3)
        S1, S2, MEAN, DD, RR, RD = F + 18, F + 19, F + 20, F + 21, F + 22, F + 24
        xs = [XX, XX + 1, XX + 2, XX + 3]
        for rnd, cnt in ((0, CNT_R2), (1, CNT_R3)):
            a('v_add_f32 %s, %s, %s' % (v(S1), v(XX), v(XX + 1)))
            a('v_mul_f32 %s, %s, %s' % (v(S2), v(XX), v(XX)))
            a('v_fmac_f32 %s, %s, %s' % (v(S2), v(XX + 1), v(XX + 1)))
            for k in (2, 3):
                a('v_add_f32 %s, %s, %s' % (v(S1), v(S1), v(XX + k)))
                a('v_fmac_f32 %s, %s, %s' % (v(S2), v(XX + k), v(XX + k)))
            s.bfly('v_add_f32', [S1, S2], [T, T + 1], [1, 2, 4, 8, 16, 32])
            s.ex(1)
            a('ds_write_b64 v7, %s offset:%d' % (v(S1, 2), L_ST + 32 * rnd))
            s.ex(-1)
            s.lds_spin(['ds_read_b128 %s, v3 offset:%d' % (v(RD, 4), L_ST + 32 * rnd),
                        'ds_read_b128 %s, v3 offset:%d' % (v(RD + 4, 4), L_ST + 32 * rnd + 16)], [RD + 1, RD + 3, RD + 5, RD + 7], 4)
            a('v_add_f32 %s, %s, %s' % (v(S1), v(RD), v(RD + 2)))
            a('v_add_f32 %s, %s, %s' % (v(S2), v(RD + 1), v(RD + 3)))
            a('v_add_f32 %s, %s, %s' % (v(RD), v(RD + 4), v(RD + 6)))
            a('v_add_f32 %s, %s, %s' % (v(RD + 1), v(RD + 5), v(RD + 7)))
            a('v_add_f32 %s, %s, %s' % (v(S1), v(S1), v(RD)))
            a('v_add_f32 %s, %s, %s' % (v(S2), v(S2), v(RD + 1)))
            s.ln_stats(S1, S2, MEAN, DD, RR, T)
            s.ln_apply(xs, MEAN, DD, RR, [T, T + 1])
            if rnd == 0:
                for c in range(4): a('v_mul_f32 %s, %s, %s' % (v(XX + c), v(XX + c), v(CB + c)))
                s.rnd2(XX, XX + 1, T); s.rnd2(XX + 2, XX + 3, T + 1)
                for c in range(4): a('v_add_f32 %s, %s, %s' % (v(XX + c), v(XX + c), v(SB + c)))
                s.rnd2(XX, XX + 1, T); s.rnd2(XX + 2, XX + 3, T + 1)
        a('v_cvt_pk_bf16_f32 %s, %s, %s' % (v(T), v(XX), v(XX + 1)))
        a('v_cvt_pk_bf16_f32 %s, %s, %s' % (v(T + 1), v(XX + 2), v(XX + 3)))
        a('ds_write_b64 v6, %s' % v(T, 2))
        s.stamp(6)
        a('s_waitcnt vmcnt(0)')
        acc = s.tile_mfma(4, 'v1', 128)
        s.gemvC_partial(acc, sR)
        a('s_branch L_end')

if __name__ == '__main__':
    import argparse
    ap = argparse.ArgumentParser()
    ap.add_argument('-o', default='k.s')
    ap.add_argument('--W', type=int, default=4)
    ap.add_argument('--W2', type=int, default=8)
    ap.add_argument('--slow', type=int, default=0)
    ap.add_argument('--stamps', action='store_true')
    ap.add_argument('--skip', default='')
    ap.add_argument('--dry', action='store_true')
    ap.add_argument('--kq', type=int, default=22)
    ap.add_argument('--Wt', type=int, default=16)
    ap.add_argument('--NL', type=int, default=15)
    ap.add_argument('--tkg', type=int, default=1)
    ap.add_argument('--pd', type=int, default=1)
    ap.add_argument('--w2pace', type=int, default=0)
    ap.add_argument('--w2early', action='store_true')
    ap.add_argument('--ND3', type=int, default=2)
    ap.add_argument('--touch', action='store_true')
    ap.add_argument('--hold', type=int, default=1)
    ap.add_argument('--ND', type=int, default=2)
    ap.add_argument('--s2sleep', type=int, default=0)
    ap.add_argument('--s3sleep', type=int, default=0)
    ap.add_argument('--finst', action='store_true')
    ap.add_argument('--finsleep', type=int, default=2)
    ap.add_argument('--tsleep', type=int, default=0)
    ap.add_argument('--fsleep', type=int, default=20)
    ap.add_argument('--s3wait', action='store_true')
    ap.add_argument('--nos3dyn', action='store_true')
    ap.add_argument('--classes', default='')
    ap.add_argument('--nsleep', type=int, default=100)
    ap.add_argument('--psleep', type=int, default=0)
    ap.add_argument('--kqn', type=int, default=8)
    ap.add_argument('--qsleep', type=int, default=16)
    args = ap.parse_args()
    if args.classes:
        for i, x in enumerate(args.classes.split(',')): CLASSES[i] = (CLASSES[i][0], CLASSES[i][1], int(x))
    g = Gen(W=args.W, W2=args.W2, slow=args.slow, stamps=args.stamps, qsleep=args.qsleep)
    g.dry = args.dry; g.kq = args.kq; g.Wt = args.Wt; g.NL = args.NL; g.tkg = args.tkg; g.pd = args.pd; g.w2pace = args.w2pace; g.w2late = not args.w2early; g.ND3 = args.ND3; g.touch = args.touch; g.hold = args.hold; g.ND = args.ND; g.s2sleep = args.s2sleep; g.s3sleep = args.s3sleep; g.finst = args.finst; g.finsleep = args.finsleep; g.tsleep = args.tsleep; g.fsleep = args.fsleep; g.s3wait = args.s3wait; g.s3dyn = not args.nos3dyn; g.nsleep = args.nsleep; g.psleep = args.psleep; g.kqn = args.kqn
    for x in args.skip.split(','):
        if x == 'wm': g.skip.add(12288)
        if x == 'wq': g.skip.add(8192)
        if x == 'w1': g.skip.add(7168)
        if x == 'wo': g.skip.add((2048, 16 * 2048))
    open(args.o, 'w').write(g.build())
```

```python
import sys, math
sys.path.insert(0, 'work')
from asmlib import Asm
NAME = 'adaLN_cond__gqa_block_cached__mixer_channel_mlp__decode'

OFF_MOD, OFF_Q, OFF_SBCB, OFF_G, OFF_ML = 0x010000, 0x100000, 0x200000, 0x280000, 0x290000
OFF_O, OFF_A, OFF_X1, OFF_HH, OFF_TS = 0x300000, 0x500000, 0x580000, 0x600000, 0x8000000
OFF_P = 0x2a0000
OFF_H = OFF_MOD
CNT_Q, CNT_ATT, CNT_R1, CNT_R2, CNT_R3, CNT_X, CNT_S, CNT_T, CNT_W, CNT_K, CNT_PUB = 0, 4, 8, 12, 16, 20, 24, 28, 32, 36, 40
L_ZERO, L_Q, L_X, L_RED, L_ML, L_ST, L_O, L_G, L_B1, L_H, L_OB = 64, 256, 2304, 4352, 5376, 5888, 5952, 7424, 7552, 7680, 8192
L_W2 = L_OB + 8 * 4096
LDS_BYTES = L_W2 + 15 * 8192
assert LDS_BYTES <= 163840
CLASSES = [(0, 8, 26), (8, 14, 24), (22, 2, 28), (24, 8, 24), (32, 16, 26), (48, 16, 26)]
OFF_CNT = 0x2b0000
sWG, sWAVE, sTAG = 's2', 's3', 's4'
sR = 's5'
sJ = 's6'
sU, sG = 's24', 's25'
sLIVE = 's[26:27]'
sRET, sPASS = 's69', 's100'
sLAST, sH2, sL0 = 's100', 's101', 's28'
SRD_K, SRD_V, SRD_WS, SRD_W, SRD_OUT = 's[8:11]', 's[12:15]', 's[16:19]', 's[20:23]', 's[28:31]'
P_X, P_K, P_V, P_WQ, P_WO, P_W1, P_B1, P_W2, P_B2, P_C, P_WM, P_OUT, P_DBG, P_WS = 32, 34, 36, 38, 40, 44, 46, 48, 50, 52, 54, 56, 58, 60
sSELLO, sSELHI = 's62', 's63'
sT0, sT1, sT2, sT3, sTO = 's64', 's65', 's66', 's67', 's68'
sACC = 's[70:71]'
sM0, sM1, sM2 = 's[72:73]', 's[74:75]', 's[76:77]'
sC0, sC1, sC2, sC3 = 's78', 's79', 's80', 's81'
TS0 = 84
NSTAMP = 8
LOG2E = 0x3fb8aa3b
def f32(x):
    import struct
    return '0x%08x' % struct.unpack('<I', struct.pack('<f', x))[0]

def v(i, n=1): return 'v%d' % i if n == 1 else 'v[%d:%d]' % (i, i + n - 1)
def sp(i): return 's[%d:%d]' % (i, i + 1)

class Gen:
    def __init__(s, W=4, W2=8, slow=3, stamps=False, qsleep=8, nt=True):
        s.a = Asm(); s.W = W; s.W2 = W2; s.slow = slow; s.stamps = stamps; s.qsleep = qsleep
        s.nt = 'nt' if nt else ''
        s.skip = set(); s.rets = []; s.dry = True; s.kq = 22; s.kqn = 8; s.Wt = 4; s.tkg = 1; s.pd = 1; s.mlfirst = False; s.s1sleep = 0; s.w2ramp = 0; s.qpts = (20, 26, 32); s.w2pace = 0; s.w2late = True; s.ND3 = 8; s.touch = False; s.hold = 1; s.ND = 4; s.s2sleep = 0; s.s3sleep = 0; s.finst = False; s.finsleep = 2; s.tsleep = 0; s.fsleep = 20; s.qsleep0 = 40; s.s3wait = False; s.s3dyn = True; s.NL = 15; s.nsleep = 64; s.psleep = 0
    def stamp(s, i):
        if s.stamps:
            s.a('s_memrealtime %s' % sp(TS0 + 2 * i))
    def srd(s, srd, ptr, nbytes):
        a = s.a; b = int(srd[2:srd.index(':')])
        a('s_mov_b32 s%d, s%d' % (b, ptr)); a('s_and_b32 s%d, s%d, 0xffff' % (b + 1, ptr + 1))
        a('s_mov_b32 s%d, 0x%x' % (b + 2, nbytes)); a('s_mov_b32 s%d, 0x20000' % (b + 3))
    def ex(s, m):
        a = s.a
        if m == -1: a('s_mov_b64 exec, %s' % sLIVE)
        elif m == 'lo32': a('s_mov_b32 exec_lo, s26'); a('s_mov_b32 exec_hi, 0')
        elif isinstance(m, str): a('s_and_b64 exec, %s, %s' % (sLIVE, m))
        else: a('s_and_b64 exec, %s, 0x%x' % (sLIVE, m))
    def dry_call(s, seg, rid):
        a = s.a
        a('s_mov_b32 %s, %d' % (sRET, rid))
        a('s_mov_b64 %s, 0' % sLIVE)
        a('s_mov_b64 exec, 0')
        a('s_branch %s' % seg)
        a.label('L_dret%d' % rid)
        a('s_mov_b64 %s, -1' % sLIVE)
        a('s_mov_b64 exec, -1')
        s.rets.append(rid)
    def seg_end(s):
        s.a('s_cbranch_execz L_dryret')
    def vmwait(s, n):
        a = s.a; L = a.newlabel('vw')
        a('s_cbranch_execz %s' % L)
        a('s_waitcnt vmcnt(%d)' % n)
        a.label(L)
    def signal(s, cnt, vz='v3', vone='v4'):
        a = s.a
        a('v_mov_b32 %s, 1' % vone)
        a('s_waitcnt lgkmcnt(0)')
        s.ex(1)
        a('ds_add_u32 %s, %s offset:%d' % (vz, vone, cnt))
        s.ex(-1)
    def wait_lds(s, cnt, target, vz='v3', vt='v4', sleep=0):
        a = s.a; L = a.newlabel('w'); LD = a.newlabel('wd')
        a('s_mov_b32 %s, 0' % sTO)
        a.label(L)
        if sleep: a('s_sleep %d' % sleep)
        a('s_add_u32 %s, %s, 1' % (sTO, sTO))
        a('s_cmp_gt_u32 %s, 0x400000' % sTO)
        a('s_cbranch_scc1 L_fail')
        a('ds_read_b32 %s, %s offset:%d' % (vt, vz, cnt))
        a('s_waitcnt lgkmcnt(0)')
        a('v_readfirstlane_b32 %s, %s' % (sT3, vt))
        a('s_cmp_ge_u32 %s, %s' % (sT3, target))
        a('s_cbranch_execz %s' % LD)
        a('s_cbranch_scc0 %s' % L)
        a.label(LD)
    def poll(s, loads, sleep=0):
        a = s.a; L = a.newlabel('p'); n = len(loads)
        a('s_mov_b32 %s, 0' % sTO)
        a.label(L)
        a('s_add_u32 %s, %s, 1' % (sTO, sTO))
        a('s_cmp_gt_u32 %s, 0x40000' % sTO)
        a('s_cbranch_scc1 L_fail')
        LS = a.newlabel('ps')
        a('s_cbranch_execz %s' % LS)
        for d, vo, so, imm in loads:
            a('buffer_load_dwordx4 %s, %s, %s, %s offen offset:%d sc1' % (v(d, 4), vo, SRD_WS, so, imm))
        a('s_waitcnt vmcnt(%d)' % (n - 1))
        a.label(LS)
        a('s_mov_b64 %s, -1' % sACC)
        for i, (d, vo, so, imm) in enumerate(loads):
            if i: s.vmwait(n - 1 - i)
            a('v_cmp_eq_u32 vcc, %s, %s' % (sTAG, v(d + 1)))
            a('v_cmp_eq_u32 %s, %s, %s' % (sM2, sTAG, v(d + 3)))
            a('s_and_b64 %s, %s, vcc' % (sACC, sACC))
            a('s_and_b64 %s, %s, %s' % (sACC, sACC, sM2))
        a('s_cmp_eq_u64 %s, -1' % sACC)
        L2 = a.newlabel('pd')
        a('s_cbranch_execz %s' % L2)
        if sleep:
            a('s_cbranch_scc1 %s' % L2)
            a('s_sleep %d' % sleep)
            a('s_branch %s' % L)
        else:
            a('s_cbranch_scc0 %s' % L)
        a.label(L2)
    def ppoll(s, loads, depth=3, gap=5):
        a = s.a; L = a.newlabel('pp'); n = len(loads)
        def sweep():
            for d, vo, so, imm in loads:
                a('buffer_load_dwordx4 %s, %s, %s, %s offen offset:%d sc1' % (v(d, 4), vo, SRD_WS, so, imm))
        for i in range(depth - 1):
            sweep()
            a('s_sleep %d' % gap)
        a('s_mov_b32 %s, 0' % sTO)
        a.label(L)
        sweep()
        a('s_add_u32 %s, %s, 1' % (sTO, sTO))
        a('s_cmp_gt_u32 %s, 0x80000' % sTO)
        a('s_cbranch_scc1 L_fail')
        a('s_mov_b64 %s, -1' % sACC)
        a('s_waitcnt vmcnt(%d)' % ((depth - 1) * n))
        for i, (d, vo, so, imm) in enumerate(loads):
            a('v_cmp_eq_u32 vcc, %s, %s' % (sTAG, v(d + 1)))
            a('v_cmp_eq_u32 %s, %s, %s' % (sM2, sTAG, v(d + 3)))
            a('s_and_b64 %s, %s, vcc' % (sACC, sACC))
            a('s_and_b64 %s, %s, %s' % (sACC, sACC, sM2))
        a('s_cmp_eq_u64 %s, -1' % sACC)
        if s.tsleep:
            L2 = a.newlabel('ppd')
            a('s_cbranch_scc1 %s' % L2)
            a('s_sleep %d' % s.tsleep)
            a('s_branch %s' % L)
            a.label(L2)
        else:
            a('s_cbranch_scc0 %s' % L)
        if depth > 1: a('s_nop 7')
    def lds_spin(s, reads, checks, tmp, sleep=0):
        a = s.a; L = a.newlabel('ls')
        a('s_mov_b32 %s, 0' % sTO)
        a.label(L)
        if sleep: a('s_sleep %d' % sleep)
        for r_ in reads: a(r_)
        a('s_add_u32 %s, %s, 1' % (sTO, sTO))
        a('s_cmp_gt_u32 %s, 0x400000' % sTO)
        a('s_cbranch_scc1 L_fail')
        a('s_waitcnt lgkmcnt(0)')
        c = list(checks)
        a('v_max3_u32 %s, %s, %s, %s' % (v(tmp), v(c[0]), v(c[1]), v(c[2])))
        c = c[3:]
        while len(c) >= 2:
            a('v_max3_u32 %s, %s, %s, %s' % (v(tmp), v(tmp), v(c[0]), v(c[1]))); c = c[2:]
        if c: a('v_max_u32 %s, %s, %s' % (v(tmp), v(tmp), v(c[0])))
        a('v_cmp_eq_u32 vcc, -1, %s' % v(tmp))
        a('s_cmp_eq_u64 vcc, 0')
        a('s_cbranch_scc0 %s' % L)
    def bfly(s, op, regs, tmps, steps):
        a = s.a
        for st in steps:
            if st in (1, 2, 4, 8):
                mod = {1: 'quad_perm:[1,0,3,2]', 2: 'quad_perm:[2,3,0,1]', 4: None, 8: 'row_ror:8'}[st]
                for r, t in zip(regs, tmps):
                    if st == 4:
                        a('%s_dpp %s, %s, %s row_half_mirror row_mask:0xf bank_mask:0xf' % (op, v(r), v(r), v(r)))
                    else:
                        a('%s_dpp %s, %s, %s %s row_mask:0xf bank_mask:0xf' % (op, v(r), v(r), v(r), mod))
            else:
                sw = 'v_permlane16_swap_b32' if st == 16 else 'v_permlane32_swap_b32'
                for r, t in zip(regs, tmps): a('v_mov_b32 %s, %s' % (v(t), v(r)))
                for r, t in zip(regs, tmps): a('%s %s, %s' % (sw, v(r), v(t)))
                for r, t in zip(regs, tmps): a('%s %s, %s, %s' % (op, v(r), v(r), v(t)))
    def rnd2(s, x, y, t):
        a = s.a
        a('v_cvt_pk_bf16_f32 %s, %s, %s' % (v(t), v(x), v(y)))
        a('v_lshlrev_b32 %s, 16, %s' % (v(x), v(t)))
        a('v_and_b32 %s, 0xffff0000, %s' % (v(y), v(t)))
    def rnd1(s, x):
        a = s.a
        a('v_cvt_pk_bf16_f32 %s, %s, %s' % (v(x), v(x), v(x)))
        a('v_and_b32 %s, 0xffff0000, %s' % (v(x), v(x)))
    def unpack(s, src, lo, hi):
        a = s.a
        a('v_lshlrev_b32 %s, 16, %s' % (v(lo), v(src)))
        a('v_and_b32 %s, 0xffff0000, %s' % (v(hi), v(src)))
    def div(s, xs, d, r, t):
        a = s.a
        for x in xs:
            a('v_mul_f32 %s, %s, %s' % (v(t[0]), v(x), v(r)))
            a('v_fma_f32 %s, -%s, %s, %s' % (v(t[1]), v(t[0]), v(d), v(x)))
            a('v_fma_f32 %s, %s, %s, %s' % (v(x), v(t[1]), v(r), v(t[0])))
    def ln_stats(s, s1, s2, mean, d, r, t):
        a = s.a
        a('v_mul_f32 %s, %s, %s' % (v(mean), f32(1.0 / 1024), v(s1)))
        a('v_mul_f32 %s, %s, %s' % (v(d), f32(1.0 / 1024), v(s2)))
        a('v_fma_f32 %s, -%s, %s, %s' % (v(d), v(mean), v(mean), v(d)))
        a('v_max_f32 %s, 0, %s' % (v(d), v(d)))
        s.rnd2(mean, d, t)
        a('v_add_f32 %s, %s, %s' % (v(d), f32(1e-5), v(d)))
        s.rnd1(d)
        a('v_sqrt_f32 %s, %s' % (v(d), v(d)))
        s.rnd1(d)
        a('v_rcp_f32 %s, %s' % (v(r), v(d)))
    def ln_apply(s, xs, mean, d, r, t):
        a = s.a
        for x in xs: a('v_sub_f32 %s, %s, %s' % (v(x), v(x), v(mean)))
        for i in range(0, len(xs), 2): s.rnd2(xs[i], xs[i + 1], t[0])
        s.div(xs, d, r, t)
        for i in range(0, len(xs), 2): s.rnd2(xs[i], xs[i + 1], t[0])
    R = [8, 40, 72, 104]; X = 136
    def tile_load(s, nblk, voff, sbase, step_blk, step_t, pace=0, rowf=None, first=0):
        a = s.a
        if step_t in s.skip or (step_t, step_blk) in s.skip: return
        for b in range(nblk):
            for t in range(8):
                if 8 * b + t < first: continue
                a('s_add_u32 %s, %s, 0x%x' % (sT0, sbase, rowf(b, t) * step_t if rowf else b * step_blk + t * step_t))
                if pace and 8 * b + t >= pace: a('s_waitcnt vmcnt(%d)' % (pace - 1))
                a('buffer_load_dwordx4 %s, %s, %s, %s offen %s' % (v(s.R[b] + 4 * t, 4), voff, SRD_W, sT0, s.nt))
    def tile_transpose(s, nblk, later=0, landed=None):
        a = s.a
        TB = [s.X] + s.R[:3]
        for b in range(nblk):
            s.vmwait((nblk - 1 - b) * 8 + later)
            if b == nblk - 1 and landed: landed()
            for e in range(8):
                for j in range(4):
                    a('v_perm_b32 %s, %s, %s, %s' % (v(TB[b] + 4 * e + j), v(s.R[b] + 4 * (2 * j + 1) + (e >> 1)),
                                                     v(s.R[b] + 4 * (2 * j) + (e >> 1)), sSELHI if e & 1 else sSELLO))
    def tile_mfma(s, nblk, vaddr, step, spin=False):
        a = s.a
        TB = [s.X] + s.R[:3]
        F = s.R[3]
        AF = F + 16
        rd = ['ds_read_b128 %s, %s offset:%d' % (v(AF + 4 * b, 4), vaddr, b * step) for b in range(nblk)]
        if spin: s.lds_spin(rd, [AF + 4 * b for b in range(nblk)], 4, sleep=1)
        else:
            for r_ in rd: a(r_)
        acc = [F + 4 * e for e in range(4)] + [TB[0] + 4 * e for e in range(4)]
        LS = a.newlabel('ms')
        a('s_cbranch_execz %s' % LS)
        for half in range(2):
            for b in range(nblk):
                if half == 0: a('s_waitcnt lgkmcnt(%d)' % (nblk - 1 - b))
                for e in range(4 * half, 4 * half + 4):
                    c = '0' if b == 0 else v(acc[e], 4)
                    a('v_mfma_f32_16x16x32_bf16 %s, %s, %s, %s' % (v(acc[e], 4), v(AF + 4 * b, 4), v(TB[b] + 4 * e, 4), c))
        a.label(LS)
        return acc
    def gemvC_partial(s, acc, slot_sgpr):
        a = s.a
        AF = s.R[3] + 16
        for e in range(8):
            a('v_add_f32_dpp %s, %s, %s row_ror:8 row_mask:0xf bank_mask:0xf' % (v(AF + e), v(acc[e] + 1), v(acc[e])))
        a('s_lshl_b32 %s, %s, 8' % (sT0, slot_sgpr))
        a('v_lshlrev_b32 v5, 5, v0')
        a('v_add_u32 v5, %s, v5' % sT0)
        s.ex(0xff)
        a('ds_write_b128 v5, %s offset:%d' % (v(AF, 4), L_RED))
        a('ds_write_b128 v5, %s offset:%d' % (v(AF + 4, 4), L_RED + 16))
        s.ex(-1)
    def gemvC_gather(s, nsrc, dst, tmp, slot0='0', spin=False):
        a = s.a
        a('v_and_b32 v5, 15, v0')
        a('v_lshlrev_b32 v5, 4, v5')
        if slot0 != '0': a('v_add_u32 v5, %s, v5' % slot0)
        rd = ['ds_read_b128 %s, v5 offset:%d' % (v(tmp + 4 * w, 4), L_RED + 256 * w) for w in range(nsrc)]
        if spin: s.lds_spin(rd, [tmp + 4 * w for w in range(nsrc)], 4, sleep=1)
        else:
            for r_ in rd: a(r_)
        for w in range(1, nsrc):
            a('s_waitcnt lgkmcnt(%d)' % (nsrc - 1 - w))
            for c in range(4):
                a('v_add_f32 %s, %s, %s' % (v(dst + c), v(tmp + c) if w == 1 else v(dst + c), v(tmp + 4 * w + c)))
    def mk_granule(s, g, x):
        a = s.a
        a('v_cvt_pk_bf16_f32 %s, %s, %s' % (v(g), v(x), v(x + 1)))
        a('v_cvt_pk_bf16_f32 %s, %s, %s' % (v(g + 2), v(x + 2), v(x + 3)))
        a('v_mov_b32 %s, %s' % (v(g + 1), sTAG))
        a('v_mov_b32 %s, %s' % (v(g + 3), sTAG))
    def st_ws(s, g, voff, soff, imm=0):
        L = s.a.newlabel('st')
        s.a('s_cbranch_execz %s' % L)
        s.a('buffer_store_dwordx4 %s, %s, %s, %s offen offset:%d sc1' % (v(g, 4), voff, SRD_WS, soff, imm))
        s.a.label(L)

    def build(s):
        a = s.a
        a.raw('; @launch grid=(256,1,1) block=(768,1,1) lds=%d' % LDS_BYTES)
        if s.stamps: a.raw('; TS 0x%x:%d:%d' % (OFF_TS, 256 * 12, NSTAMP))
        a.raw('.amdgcn_target "amdgcn-amd-amdhsa--gfx950"')
        a.raw('.text')
        a.raw('.globl %s_kernel' % NAME)
        a.raw('.p2align 8')
        a.raw('.type %s_kernel,@function' % NAME)
        a.raw('%s_kernel:' % NAME)
        a('s_cmp_ge_u32 s2, 256')
        a('s_cbranch_scc1 L_exit')
        if s.stamps:
            for i in range(NSTAMP): a('s_mov_b64 %s, 0' % sp(TS0 + 2 * i))
        s.stamp(0)
        a('s_load_dwordx16 s[32:47], s[0:1], 0')
        a('s_load_dwordx8 s[48:55], s[0:1], 64')
        a('s_load_dwordx4 s[56:59], s[0:1], 96')
        a('s_load_dwordx2 s[60:61], s[0:1], 112')
        a('v_lshrrev_b32 v1, 6, v0')
        a('v_and_b32 v0, 63, v0')
        a('v_mov_b32 v3, 0')
        a('v_readfirstlane_b32 s3, v1')
        a('v_lshlrev_b32 v2, 4, v0')
        a('s_mov_b32 %s, 0x05040100' % sSELLO)
        a('s_mov_b32 %s, 0x07060302' % sSELHI)
        a('s_and_b32 %s, s2, 63' % sU)
        a('s_lshr_b32 %s, s2, 6' % sG)
        a('s_mov_b64 %s, -1' % sLIVE)
        a('s_mov_b32 %s, 0' % sRET)
        a('s_cmp_ge_u32 s3, 8')
        a('s_cbranch_scc1 L_role')
        s.stream()
        a.label('L_role')
        s.role()
        a.label('L_dryret')
        if not s.rets: a('s_branch L_end')
        for rid in s.rets[:-1]:
            a('s_cmp_eq_u32 %s, %d' % (sRET, rid))
            a('s_cbranch_scc1 L_dret%d' % rid)
        if s.rets: a('s_branch L_dret%d' % s.rets[-1])
        a.label('L_fail')
        a('v_mov_b32 v4, 0xdead')
        a('v_mov_b32 v5, 0')
        a('s_mov_b64 exec, 1')
        a('global_store_dword v5, v4, %s' % sp(P_DBG))
        a('s_mov_b64 exec, -1')
        a.label('L_end')
        if s.stamps:
            s.stamp(NSTAMP - 1)
            a('s_mul_i32 %s, s2, 12' % sT0)
            a('s_add_u32 %s, %s, s3' % (sT0, sT0))
            a('s_mul_i32 %s, %s, %d' % (sT0, sT0, NSTAMP * 8))
            a('s_add_u32 %s, %s, 0x%x' % (sT0, sT0, OFF_TS))
            a('v_mov_b32 v5, 0')
            a('s_waitcnt lgkmcnt(0)')
            a('s_mov_b64 exec, 1')
            for i in range(0, NSTAMP, 2):
                for k in range(4): a('v_mov_b32 v%d, s%d' % (8 + k, TS0 + 2 * i + k))
                a('buffer_store_dwordx4 v[8:11], v5, %s, %s offen offset:%d' % (SRD_WS, sT0, 8 * i))
        a.label('L_exit')
        a('s_endpgm')
        a.raw('.section .rodata,"a"')
        a.raw('.p2align 6')
        a.raw('.amdhsa_kernel %s_kernel' % NAME)
        a.raw('  .amdhsa_next_free_vgpr 168')
        a.raw('  .amdhsa_next_free_sgpr 102')
        a.raw('  .amdhsa_accum_offset 168')
        a.raw('  .amdhsa_group_segment_fixed_size 0')
        a.raw('  .amdhsa_kernarg_size 120')
        a.raw('  .amdhsa_user_sgpr_count 2')
        a.raw('  .amdhsa_user_sgpr_kernarg_segment_ptr 1')
        a.raw('  .amdhsa_system_sgpr_workgroup_id_x 1')
        a.raw('.end_amdhsa_kernel')
        return a.finish()

    SP, O, T, BUF, NB, TK = 8, 28, 60, 76, 23, 27
    def tag_ready(s):
        s.a('s_waitcnt lgkmcnt(0)')
        s.a('s_add_u32 %s, %s, 1' % (sTAG, sTAG))
    def ptrs_ready(s):
        a = s.a
        a('s_waitcnt lgkmcnt(0)')
        a('s_load_dword %s, %s, 0' % (sTAG, sp(P_WS)))
        s.srd(SRD_WS, P_WS, 0x10000000)
    def stream(s):
        a = s.a
        a.c('---------------- stream wave')
        a('s_mov_b32 %s, s3' % sR)
        base = 0
        for ci, (u0, cnt, G) in enumerate(CLASSES):
            a('s_mul_i32 %s, %s, %d' % (sT1, sU, G))
            a('s_add_u32 %s, %s, 0x%x' % (sT1, sT1, (base - u0 * G) & 0xffffffff))
            if ci == 0:
                a('s_mov_b32 %s, %s' % (sT0, sT1)); a('s_mov_b32 %s, %d' % (sT2, G))
            else:
                a('s_cmp_ge_u32 %s, %d' % (sU, u0))
                a('s_cselect_b32 %s, %s, %s' % (sT0, sT1, sT0))
                a('s_cselect_b32 %s, %d, %s' % (sT2, G, sT2))
            base += cnt * G
        s.static = base
        assert max(c_[2] for c_ in CLASSES) <= 32
        assert (2048 - base) % s.ND == 0, base
        s.PS = (2048 - base) // s.ND
        assert min(c_[2] for c_ in CLASSES if c_[2] > 8) >= 24
        a('s_lshl_b32 s7, %s, 13' % sT0)
        a('s_lshl_b32 %s, %s, 24' % (sT0, sG))
        a('s_add_u32 s7, s7, %s' % sT0)
        a('s_lshl_b32 %s, s3, 12' % sT0)
        a('s_add_u32 s7, s7, %s' % sT0)
        a('s_and_b32 %s, %s, 7' % (sT1, sT2))
        a('s_lshr_b32 %s, %s, 3' % (sT2, sT2))
        a('s_sub_u32 %s, 8, %s' % (sT3, sT1))
        a('s_lshl_b32 %s, %s, 12' % (sLAST, sT1))
        a('s_lshl_b32 %s, %s, 12' % (sL0, sT3))
        a('s_cmp_ge_u32 s3, %s' % sT3)
        a('s_cselect_b32 %s, %s, 0x8000' % (sLAST, sLAST))
        a('s_cselect_b32 %s, %s, 0' % (sL0, sL0))
        a('s_addc_u32 %s, %s, 0' % (sT2, sT2))
        a('s_sub_u32 %s, %s, 1' % (sT0, sT2))
        a('s_lshl_b32 %s, %s, 16' % (sT0, sT0))
        a('s_add_u32 %s, %s, s7' % (sT0, sT0))
        a('s_sub_u32 %s, %s, %s' % (sL0, sT0, sL0))
        a('s_add_u32 %s, %s, %s' % (sLAST, sLAST, sL0))
        a('s_add_u32 %s, s7, 0x18000' % sH2)
        a('s_cmp_eq_u32 %s, 2' % sT2)
        a('s_cselect_b32 %s, %s, %s' % (sH2, sLAST, sH2))
        a('v_bfe_u32 v1, v0, 2, 2')
        a('v_lshlrev_b32 v1, 8, v1')
        a('v_lshrrev_b32 v4, 4, v0')
        a('v_lshl_add_u32 v1, v4, 6, v1')
        a('v_and_b32 v4, 3, v0')
        a('v_lshl_add_u32 v1, v4, 4, v1')
        a('v_and_b32 v5, 7, v0')
        a('v_lshlrev_b32 v5, 8, v5')
        a('v_lshrrev_b32 v6, 4, v0')
        a('v_lshl_add_u32 v5, v6, 6, v5')
        a('v_bfe_u32 v6, v0, 3, 1')
        a('v_lshl_add_u32 v5, v6, 4, v5')
        a('s_mov_b32 %s, %s' % (sC0, f32(128 ** -0.5)))
        a('s_mov_b32 %s, 0x%x' % (sC1, LOG2E))
        a('s_lshl_b32 %s, s3, 9' % sT0)
        a('v_lshlrev_b32 v24, 3, v0')
        a('v_add_u32 v24, %s, v24' % sT0)
        a('v_lshrrev_b32 v26, 5, v0')
        a('v_lshlrev_b32 v26, 10, v26')
        a('v_lshrrev_b32 v4, 3, v0')
        a('v_subrev_u32 v4, s3, v4')
        a('v_and_b32 v4, 7, v4')
        a('v_and_b32 v25, 3, v4')
        a('v_lshlrev_b32 v25, 4, v25')
        a('v_lshrrev_b32 v4, 2, v4')
        a('v_lshl_add_u32 v25, v4, 13, v25')
        a('v_and_b32 v4, 1, v0')
        a('v_lshl_add_u32 v25, v4, 14, v25')
        a('v_bfe_u32 v4, v0, 1, 1')
        a('v_lshl_add_u32 v25, v4, 6, v25')
        a('v_bfe_u32 v4, v0, 2, 1')
        a('v_lshl_add_u32 v25, v4, 15, v25')
        a('s_lshl_b32 %s, %s, 3' % (sT0, sG))
        a('s_add_u32 %s, %s, s3' % (sT0, sT0))
        a('s_lshl_b32 s82, %s, 16' % sT0)
        a('s_lshl_b32 %s, %s, 7' % (sT1, sU))
        a('s_add_u32 s82, s82, %s' % sT1)
        a('s_add_u32 s82, s82, 0x%x' % OFF_O)
        a('s_lshl_b32 s83, %s, 11' % sT0)
        a('s_lshl_b32 %s, %s, 4' % (sT1, sU))
        a('s_add_u32 s83, s83, %s' % sT1)
        a('s_add_u32 s83, s83, 0x%x' % OFF_ML)
        s.ptrs_ready()
        s.srd(SRD_K, P_K, 0x4000000)
        s.srd(SRD_V, P_V, 0x4000000)
        W, NB = s.W, s.NB
        def pre(j):
            so = sH2
            if j < 12:
                a('s_add_u32 %s, s7, 0x%x' % (sT0, (j >> 3) * 65536 + ((j >> 2) & 1) * 32768)); so = sT0
            a('buffer_load_dwordx4 %s, v1, %s, %s offen offset:%d %s' % (v(s.BUF + 4 * j, 4), SRD_K, so, (j & 3) * 1024, s.nt))
        a('s_sub_u32 %s, %s, 8' % (sT0, sU))
        if CLASSES[1][2] <= 8:
            a('s_cmp_lt_u32 %s, 14' % sT0)
            a('s_cbranch_scc1 L_st_dynonly')
        if s.hold >= 2:
            a('s_cmp_lt_u32 %s, 16' % sT0)
            a('s_cbranch_scc1 L_st_hold')
            a('s_cmp_ge_u32 %s, 32' % sU)
            a('s_cbranch_scc1 L_st_hold')
        elif s.hold == 1:
            a('s_sub_u32 %s, %s, 32' % (sT0, sU))
            a('s_cmp_lt_u32 %s, 16' % sT0)
            a('s_cbranch_scc1 L_st_hold')
        pre(0)
        a('s_barrier')
        for j in range(1, s.slow + 1):
            a('s_waitcnt vmcnt(0)')
            pre(j)
        a('s_branch L_st_go')
        a.label('L_st_hold')
        a('s_barrier')
        s.wait_lds(CNT_T, 4, sleep=1)
        for j in range(0, s.slow + 1): pre(j)
        a.label('L_st_go')
        for j in range(s.slow + 1, 16):
            a('s_waitcnt vmcnt(%d)' % (W - 1))
            pre(j)
            if j == 8: s.tag_ready()
            if j == s.kq: s.signal(CNT_K)
        s3norm = CLASSES[1][2] >= 24 and s.w2late
        if not s3norm:
            a('s_sub_u32 %s, %s, 8' % (sT0, sU))
            a('s_cmp_lt_u32 %s, 14' % sT0)
            a('s_cbranch_scc1 L_st_s3')
        a('s_cmp_eq_u32 %s, 3' % sT2)
        a('s_cbranch_scc1 L_st_n3l')
        s.stream_body(4, s.NL, 'a')
        a('s_branch L_st_dyn')
        a.label('L_st_n3l')
        s.stream_body(3, s.NL, 'b')
        a('s_branch L_st_dyn')
        a.label('L_st_s3')
        g3 = CLASSES[1][2]
        lo = g3 >> 3
        if s3norm:
            pass
        elif g3 <= 8:
            a.label('L_st_dynonly')
            a('s_waitcnt lgkmcnt(0)')
            a('s_barrier')
            if g3:
                s.wait_lds(CNT_T, 4, sleep=1)
                a('s_add_u32 %s, s7, 0x8000' % sT1)
                for i in range(8):
                    a('buffer_load_dwordx4 %s, v1, %s, %s offen offset:%d %s' % (v(s.BUF + 4 * i, 4), SRD_K, 's7' if i < 4 else sT1, (i & 3) * 1024, s.nt))
                    if i >= 3: a('s_waitcnt vmcnt(3)')
                for i in range(8):
                    a('buffer_load_dwordx4 %s, v2, %s, %s offen offset:%d %s' % (v(s.BUF + 32 + 4 * i, 4), SRD_V, 's7' if i < 4 else sT1, (i & 3) * 1024, s.nt))
                    a('s_waitcnt vmcnt(3)')
            a('s_add_u32 %s, %s, 1' % (sTAG, sTAG))
            for r_ in range(32): a('v_mov_b32 %s, 0' % v(s.O + r_))
            a('v_mov_b32 v6, %s' % f32(-3.0e38))
            a('v_mov_b32 v7, 0')
            s.stamp(1)
            a('s_cmp_ge_u32 s3, 4')
            a('s_cbranch_scc1 L_st_qwz')
            s.q_wait(s.BUF + 64, sleep=s.qsleep0)
            a.label('L_st_qwz')
            s.wait_lds(CNT_Q, 4, sleep=4)
            s.stamp(2)
            a('s_waitcnt vmcnt(0)')
            s.first_ticket(s.ND3)
        else:
            if g3 & 7:
                a('s_cmp_eq_u32 %s, %d' % (sT2, lo))
                a('s_cbranch_scc1 L_st_n3')
                s.stream_body(lo + 1, 0, 'c')
                a('s_branch L_st_dyn')
                a.label('L_st_n3')
            s.stream_body(lo, 0, 'd')
            if not s.s3dyn: a('s_branch L_st_fin')
        a.label('L_st_dyn')
        s.dyn_loop()
        a.label('L_st_fin')
        s.stream_fin()

    def first_ticket(s, nd=None):
        a = s.a; L = a.newlabel('tk')
        a('v_mov_b32 %s, -1' % v(s.TK))
        a('s_cmp_ge_u32 s3, %d' % (nd or s.ND))
        a('s_cbranch_scc1 %s' % L)
        s.ticket_addr()
        s.ticket()
        a.label(L)
    def ticket_addr(s):
        a = s.a
        a('s_lshl_b32 %s, %s, 3' % (sH2, sG))
        a('s_and_b32 %s, s3, %d' % (sT0, s.ND - 1))
        a('s_add_u32 %s, %s, %s' % (sH2, sH2, sT0))
        a('s_lshl_b32 %s, %s, 8' % (sH2, sH2))
        a('s_add_u32 %s, %s, 0x%x' % (sH2, sH2, OFF_CNT))
    def ticket(s):
        a = s.a
        a('v_mov_b32 %s, 1' % v(s.TK))
        s.ex(1)
        a('buffer_atomic_add %s, v3, %s, %s offen sc0 sc1' % (v(s.TK), SRD_WS, sH2))
        s.ex(-1)

    def dyn_loop(s):
        a = s.a
        SP, O, T, BUF = s.SP, s.O, s.T, s.BUF
        if s.PS == 0: return
        KS = [BUF + 4 * i for i in range(8)]; VS = [BUF + 32 + 4 * i for i in range(8)]
        D = BUF + 64; TU = BUF + 80; AL = BUF + 84; X0 = BUF + 88
        a('s_and_b32 %s, s3, %d' % (sT0, s.ND - 1))
        a('s_mul_i32 %s, %s, %d' % (sT0, sT0, s.PS))
        a('s_add_u32 %s, %s, %d' % (sT0, sT0, 2 * s.static))
        a('s_lshl_b32 s7, %s, 12' % sT0)
        a('s_lshl_b32 %s, %s, 24' % (sT0, sG))
        a('s_add_u32 s7, s7, %s' % sT0)
        a('v_and_b32 v5, 7, v0')
        a('v_lshlrev_b32 v5, 8, v5')
        a('v_lshrrev_b32 v4, 4, v0')
        a('v_lshl_add_u32 v5, v4, 6, v5')
        a('v_bfe_u32 v4, v0, 3, 1')
        a('v_lshl_add_u32 v5, v4, 4, v5')
        if CLASSES[1][2] == 8:
            a('s_sub_u32 %s, %s, 8' % (sT0, sU))
            a('s_cmp_lt_u32 %s, 14' % sT0)
            a('s_cbranch_scc1 L_dyn_have')
        a.label('L_dyn')
        a('s_waitcnt vmcnt(0)')
        a('v_readfirstlane_b32 %s, %s' % (sT1, v(s.TK)))
        a('s_cmp_ge_u32 %s, %d' % (sT1, s.PS))
        a('s_cbranch_scc1 L_st_fin')
        a('s_lshl_b32 %s, %s, 12' % (sT1, sT1))
        a('s_add_u32 %s, %s, s7' % (sT0, sT1))
        a('s_add_u32 %s, %s, %d' % (sT1, sT0, s.PS * s.ND * 4096))
        for i in range(8):
            a('buffer_load_dwordx4 %s, v1, %s, %s offen offset:%d %s' % (v(KS[i], 4), SRD_K, sT0 if i < 4 else sT1, (i & 3) * 1024, s.nt))
        for i in range(8):
            a('buffer_load_dwordx4 %s, v2, %s, %s offen offset:%d %s' % (v(VS[i], 4), SRD_V, sT0 if i < 4 else sT1, (i & 3) * 1024, s.nt))
        s.ticket()
        a.label('L_dyn_have')
        a('ds_read_b128 %s, v5 offset:%d' % (v(T, 4), L_Q))
        a('ds_read_b128 %s, v5 offset:%d' % (v(T + 4, 4), L_Q + 32))
        a('s_waitcnt lgkmcnt(0)')
        for n in range(4):
            a('s_waitcnt vmcnt(%d)' % (6 - 2 * n + 9))
            for bb in range(2):
                for m in range(2):
                    a('v_mfma_f32_16x16x32_bf16 %s, %s, %s, 0' % (v(D + 8 * bb + 4 * m, 4), v(KS[2 * n + bb], 4), v(T + 4 * m, 4)))
            for bb in range(2):
                d0 = D + 8 * bb; d1 = d0 + 4
                a('v_add_f32 %s, %s, %s' % (v(TU + 2 * bb), v(d0), v(d1 + 2)))
                a('v_add_f32 %s, %s, %s' % (v(TU + 2 * bb + 1), v(d0 + 1), v(d1 + 3)))
            a('v_add_f32_dpp %s, %s, %s row_ror:8 row_mask:0xf bank_mask:0x3' % (v(SP + n), v(TU + 1), v(TU)))
            a('v_add_f32_dpp %s, %s, %s row_ror:8 row_mask:0xf bank_mask:0xc' % (v(SP + n), v(TU + 2), v(TU + 3)))
        for n in (0, 2):
            s.rnd2(SP + n, SP + n + 1, X0)
            a('v_mul_f32 %s, %s, %s' % (v(SP + n), sC0, v(SP + n)))
            a('v_mul_f32 %s, %s, %s' % (v(SP + n + 1), sC0, v(SP + n + 1)))
            s.rnd2(SP + n, SP + n + 1, X0)
        a('v_max3_f32 %s, %s, %s, %s' % (v(X0), v(SP), v(SP + 1), v(SP + 2)))
        a('v_max3_f32 %s, %s, %s, v6' % (v(X0), v(X0), v(SP + 3)))
        s.bfly('v_max_f32', [X0], [X0 + 1], [8, 16, 32])
        a('v_sub_f32 %s, v6, %s' % (v(X0 + 2), v(X0)))
        a('v_mul_f32 %s, %s, %s' % (v(X0 + 2), sC1, v(X0 + 2)))
        a('v_exp_f32 %s, %s' % (v(X0 + 2), v(X0 + 2)))
        a('v_mov_b32 v6, %s' % v(X0))
        a('v_mul_f32 %s, %s, %s' % (v(X0 + 1), sC1, v(X0)))
        for n in range(4): a('v_fma_f32 %s, %s, %s, -%s' % (v(SP + n), v(SP + n), sC1, v(X0 + 1)))
        for n in range(4): a('v_exp_f32 %s, %s' % (v(SP + n), v(SP + n)))
        a('v_add_f32 %s, %s, %s' % (v(X0), v(SP), v(SP + 1)))
        a('v_add_f32 %s, %s, %s' % (v(X0 + 1), v(SP + 2), v(SP + 3)))
        a('v_add_f32 %s, %s, %s' % (v(X0), v(X0), v(X0 + 1)))
        a('v_cvt_pk_bf16_f32 %s, %s, %s' % (v(SP), v(SP), v(SP + 1)))
        a('v_cvt_pk_bf16_f32 %s, %s, %s' % (v(SP + 1), v(SP + 2), v(SP + 3)))
        s.bfly('v_add_f32', [X0], [X0 + 1], [8, 16, 32])
        a('v_mov_b32_dpp %s, %s row_ror:8 row_mask:0xf bank_mask:0xf' % (v(SP + 2), v(SP)))
        a('v_mov_b32_dpp %s, %s row_ror:8 row_mask:0xf bank_mask:0xf' % (v(SP + 3), v(SP + 1)))
        a('v_fma_f32 v7, v7, %s, %s' % (v(X0 + 2), v(X0)))
        for e in range(8):
            for r in range(4):
                a('v_mul_f32 %s, %s, %s' % (v(O + 4 * e + r), v(O + 4 * e + r), v(X0 + 2)))
        a('s_waitcnt vmcnt(1)')
        beta = [0, 2, 4, 6, 1, 3, 5, 7]
        src = [VS[beta[t]] for t in range(8)]
        for half in range(2):
            for e in range(4 * half, 4 * half + 4):
                for j in range(4):
                    a('v_perm_b32 %s, %s, %s, %s' % (v(T + 4 * (e & 3) + j), v(src[2 * j + 1] + (e >> 1)), v(src[2 * j] + (e >> 1)),
                                                     sSELHI if e & 1 else sSELLO))
            for e in range(4 * half, 4 * half + 4):
                a('v_mfma_f32_16x16x32_bf16 %s, %s, %s, %s' % (v(O + 4 * e, 4), v(T + 4 * (e & 3), 4), v(SP, 4), v(O + 4 * e, 4)))
        a('s_branch L_dyn')

    def stream_body(s, ng, NL, tag):
        a = s.a
        SP, O, T, BUF, NB, W, W2 = s.SP, s.O, s.T, s.BUF, s.NB, s.W, s.W2
        QF = T; TU = T + 8
        nk = 8 * ng
        def addr(j, full):
            blk = j % nk
            imm = (blk & 3) * 1024
            if blk >= nk - 4: base, o = sLAST, 0
            elif blk >= nk - 8: base, o = sL0, 0
            else: base, o = 's7', (blk >> 3) * 65536 + ((blk >> 2) & 1) * 32768
            if full: o += imm; imm = 0
            a('s_add_u32 %s, %s, 0x%x' % (sT0, base, o))
            return imm
        assert all(b_ - a_ >= W + 1 for a_, b_ in zip(s.qpts, s.qpts[1:]))
        def qpoint(j):
            if (j - W - 1) in s.qpts:
                L = a.newlabel('qc')
                a('s_cmp_lg_u32 s29, 0')
                a('s_cbranch_scc1 %s' % L)
                a('v_cmp_eq_u32 vcc, %s, %s' % (sTAG, v(O + 1)))
                a('v_cmp_eq_u32 %s, %s, %s' % (sM2, sTAG, v(O + 3)))
                a('s_and_b64 vcc, vcc, %s' % sM2)
                a('s_cmp_eq_u64 vcc, -1')
                a('s_cbranch_scc0 %s' % L)
                s.q_store(O)
                a('s_mov_b32 s29, 1')
                a.label(L)
            if j in s.qpts:
                L = a.newlabel('qi')
                a('s_cmp_lg_u32 s29, 0')
                a('s_cbranch_scc1 %s' % L)
                a('buffer_load_dwordx4 %s, v2, %s, %s offen sc1' % (v(O, 4), SRD_WS, sC2))
                a.label(L)
        s.q_addr()
        a('s_cmp_ge_u32 s3, 4')
        a('s_cselect_b32 s29, 1, 0')
        for j in range(16, NB):
            o = addr(j, False)
            a('s_waitcnt vmcnt(%d)' % (W - 1))
            a('buffer_load_dwordx4 %s, %s, %s, %s offen offset:%d %s' % (v(BUF + 4 * j, 4), 'v1' if j < nk else 'v2',
                                                                        SRD_K if j < nk else SRD_V, sT0, o, s.nt))
            if j == s.kq: s.signal(CNT_K)
            qpoint(j)
        if NL:
            a('s_mul_i32 %s, s3, %d' % (sT1, NL * 1024))
            a('s_add_u32 %s, %s, %d' % (sT1, sT1, L_W2))
            for i in range(NL):
                j = NB + i
                addr(j, True)
                a('s_add_u32 m0, %s, %d' % (sT1, i * 1024))
                a('s_waitcnt vmcnt(%d)' % (W - 1))
                a('buffer_load_dwordx4 %s, %s, %s offen %s lds' % ('v1' if j < nk else 'v2', SRD_K if j < nk else SRD_V, sT0, s.nt))
                qpoint(j)
        s.stamp(1)
        LQ = 'L_st_qw' + tag
        a('s_cmp_lg_u32 s29, 0')
        a('s_cbranch_scc1 %s' % LQ)
        s.q_wait(s.O)
        a.label(LQ)
        s.wait_lds(CNT_Q, 4, sleep=2)
        s.stamp(2)
        a('ds_read_b128 %s, v5 offset:%d' % (v(s.T, 4), L_Q))
        a('ds_read_b128 %s, v5 offset:%d' % (v(s.T + 4, 4), L_Q + 32))
        if NL:
            a('s_mul_i32 %s, s3, %d' % (sT1, NL * 1024))
            a('s_add_u32 %s, %s, %d' % (sT1, sT1, L_W2))
            a('v_add_u32 v4, %s, v2' % sT1)
        issued = [NB + NL]
        where = {j: BUF + 4 * j for j in range(NB)}
        free = []
        pend = [False]; tk = [False]
        def slot(j): return where[j]
        def inlds(j): return NB <= j < NB + NL
        def landed(j):
            a('s_waitcnt vmcnt(%d)' % (issued[0] - 1 - j))
        def stage(j):
            r = free.pop(0); where[j] = r
            landed(j)
            a('ds_read_b128 %s, v4 offset:%d' % (v(r, 4), (j - NB) * 1024))
            pend[0] = True
        def issue():
            j = issued[0]
            r = free.pop(0); where[j] = r
            o = addr(j, False)
            a('s_waitcnt vmcnt(%d)' % (W2 - 1))
            a('buffer_load_dwordx4 %s, %s, %s, %s offen offset:%d %s' % (v(r, 4), 'v1' if j < nk else 'v2',
                                                                        SRD_K if j < nk else SRD_V, sT0, o, s.nt))
            issued[0] += 1
        def need(j0, j1):
            for j in range(j0, j1 + 1):
                if j not in where:
                    assert free, (ng, NL, j)
                    if inlds(j): stage(j)
                    else:
                        assert j == issued[0]
                        issue()
            top = max([j for j in range(j0, j1 + 1) if not inlds(j)], default=None)
            if top is not None: landed(top)
            if pend[0] and any(inlds(j) for j in range(j0, j1 + 1)):
                a('s_waitcnt lgkmcnt(0)'); pend[0] = False
        def done(j0, j1, look):
            for j in range(j0, j1 + 1): free.append(where[j])
            for j in range(j1 + 1, j1 + 1 + look):
                if inlds(j) and j not in where and free: stage(j)
            while free and issued[0] < 2 * nk:
                un = [j for j in range(NB, NB + NL) if j not in where]
                unk = [j for j in un if j < nk]; unv = [j for j in un if j >= nk]
                kleft = len([j for j in range(j1 + 1, nk) if j in where])
                res = min(len(unk), 2) + max(0, len(unv) - kleft)
                if len(free) <= res: break
                issue()
        a('s_waitcnt lgkmcnt(0)')
        npair = 4 * ng
        def qk_post(n):
            D = O + 16 * (n & 1)
            for bb in range(2):
                d0 = D + 8 * bb; d1 = d0 + 4
                t, u = TU + 2 * bb, TU + 2 * bb + 1
                a('v_add_f32 %s, %s, %s' % (v(t), v(d0), v(d1 + 2)))
                a('v_add_f32 %s, %s, %s' % (v(u), v(d0 + 1), v(d1 + 3)))
            a('v_add_f32_dpp %s, %s, %s row_ror:8 row_mask:0xf bank_mask:0x3' % (v(SP + n), v(TU + 1), v(TU)))
            a('v_add_f32_dpp %s, %s, %s row_ror:8 row_mask:0xf bank_mask:0xc' % (v(SP + n), v(TU + 2), v(TU + 3)))
        for n in range(npair):
            need(2 * n, 2 * n + 1)
            D = O + 16 * (n & 1)
            for bb in range(2):
                for m in range(2):
                    a('v_mfma_f32_16x16x32_bf16 %s, %s, %s, 0' % (v(D + 8 * bb + 4 * m, 4), v(slot(2 * n + bb), 4), v(QF + 4 * m, 4)))
            if n > 0: qk_post(n - 1)
            done(2 * n, 2 * n + 1, 2 if n < npair - 4 else 8)
        qk_post(npair - 1)
        s.stamp(3)
        for n in range(0, npair, 2):
            t = O + (n >> 1)
            s.rnd2(SP + n, SP + n + 1, t)
            a('v_mul_f32 %s, %s, %s' % (v(SP + n), sC0, v(SP + n)))
            a('v_mul_f32 %s, %s, %s' % (v(SP + n + 1), sC0, v(SP + n + 1)))
            s.rnd2(SP + n, SP + n + 1, t)
        a('v_max3_f32 v6, %s, %s, %s' % (v(SP), v(SP + 1), v(SP + 2)))
        for n in range(3, npair - 1, 2):
            a('v_max3_f32 v6, v6, %s, %s' % (v(SP + n), v(SP + n + 1)))
        a('v_max_f32 v6, v6, %s' % v(SP + npair - 1))
        s.bfly('v_max_f32', [6], [5], [8, 16, 32])
        a('v_mul_f32 v5, %s, v6' % sC1)
        for n in range(npair):
            a('v_fma_f32 %s, %s, %s, -v5' % (v(SP + n), v(SP + n), sC1))
        for n in range(npair):
            a('v_exp_f32 %s, %s' % (v(SP + n), v(SP + n)))
        a('v_add_f32 v7, %s, %s' % (v(SP), v(SP + 1)))
        for n in range(2, npair):
            a('v_add_f32 v7, v7, %s' % v(SP + n))
        for G in range(ng):
            p = SP + 4 * G
            a('v_cvt_pk_bf16_f32 %s, %s, %s' % (v(p), v(p), v(p + 1)))
            a('v_cvt_pk_bf16_f32 %s, %s, %s' % (v(p + 1), v(p + 2), v(p + 3)))
        for G in range(ng):
            p = SP + 4 * G
            a('v_mov_b32_dpp %s, %s row_ror:8 row_mask:0xf bank_mask:0xf' % (v(p + 2), v(p)))
            a('v_mov_b32_dpp %s, %s row_ror:8 row_mask:0xf bank_mask:0xf' % (v(p + 3), v(p + 1)))
        s.bfly('v_add_f32', [7], [5], [8, 16, 32])
        s.stamp(4)
        beta = [0, 2, 4, 6, 1, 3, 5, 7]
        for G in range(ng):
            if s.PS and G == ng - s.tkg and (NL or s.s3dyn):
                tk[0] = True
                s.first_ticket()
            need(nk + 8 * G, nk + 8 * G + 7)
            src = [slot(nk + 8 * G + beta[t]) for t in range(8)]
            for half in range(2):
                for e in range(4 * half, 4 * half + 4):
                    for j in range(4):
                        a('v_perm_b32 %s, %s, %s, %s' % (v(T + 4 * (e & 3) + j), v(src[2 * j + 1] + (e >> 1)), v(src[2 * j] + (e >> 1)),
                                                         sSELHI if e & 1 else sSELLO))
                for e in range(4 * half, 4 * half + 4):
                    c = '0' if G == 0 else v(O + 4 * e, 4)
                    a('v_mfma_f32_16x16x32_bf16 %s, %s, %s, %s' % (v(O + 4 * e, 4), v(T + 4 * (e & 3), 4), v(SP + 4 * G, 4), c))
            done(nk + 8 * G, nk + 8 * G + 7, 8)
        pass

    def stream_fin(s):
        a = s.a
        O = s.O
        s.stamp(5)
        AD = s.BUF + 64
        a('v_and_b32 v4, 7, v0')
        a('v_lshlrev_b32 v5, 9, v4')
        a('v_lshlrev_b32 v4, 6, v4')
        a('v_lshrrev_b32 %s, 4, v0' % v(AD))
        a('v_lshl_add_u32 v5, %s, 4, v5' % v(AD))
        a('s_lshl_b32 %s, s3, 12' % sT0)
        a('v_add_u32 v5, %s, v5' % sT0)
        a('s_movk_i32 %s, 0x1c0' % sT2)
        for e in range(8):
            a('v_add_u32 %s, %d, v4' % (v(AD + e), 64 * e))
            a('v_and_or_b32 %s, %s, %s, v5' % (v(AD + e), v(AD + e), sT2))
        a('s_lshl_b32 %s, s3, 3' % sT1)
        a('v_add_u32 v4, %s, v4' % sT1)
        a('s_mov_b32 %s, 0x00ff00ff' % sT0); a('s_mov_b32 %s, 0x00ff00ff' % sT1)
        s.ex('s[64:65]')
        for e in range(8):
            a('ds_write_b128 %s, %s offset:%d' % (v(AD + e), v(O + 4 * e, 4), L_OB))
        s.ex(0xff)
        a('ds_write_b64 v4, v[6:7] offset:%d' % L_ML)
        s.ex(-1)
        a('s_lshl_b32 %s, s3, 6' % sT0)
        a('v_mov_b32 v5, %s' % sT0)
        ML = 76; OB = 92; F = 108; G_ = 116
        for k in (1, 3, 5, 7): a('v_mov_b32 %s, %s' % (v(G_ + k), sTAG))
        a('s_mov_b32 %s, 1' % sT0); a('s_mov_b32 %s, 1' % sT1)
        s.lds_spin(['ds_read_b128 %s, v5 offset:%d' % (v(ML + 4 * k, 4), L_ML + 16 * k) for k in range(4)],
                   [ML + 2 * w + 1 for w in range(8)], 4, sleep=s.finsleep)
        for w in range(8):
            a('ds_read_b64 %s, v24 offset:%d' % (v(OB + 2 * w, 2), L_OB + 4096 * w))
        if s.finst: s.stamp(1)
        M = G_ + 4
        a('v_max3_f32 %s, %s, %s, %s' % (v(M), v(ML), v(ML + 2), v(ML + 4)))
        a('v_max3_f32 %s, %s, %s, %s' % (v(M), v(M), v(ML + 6), v(ML + 8)))
        a('v_max3_f32 %s, %s, %s, %s' % (v(M), v(M), v(ML + 10), v(ML + 12)))
        a('v_max_f32 %s, %s, %s' % (v(M), v(M), v(ML + 14)))
        for w in range(8): a('v_sub_f32 %s, %s, %s' % (v(F + w), v(ML + 2 * w), v(M)))
        for w in range(8): a('v_mul_f32 %s, %s, %s' % (v(F + w), sC1, v(F + w)))
        for w in range(8): a('v_exp_f32 %s, %s' % (v(F + w), v(F + w)))
        Ls = G_ + 6
        a('v_mul_f32 %s, %s, %s' % (v(Ls), v(F), v(ML + 1)))
        for w in range(1, 8): a('v_fmac_f32 %s, %s, %s' % (v(Ls), v(F + w), v(ML + 2 * w + 1)))
        a('s_waitcnt lgkmcnt(0)')
        a('v_mul_f32 %s, %s, %s' % (v(G_), v(F), v(OB)))
        a('v_mul_f32 %s, %s, %s' % (v(G_ + 2), v(F), v(OB + 1)))
        for w in range(1, 8):
            a('v_fmac_f32 %s, %s, %s' % (v(G_), v(F + w), v(OB + 2 * w)))
            a('v_fmac_f32 %s, %s, %s' % (v(G_ + 2), v(F + w), v(OB + 2 * w + 1)))
        if s.finst: s.stamp(2)
        s.st_ws(G_, 'v25', 's82')
        s.ex('s[64:65]')
        s.st_ws(G_ + 4, 'v26', 's83')
        s.ex(-1)
        s.signal(CNT_PUB)
        s.stamp(6)
        a('s_cmp_ge_u32 %s, 48' % sU)
        a('s_cbranch_scc1 L_s1c')
        a('s_cbranch_execz L_w2')
        a('s_sub_u32 %s, %s, 8' % (sT0, sU))
        a('s_cmp_ge_u32 %s, 14' % sT0)
        a('s_cbranch_scc1 L_end')
        a('s_cmp_ge_u32 s3, 4')
        a('s_cbranch_scc1 L_end')
        a.label('L_w2')
        s.w2_stream()
        a.label('L_s1c')
        s.s1_combine()

    def s1_combine(s):
        a = s.a
        a.c('---------------- S1 combine (stream waves of u 48..63): wave w merges 8 dims of half a head over the 64 WGs of the kv head')
        a('s_lshl_b32 %s, %s, 4' % (sJ, sG))
        a('s_add_u32 %s, %s, %s' % (sJ, sJ, sU))
        a('s_sub_u32 %s, %s, 48' % (sJ, sJ))
        a('s_lshl_b32 %s, %s, 15' % (sC2, sJ))
        a('s_lshr_b32 %s, s3, 1' % sT0)
        a('s_lshl_b32 %s, %s, 13' % (sT0, sT0))
        a('s_add_u32 %s, %s, %s' % (sC2, sC2, sT0))
        a('s_and_b32 %s, s3, 1' % sT0)
        a('s_lshl_b32 %s, %s, 6' % (sT0, sT0))
        a('s_add_u32 %s, %s, %s' % (sC2, sC2, sT0))
        a('s_add_u32 %s, %s, 0x%x' % (sC2, sC2, OFF_O))
        a('s_add_u32 %s, %s, 4096' % (sC3, sC2))
        a('s_lshl_b32 %s, %s, 10' % (sC0, sJ))
        a('s_add_u32 %s, %s, 0x%x' % (sC0, sC0, OFF_ML))
        a('v_lshrrev_b32 v5, 2, v0')
        a('v_lshlrev_b32 v6, 2, v5')
        a('v_lshlrev_b32 v5, 7, v5')
        a('v_and_b32 v7, 3, v0')
        a('v_lshl_add_u32 v5, v7, 4, v5')
        a('v_lshlrev_b32 v7, 2, v7')
        a('s_lshl_b32 %s, s3, 4' % sT0)
        a('v_add_u32 v7, %s, v7' % sT0)
        P = 8; MLr = 24; W_ = 28
        s.wait_lds(CNT_PUB, 8)
        s.stamp(4)
        if s.mlfirst:
            s.poll([(MLr, 'v2', sC0, 0)], sleep=s.s1sleep)
            s.poll([(P + 4 * k, 'v5', sC2 if k < 2 else sC3, (k & 1) * 2048) for k in range(4)])
        else:
            s.poll([(MLr, 'v2', sC0, 0)] + [(P + 4 * k, 'v5', sC2 if k < 2 else sC3, (k & 1) * 2048) for k in range(4)], sleep=s.s1sleep)
        s.stamp(3)
        Mx, Fx, Lx, T_, FF, A0 = W_, W_ + 1, W_ + 2, W_ + 3, W_ + 4, W_ + 8
        a('v_mov_b32 %s, %s' % (v(Mx), v(MLr)))
        s.bfly('v_max_f32', [Mx], [T_], [1, 2, 4, 8, 16, 32])
        a('v_sub_f32 %s, %s, %s' % (v(Fx), v(MLr), v(Mx)))
        a('v_mul_f32 %s, %s, %s' % (v(Fx), sC1, v(Fx)))
        a('v_exp_f32 %s, %s' % (v(Fx), v(Fx)))
        for k in range(4):
            a('ds_bpermute_b32 %s, v6, %s offset:%d' % (v(FF + k), v(Fx), 64 * k))
        a('v_mul_f32 %s, %s, %s' % (v(Lx), v(MLr + 2), v(Fx)))
        s.bfly('v_add_f32', [Lx], [T_], [1, 2, 4, 8, 16, 32])
        a('v_rcp_f32 %s, %s' % (v(Mx), v(Lx)))
        a('s_waitcnt lgkmcnt(0)')
        a('v_mul_f32 %s, %s, %s' % (v(A0), v(P), v(FF)))
        a('v_mul_f32 %s, %s, %s' % (v(A0 + 1), v(P + 2), v(FF)))
        for k in range(1, 4):
            a('v_fmac_f32 %s, %s, %s' % (v(A0), v(P + 4 * k), v(FF + k)))
            a('v_fmac_f32 %s, %s, %s' % (v(A0 + 1), v(P + 4 * k + 2), v(FF + k)))
        for st in (4, 8):
            for r_ in (A0, A0 + 1):
                a('v_add_f32_dpp %s, %s, %s row_ror:%d row_mask:0xf bank_mask:0xf' % (v(r_), v(r_), v(r_), st))
        s.bfly('v_add_f32', [A0, A0 + 1], [A0 + 2, A0 + 3], [16, 32])
        s.div([A0, A0 + 1], Lx, Mx, [A0 + 2, A0 + 3])
        a('v_cvt_pk_bf16_f32 %s, %s, %s' % (v(A0), v(A0), v(A0 + 1)))
        s.ex(0xf)
        a('ds_write_b32 v7, %s offset:%d' % (v(A0), L_O))
        s.ex(-1)
        a('s_branch L_end')

    def gemvR_setup(s, xbase):
        a = s.a
        a('v_lshrrev_b32 v1, 5, v0')
        a('v_lshlrev_b32 v1, 4, v1')
        a('v_add_u32 v1, %s, v1' % xbase)
        a('v_lshrrev_b32 v4, 4, v0')
        a('v_xor_b32 v4, v4, v0')
        a('v_and_b32 v4, 1, v4')
        a('v_cmp_eq_u32 vcc, 0, v4')
        a('v_mov_b32 v4, %d' % L_ZERO)
        a('v_cndmask_b32 v1, v4, v1, vcc')
        a('v_lshrrev_b32 v4, 4, v0')
        a('v_cmp_eq_u32 %s, 1, v4' % sM0)
        a('v_cmp_eq_u32 %s, 2, v4' % sM1)
        a('v_cmp_eq_u32 s[82:83], 3, v4')
    def gemvR_publish(s, acc, voff):
        a = s.a
        G = s.R[3] + 16
        for mu in range(2):
            for k in range(2):
                d = G + 4 * mu + 2 * k
                a('v_cndmask_b32 %s, %s, %s, %s' % (v(d), v(acc[k] + mu), v(acc[2 + k] + mu), sM0))
                a('v_cndmask_b32 %s, %s, %s, %s' % (v(d), v(d), v(acc[4 + k] + mu), sM1))
                a('v_cndmask_b32 %s, %s, %s, %s' % (v(d), v(d), v(acc[6 + k] + mu), 's[82:83]'))
                a('v_mov_b32 %s, %s' % (v(d + 1), sTAG))
        s.st_ws(G, voff, sC2)
        s.st_ws(G + 4, voff, sC3)
    def w2_voff(s, sh=14):
        a = s.a
        a('v_lshrrev_b32 v1, 5, v0')
        a('v_lshlrev_b32 v1, %d, v1' % sh)
        a('v_and_b32 v4, 31, v0')
        a('v_lshl_add_u32 v1, v4, 4, v1')
        a('s_lshl_b32 s7, %s, 17' % sJ)
        a('s_lshl_b32 %s, %s, 9' % (sT0, sR))
        a('s_add_u32 s7, s7, %s' % sT0)

    def w2_stream(s):
        a = s.a
        a.c('---------------- W2 (stream waves 0..3 of S3 WGs): hh = gelu(.), partial out = hh @ w2[64 rows, 256 cols per wave]')
        F = s.R[3]
        TB = [s.X] + s.R[:3]
        a('s_mul_i32 %s, %s, 14' % (sJ, sG))
        a('s_add_u32 %s, %s, %s' % (sJ, sJ, sU))
        a('s_sub_u32 %s, %s, 8' % (sJ, sJ))
        s.srd(SRD_W, P_W2, 3584 * 2048)
        if s.w2late:
            s.w2_voff()
            s.wait_lds(CNT_PUB, 8, sleep=1)
            if s.w2ramp:
                for t in range(s.w2ramp):
                    a('s_add_u32 %s, s7, 0x%x' % (sT0, t * 2048))
                    a('buffer_load_dwordx4 %s, v1, %s, %s offen %s' % (v(s.R[0] + 4 * t, 4), SRD_W, sT0, s.nt))
                    a('s_waitcnt vmcnt(0)')
            s.tile_load(4, 'v1', 's7', 16 * 2048, 2048, s.w2pace, first=s.w2ramp)
            s.tile_transpose(4)
            s.wait_lds(CNT_W, 4, sleep=1)
        else:
            a('s_cbranch_execz L_w2a')
            a('s_cmp_lg_u32 s3, 3')
            a('s_cbranch_scc1 L_w2a')
            s.w2_voff()
            for t in range(8):
                a('s_add_u32 %s, s7, 0x%x' % (sT0, 3 * 16 * 2048 + t * 2048))
                a('buffer_load_dwordx4 %s, v1, %s, %s offen %s' % (v(F + 4 * t, 4), SRD_W, sT0, s.nt))
            a.label('L_w2a')
            s.wait_lds(CNT_W, 4, sleep=1)
            a('s_lshl_b32 %s, s3, 15' % sT0)
            a('s_add_u32 %s, %s, %d' % (sT0, sT0, L_W2))
            a('v_add_u32 v5, %s, v2' % sT0)
            for b in range(3):
                for e in range(8):
                    a('ds_read_b128 %s, v5 offset:%d' % (v(TB[b] + 4 * e, 4), 8192 * b + 1024 * e))
            a('s_cbranch_execz L_w2b')
            a('s_cmp_eq_u32 s3, 3')
            a('s_cbranch_scc1 L_w2c')
            a.label('L_w2b')
            for e in range(8):
                a('ds_read_b128 %s, v5 offset:%d' % (v(TB[3] + 4 * e, 4), 8192 * 3 + 1024 * e))
            a('s_cbranch_execnz L_w2d')
            a.label('L_w2c')
            s.vmwait(0)
            for e in range(8):
                for j in range(4):
                    a('v_perm_b32 %s, %s, %s, %s' % (v(TB[3] + 4 * e + j), v(F + 4 * (2 * j + 1) + (e >> 1)),
                                                     v(F + 4 * (2 * j) + (e >> 1)), sSELHI if e & 1 else sSELLO))
            a.label('L_w2d')
        a('s_lshl_b32 %s, s3, 7' % sT1)
        a('s_add_u32 %s, %s, %d' % (sT1, sT1, L_H))
        s.gemvR_setup(sT1)
        a('v_and_b32 v6, 15, v0')
        a('v_lshlrev_b32 v6, 3, v6')
        a('ds_read_b64 %s, v6 offset:%d' % (v(F + 30, 2), L_B1))
        a('v_add_u32 v6, %s, v6' % sT1)
        a('v_bfe_u32 v7, v0, 2, 2')
        a('v_mul_u32_u24 v7, 14336, v7')
        a('v_and_b32 v4, 3, v0')
        a('v_mul_u32_u24 v4, 3584, v4')
        a('v_add_u32 v7, v7, v4')
        a('v_lshrrev_b32 v4, 4, v0')
        a('v_lshl_add_u32 v7, v4, 4, v7')
        a('s_mul_i32 %s, s3, %d' % (sC2, 8 * 14336))
        a('s_lshl_b32 %s, %s, 6' % (sT0, sJ))
        a('s_add_u32 %s, %s, %s' % (sC2, sC2, sT0))
        a('s_add_u32 %s, %s, 0x%x' % (sC2, sC2, OFF_HH))
        a('s_add_u32 %s, %s, %d' % (sC3, sC2, 4 * 14336))
        a('s_mov_b32 %s, %s' % (sC0, f32(0.044715)))
        a('s_mov_b32 %s, %s' % (sC1, f32(-2.0 * math.sqrt(2.0 / math.pi) * math.log2(math.e))))
        a('s_waitcnt lgkmcnt(0)')
        B1 = F + 24; D = F + 16; TMP = F; T = F + 20
        s.unpack(F + 30, B1, B1 + 1); s.unpack(F + 31, B1 + 2, B1 + 3)
        s.gemvC_gather(4, D, TMP, spin=True)
        s.stamp(1)
        s.rnd2(D, D + 1, T); s.rnd2(D + 2, D + 3, T + 1)
        for c in range(4): a('v_add_f32 %s, %s, %s' % (v(D + c), v(D + c), v(B1 + c)))
        s.rnd2(D, D + 1, T); s.rnd2(D + 2, D + 3, T + 1)
        for c in range(4): a('v_mul_f32 %s, %s, %s' % (v(T + c), v(D + c), v(D + c)))
        for c in range(4): a('v_mul_f32 %s, %s, %s' % (v(T + c), v(T + c), v(D + c)))
        for c in range(4): a('v_fma_f32 %s, %s, %s, %s' % (v(T + c), v(T + c), sC0, v(D + c)))
        for c in range(4): a('v_mul_f32 %s, %s, %s' % (v(T + c), sC1, v(T + c)))
        for c in range(4): a('v_exp_f32 %s, %s' % (v(T + c), v(T + c)))
        for c in range(4): a('v_add_f32 %s, 1.0, %s' % (v(T + c), v(T + c)))
        for c in range(4): a('v_rcp_f32 %s, %s' % (v(T + c), v(T + c)))
        for c in range(4): a('v_mul_f32 %s, %s, %s' % (v(D + c), v(D + c), v(T + c)))
        a('v_cvt_pk_bf16_f32 %s, %s, %s' % (v(T), v(D), v(D + 1)))
        a('v_cvt_pk_bf16_f32 %s, %s, %s' % (v(T + 1), v(D + 2), v(D + 3)))
        s.ex(0xffff)
        a('ds_write_b64 v6, %s' % v(T, 2))
        s.ex(-1)
        acc = s.tile_mfma(4, 'v1', 32)
        s.gemvR_publish(acc, 'v7')
        s.seg_end()
        a('s_branch L_end')

    def role(s):
        a = s.a
        a.c('---------------- role wave')
        a('s_setprio 2')
        a('s_sub_u32 %s, s3, 8' % sR)
        a('v_lshlrev_b32 v4, 2, v0')
        a('ds_write_b32 v4, v3')
        for r_ in range(4): a('v_mov_b32 v%d, -1' % (8 + r_))
        a('ds_write_b128 v2, v[8:11] offset:%d' % L_RED)
        a('ds_write_b128 v2, v[8:11] offset:%d' % (L_RED + 1024))
        s.ptrs_ready()
        a('s_barrier')
        s.srd(SRD_OUT, P_OUT, 2048)
        a('s_mov_b32 %s, 0' % sPASS)
        for r_ in (16, 17, 18, 20): a('v_mov_b32 v%d, 0' % r_)
        a('s_cmp_lt_u32 %s, 8' % sU)
        a('s_cbranch_scc1 L_mod')
        a('s_cmp_lt_u32 %s, 24' % sU)
        a('s_cbranch_scc1 L_p1a')
        a('s_cmp_lt_u32 %s, 28' % sU)
        a('s_cbranch_scc1 L_p1b')
        a('s_cmp_lt_u32 %s, 32' % sU)
        a('s_cbranch_scc1 L_mod')
        a('s_cmp_lt_u32 %s, 48' % sU)
        a('s_cbranch_scc1 L_p2')
        a.label('L_p1a'); s.p1a_role()
        a.label('L_p1b'); s.p1b_role()
        a.label('L_mod'); s.tag_ready()
        a.label('L_mod2'); s.mod_role()
        a.label('L_p2'); s.p2_role()
        a.label('L_s1'); s.s1_role()
        a.label('L_s2'); s.s2_role()
        a.label('L_s3'); s.s3_role()
        a.label('L_warm_stream')
        s.warm_stream(20)
        a('s_branch L_end')

    def warm_stream(s, rid):
        if not s.dry: return
        s.dry_call('L_st_fin', rid)

    def gemvC_setup(s, ptr, pitch, nbytes, colbyte_sgpr, pace=0):
        a = s.a
        s.srd(SRD_W, ptr, nbytes)
        a('v_lshrrev_b32 v1, 3, v0')
        a('v_mul_u32_u24 v1, %d, v1' % (8 * pitch))
        a('v_and_b32 v4, 7, v0')
        a('v_lshl_add_u32 v1, v4, 4, v1')
        a('s_mul_i32 s7, %s, %d' % (sR, 256 * pitch))
        a('s_add_u32 s7, s7, %s' % colbyte_sgpr)
        s.tile_load(4, 'v1', 's7', 64 * pitch, pitch, pace)
    def afragC_addr(s):
        a = s.a
        a('v_lshrrev_b32 v1, 4, v0')
        a('v_lshlrev_b32 v1, 5, v1')
        a('v_and_b32 v4, 1, v0')
        a('v_lshl_add_u32 v1, v4, 4, v1')
        a('s_lshl_b32 %s, %s, 9' % (sT0, sR))
        a('s_add_u32 %s, %s, %d' % (sT0, sT0, L_X))
        a('v_add_u32 v1, %s, v1' % sT0)
    def xw_addr(s, dst):
        a = s.a
        a('s_lshl_b32 %s, %s, 9' % (sT0, sR))
        a('s_add_u32 %s, %s, %d' % (sT0, sT0, L_X))
        a('v_lshlrev_b32 %s, 3, v0' % dst)
        a('v_add_u32 %s, %s, %s' % (dst, sT0, dst))
    def q_addr(s):
        a = s.a
        a('s_lshl_b32 %s, s2, 12' % sC2)
        a('s_lshl_b32 %s, %s, 10' % (sT0, sR))
        a('s_add_u32 %s, %s, %s' % (sC2, sC2, sT0))
        a('s_add_u32 %s, %s, 0x%x' % (sC2, sC2, OFF_Q))
    def q_store(s, F):
        a = s.a
        a('v_mov_b32 %s, %s' % (v(F + 1), v(F + 2)))
        a('s_lshl_b32 %s, %s, 9' % (sT3, sR))
        a('v_lshlrev_b32 v4, 3, v0')
        a('v_add_u32 v4, %s, v4' % sT3)
        a('ds_write_b64 v4, %s offset:%d' % (v(F, 2), L_Q))
        s.signal(CNT_Q)
    def q_wait(s, F, sleep=None):
        s.q_addr()
        s.poll([(F, 'v2', sC2, 0)], sleep=s.qsleep if sleep is None else sleep)
        s.q_store(F)

    def mod_role(s):
        a = s.a
        a.c('---------------- M2: mod slice = silu(c) @ w_mod[:, 64 cols]; S2 WGs (u 0..7): block 32+8g+u ; M WGs (u 24..31): block 64+8g+u-24')
        a('s_lshl_b32 %s, %s, 3' % (sT0, sG))
        a('s_add_u32 %s, %s, %s' % (sT0, sT0, sU))
        a('s_add_u32 %s, %s, 32' % (sT1, sT0))
        a('s_add_u32 %s, %s, 40' % (sT0, sT0))
        a('s_cmp_ge_u32 %s, 24' % sU)
        a('s_cselect_b32 %s, %s, %s' % (sJ, sT0, sT1))
        s.wait_lds(CNT_K, s.kqn, sleep=2)
        a('s_lshl_b32 %s, %s, 9' % (sT0, sR))
        a('v_lshlrev_b32 v4, 3, v0')
        a('v_add_u32 v4, %s, v4' % sT0)
        a('global_load_dwordx2 v[6:7], v4, %s' % sp(P_C))
        a('s_lshl_b32 %s, %s, 7' % (sT1, sJ))
        s.gemvC_setup(P_WM, 12288, 1024 * 12288, sT1, s.Wt)
        a('s_waitcnt vmcnt(32)')
        s.silu()
        s.afragC_addr()
        s.tile_transpose(4)
        s.stamp(1)
        acc = s.tile_mfma(4, 'v1', 128)
        s.gemvC_partial(acc, sR)
        s.signal(CNT_R1)
        s.wait_lds(CNT_R1, 4)
        D = 8; TMP = 16; G = 12
        s.gemvC_gather(4, D, TMP)
        s.mk_granule(G, D)
        a('v_and_b32 v5, 15, v0')
        a('v_lshlrev_b32 v5, 4, v5')
        a('v_lshrrev_b32 v6, 4, v0')
        a('s_lshl_b32 %s, %s, 4' % (sT0, sR))
        a('v_add_u32 v6, %s, v6' % sT0)
        a('s_cmp_lt_u32 %s, 48' % sJ)
        a('s_cbranch_scc1 L_pub_g')
        a('s_cmp_ge_u32 %s, 80' % sJ)
        a('s_cbranch_scc1 L_pub_g')
        a('s_sub_u32 %s, %s, 48' % (sT0, sJ))
        a('s_lshl_b32 %s, %s, 8' % (sT0, sT0))
        a('s_add_u32 %s, %s, 0x%x' % (sT0, sT0, OFF_SBCB))
        for k in range(4):
            a('v_add_u32 v7, %d, v6' % (4 * k))
            a('v_min_u32 v7, 55, v7')
            a('v_lshl_add_u32 v7, v7, 13, v5')
            s.st_ws(G, 'v7', sT0)
        a('s_branch L_pub_done')
        a.label('L_pub_g')
        a('s_cmp_lg_u32 %s, 0' % sR)
        a('s_cbranch_scc1 L_pub_done')
        a('s_and_b32 %s, %s, 15' % (sT0, sJ))
        a('s_lshl_b32 %s, %s, 9' % (sT0, sT0))
        a('s_cmp_ge_u32 %s, 80' % sJ)
        a('s_cselect_b32 %s, 128, 0' % sT1)
        a('s_add_u32 %s, %s, %s' % (sT0, sT0, sT1))
        a('s_add_u32 %s, %s, 0x%x' % (sT0, sT0, OFF_G))
        a('v_bfe_u32 v7, v0, 3, 1')
        a('v_lshlrev_b32 v7, 8, v7')
        a('v_and_b32 v6, 7, v0')
        a('v_lshl_add_u32 v7, v6, 4, v7')
        s.ex(0xffff)
        s.st_ws(G, 'v7', sT0)
        s.ex(-1)
        a.label('L_pub_done')
        s.stamp(2)
        a('s_cmp_lt_u32 %s, 8' % sU)
        a('s_cbranch_scc1 L_s2')
        a('s_branch L_warm_stream')

    def silu(s):
        a = s.a; X = s.X
        s.unpack(6, X, X + 1); s.unpack(7, X + 2, X + 3)
        a('s_mov_b32 %s, 0x%x' % (sC1, LOG2E))
        for c in range(4): a('v_mul_f32 %s, %s, -%s' % (v(X + 4 + c), sC1, v(X + c)))
        for c in range(4): a('v_min_f32 %s, %s, %s' % (v(X + 4 + c), f32(120.0), v(X + 4 + c)))
        for c in range(4): a('v_exp_f32 %s, %s' % (v(X + 4 + c), v(X + 4 + c)))
        for c in range(4): a('v_add_f32 %s, 1.0, %s' % (v(X + 4 + c), v(X + 4 + c)))
        for c in range(4): a('v_rcp_f32 %s, %s' % (v(X + 8 + c), v(X + 4 + c)))
        for c in range(4): s.div([X + c], X + 4 + c, X + 8 + c, [X + 12, X + 13])
        a('v_cvt_pk_bf16_f32 v6, %s, %s' % (v(X), v(X + 1)))
        a('v_cvt_pk_bf16_f32 v7, %s, %s' % (v(X + 2), v(X + 3)))
        s.xw_addr('v4')
        a('ds_write_b64 v4, v[6:7]')

    def p1a_role(s):
        a = s.a
        a.c('---------------- P1a (u 8..23, 48..63): partial sa/ca block cb over rows 256g..256g+255 (one 64-row block per wave)')
        a('s_sub_u32 %s, %s, 8' % (sT0, sU))
        a('s_sub_u32 %s, %s, 32' % (sT1, sU))
        a('s_cmp_ge_u32 %s, 48' % sU)
        a('s_cselect_b32 %s, %s, %s' % (sJ, sT1, sT0))
        a('s_lshl_b32 %s, %s, 9' % (sT0, sG))
        a('v_lshlrev_b32 v4, 3, v0')
        a('v_add_u32 v4, %s, v4' % sT0)
        a('global_load_dwordx2 v[6:7], v4, %s' % sp(P_C))
        s.srd(SRD_W, P_WM, 1024 * 12288)
        a('v_lshrrev_b32 v1, 3, v0')
        a('v_mul_u32_u24 v1, %d, v1' % (8 * 12288))
        a('v_and_b32 v4, 7, v0')
        a('v_lshl_add_u32 v1, v4, 4, v1')
        a('s_lshl_b32 %s, %s, 2' % (sT0, sG))
        a('s_add_u32 %s, %s, %s' % (sT0, sT0, sR))
        a('s_mul_i32 s7, %s, %d' % (sT0, 64 * 12288))
        a('s_lshl_b32 %s, %s, 7' % (sT1, sJ))
        a('s_add_u32 s7, s7, %s' % sT1)
        s.tile_load(1, 'v1', 's7', 0, 12288)
        s.tag_ready()
        a('s_waitcnt vmcnt(%d)' % (0 if 12288 in s.skip else 8))
        s.silu()
        s.afragC_addr()
        a('s_lshl_b32 %s, %s, 7' % (sT0, sR))
        a('v_add_u32 v1, %s, v1' % sT0)
        a('s_and_b32 %s, %s, 15' % (sC2, sJ))
        a('s_lshl_b32 %s, %s, 12' % (sC2, sC2))
        a('s_lshr_b32 %s, %s, 4' % (sT0, sJ))
        a('s_lshl_b32 %s, %s, 11' % (sT0, sT0))
        a('s_add_u32 %s, %s, %s' % (sC2, sC2, sT0))
        a('s_lshl_b32 %s, %s, 9' % (sT0, sG))
        a('s_add_u32 %s, %s, %s' % (sC2, sC2, sT0))
        a('s_add_u32 %s, %s, 0x%x' % (sC2, sC2, OFF_P))
        a('v_lshlrev_b32 v7, 5, v0')
        a('s_add_u32 %s, %s, 8' % (sC3, sR))
        a('s_mov_b32 %s, 2048' % sC0)
        s.tile_transpose(1, landed=lambda: s.signal(CNT_T))
        acc = s.tile_mfma(1, 'v1', 128)
        s.gemvC_partial(acc, sC3)
        s.signal(CNT_R1)
        a('s_cmp_lg_u32 %s, 0' % sR)
        a('s_cbranch_scc1 L_p1a_done')
        s.wait_lds(CNT_R1, 4)
        D = 8; TMP = 16; G = 32
        s.gemvC_gather(4, D, TMP, slot0=sC0)
        for k in range(4):
            a('v_mov_b32 %s, %s' % (v(G + 2 * k), v(D + k)))
            a('v_mov_b32 %s, %s' % (v(G + 2 * k + 1), sTAG))
        s.ex(0xffff)
        s.st_ws(G, 'v7', sC2)
        s.st_ws(G + 4, 'v7', sC2, 16)
        s.ex(-1)
        a.label('L_p1a_done')
        s.stamp(3)
        a('s_cmp_ge_u32 %s, 48' % sU)
        a('s_cbranch_scc1 L_s1')
        a('s_cmp_lt_u32 %s, 22' % sU)
        a('s_cbranch_scc1 L_s3')
        a('s_branch L_warm_stream')

    def p1b_role(s):
        a = s.a
        a.c('---------------- P1b (u 24..27): sum partial sa/ca of 64 columns, h = LN(x)*(1+ca)+sa, send to the 64 P2 WGs')
        X = s.X; F = s.R[3]
        a('s_lshl_b32 %s, %s, 2' % (sJ, sG))
        a('s_add_u32 %s, %s, %s' % (sJ, sJ, sU))
        a('s_sub_u32 %s, %s, 24' % (sJ, sJ))
        a('v_lshlrev_b32 v4, 5, v0')
        a('global_load_dwordx4 %s, v4, %s' % (v(X, 4), sp(P_X)))
        a('global_load_dwordx4 %s, v4, %s offset:16' % (v(X + 4, 4), sp(P_X)))
        a('s_lshl_b32 %s, %s, 7' % (sT0, sJ))
        a('v_and_b32 v4, 31, v0')
        a('v_lshlrev_b32 v4, 2, v4')
        a('v_add_u32 v4, %s, v4' % sT0)
        a('global_load_dword v6, v4, %s' % sp(P_X))
        a('s_lshl_b32 %s, %s, 11' % (sT0, sG))
        a('s_add_u32 %s, %s, 0x%x' % (sT0, sT0, OFF_CNT))
        a('v_lshlrev_b32 v4, 8, v0')
        s.ex(0xff)
        a('buffer_store_dword v3, v4, %s, %s offen sc0 sc1' % (SRD_WS, sT0))
        s.ex(-1)
        s.tag_ready()
        a('s_waitcnt vmcnt(0)')
        U = X + 8; S1 = X + 24; S2 = X + 25
        for k in range(8): s.unpack(X + k, U + 2 * k, U + 2 * k + 1)
        a('v_add_f32 %s, %s, %s' % (v(S1), v(U), v(U + 1)))
        a('v_mul_f32 %s, %s, %s' % (v(S2), v(U), v(U)))
        a('v_fmac_f32 %s, %s, %s' % (v(S2), v(U + 1), v(U + 1)))
        for k in range(2, 16):
            a('v_add_f32 %s, %s, %s' % (v(S1), v(S1), v(U + k)))
            a('v_fmac_f32 %s, %s, %s' % (v(S2), v(U + k), v(U + k)))
        s.bfly('v_add_f32', [S1, S2], [X + 26, X + 27], [1, 2, 4, 8, 16, 32])
        MEAN, DD, RR = X + 28, X + 29, X + 30
        s.ln_stats(S1, S2, MEAN, DD, RR, X + 31)
        s.unpack(6, X, X + 1)
        s.ln_apply([X, X + 1], MEAN, DD, RR, [X + 4, X + 5])
        a('s_lshl_b32 %s, %s, 12' % (sC2, sJ))
        a('s_add_u32 %s, %s, 0x%x' % (sC2, sC2, OFF_P))
        a('v_and_b32 v5, 15, v0')
        a('v_lshlrev_b32 v6, 3, v5')
        a('v_lshlrev_b32 v5, 4, v5')
        a('v_lshrrev_b32 v7, 4, v0')
        a('v_lshl_add_u32 v7, v7, 12, v5')
        a('s_lshl_b32 %s, %s, 16' % (sC3, sR))
        a('s_lshl_b32 %s, %s, 8' % (sT0, sJ))
        a('s_add_u32 %s, %s, %s' % (sC3, sC3, sT0))
        a('s_add_u32 %s, %s, 0x%x' % (sC3, sC3, OFF_H))
        G = F + 16
        a('v_mov_b32 %s, %s' % (v(G + 1), sTAG))
        a('v_mov_b32 %s, %s' % (v(G + 3), sTAG))
        s.poll([(F + 4 * k, 'v2', sC2, 1024 * k) for k in range(4)], sleep=s.psleep)
        s.stamp(3)
        a('v_add_f32 %s, %s, %s' % (v(F), v(F), v(F + 4)))
        a('v_add_f32 %s, %s, %s' % (v(F + 1), v(F + 2), v(F + 6)))
        a('v_add_f32 %s, %s, %s' % (v(F + 2), v(F + 8), v(F + 12)))
        a('v_add_f32 %s, %s, %s' % (v(F + 3), v(F + 10), v(F + 14)))
        s.bfly('v_add_f32', [F, F + 1, F + 2, F + 3], [F + 4, F + 5, F + 6, F + 7], [32])
        s.rnd2(F, F + 1, F + 4); s.rnd2(F + 2, F + 3, F + 5)
        a('v_add_f32 %s, 1.0, %s' % (v(F + 2), v(F + 2)))
        a('v_add_f32 %s, 1.0, %s' % (v(F + 3), v(F + 3)))
        s.rnd2(F + 2, F + 3, F + 5)
        a('v_mul_f32 %s, %s, %s' % (v(F + 2), v(F + 2), v(X)))
        a('v_mul_f32 %s, %s, %s' % (v(F + 3), v(F + 3), v(X + 1)))
        s.rnd2(F + 2, F + 3, F + 5)
        a('v_add_f32 %s, %s, %s' % (v(F), v(F), v(F + 2)))
        a('v_add_f32 %s, %s, %s' % (v(F + 1), v(F + 1), v(F + 3)))
        a('v_cvt_pk_bf16_f32 %s, %s, %s' % (v(F), v(F), v(F + 1)))
        a('ds_bpermute_b32 %s, v6, %s' % (v(G), v(F)))
        a('ds_bpermute_b32 %s, v6, %s offset:4' % (v(G + 2), v(F)))
        a('s_waitcnt lgkmcnt(0)')
        for k in range(4):
            a('s_add_u32 %s, %s, 0x%x' % (sT1, sC3, 4 * k * 4096))
            s.st_ws(G, 'v7', sT1)
        s.stamp(4)
        a('s_branch L_mod2')

    def p2_role(s):
        a = s.a
        a.c('---------------- P2 (wg 0..63): q slice = h @ wq[:, 64 cols]')
        F = s.R[3]; X = s.X
        a('s_lshl_b32 %s, %s, 4' % (sJ, sG))
        a('s_add_u32 %s, %s, %s' % (sJ, sJ, sU))
        a('s_sub_u32 %s, %s, 32' % (sJ, sJ))
        a('s_lshl_b32 %s, %s, 7' % (sT1, sJ))
        s.gemvC_setup(P_WQ, 8192, 1024 * 8192, sT1)
        s.tag_ready()
        s.afragC_addr()
        s.tile_transpose(4, landed=lambda: s.signal(CNT_T))
        s.stamp(1)
        a('s_lshl_b32 %s, %s, 12' % (sC2, sJ))
        a('s_lshl_b32 %s, %s, 10' % (sT0, sR))
        a('s_add_u32 %s, %s, %s' % (sC2, sC2, sT0))
        a('s_add_u32 %s, %s, 0x%x' % (sC2, sC2, OFF_H))
        s.xw_addr('v5')
        s.poll([(F, 'v2', sC2, 0)], sleep=s.psleep)
        s.stamp(4)
        a('v_mov_b32 %s, %s' % (v(F + 1), v(F + 2)))
        a('ds_write_b64 v5, %s' % v(F, 2))
        acc = s.tile_mfma(4, 'v1', 128)
        s.gemvC_partial(acc, sR)
        s.signal(CNT_R1)
        s.wait_lds(CNT_R1, 4)
        D = 8; TMP = 16; G = 12
        s.gemvC_gather(4, D, TMP)
        s.mk_granule(G, D)
        a('v_and_b32 v5, 15, v0')
        a('v_lshlrev_b32 v5, 4, v5')
        a('v_lshrrev_b32 v6, 4, v0')
        a('v_lshl_add_u32 v7, v6, 12, v5')
        a('s_lshr_b32 %s, %s, 4' % (sT0, sJ))
        a('s_lshl_b32 %s, %s, 18' % (sT0, sT0))
        a('s_lshl_b32 %s, %s, 16' % (sT1, sR))
        a('s_add_u32 %s, %s, %s' % (sT0, sT0, sT1))
        a('s_and_b32 %s, %s, 15' % (sT1, sJ))
        a('s_lshl_b32 %s, %s, 8' % (sT1, sT1))
        a('s_add_u32 %s, %s, %s' % (sT0, sT0, sT1))
        a('s_add_u32 %s, %s, 0x%x' % (sT0, sT0, OFF_Q))
        for k in range(4):
            a('s_add_u32 %s, %s, 0x%x' % (sT1, sT0, 4 * k * 4096))
            s.st_ws(G, 'v7', sT1)
        s.seg_end()
        s.stamp(2)
        a('s_branch L_warm_stream')

    def s1_role(s):
        a = s.a
        a.c('---------------- S1 (wg 64..127): combine half a head over 64 WGs, partial attn = o_slice @ wo[64 rows, :]')
        F = s.R[3]
        a('s_lshl_b32 %s, %s, 4' % (sJ, sG))
        a('s_add_u32 %s, %s, %s' % (sJ, sJ, sU))
        a('s_sub_u32 %s, %s, 48' % (sJ, sJ))
        if s.touch:
            a('s_lshl_b32 %s, %s, 15' % (sC2, sJ))
            a('s_lshl_b32 %s, %s, 13' % (sT0, sR))
            a('s_add_u32 %s, %s, %s' % (sC2, sC2, sT0))
            a('s_add_u32 %s, %s, 0x%x' % (sC2, sC2, OFF_O))
            a('s_add_u32 %s, %s, 4096' % (sC3, sC2))
            a('s_lshl_b32 %s, %s, 10' % (sC0, sJ))
            a('s_add_u32 %s, %s, 0x%x' % (sC0, sC0, OFF_ML))
            for k in range(8):
                a('buffer_load_dwordx4 %s, v2, %s, %s offen offset:%d sc1' % (v(F + 4 * k, 4), SRD_WS, sC2 if k < 4 else sC3, (k & 3) * 1024))
            a('buffer_load_dwordx4 %s, v2, %s, %s offen sc1' % (v(s.X, 4), SRD_WS, sC0))
            a('s_waitcnt vmcnt(0)')
        s.wait_lds(CNT_K, s.kqn, sleep=2)
        s.srd(SRD_W, P_WO, 4096 * 2048)
        s.w2_voff(16)
        s.tile_load(4, 'v1', 's7', 16 * 2048, 2048, s.Wt, rowf=lambda b, t: 16 * (b >> 1) + 4 * (b & 1) + 8 * (t & 1) + (t >> 1))
        s.tile_transpose(4)
        s.stamp(1)
        s.gemvR_setup('%d' % L_O)
        a('v_bfe_u32 v5, v0, 2, 2')
        a('v_lshlrev_b32 v5, 14, v5')
        a('v_and_b32 v6, 3, v0')
        a('v_lshl_add_u32 v5, v6, 12, v5')
        a('v_lshrrev_b32 v6, 4, v0')
        a('v_lshl_add_u32 v5, v6, 4, v5')
        a('s_lshl_b32 %s, %s, 17' % (sC2, sR))
        a('s_lshl_b32 %s, %s, 6' % (sT0, sJ))
        a('s_add_u32 %s, %s, %s' % (sC2, sC2, sT0))
        a('s_add_u32 %s, %s, 0x%x' % (sC2, sC2, OFF_A))
        a('s_add_u32 %s, %s, 0x10000' % (sC3, sC2))
        s.wait_lds(CNT_PUB, 8, sleep=1)
        s.stamp(4)
        acc = s.tile_mfma(4, 'v1', 32, spin=True)
        s.gemvR_publish(acc, 'v5')
        s.seg_end()
        s.stamp(6)
        a('s_branch L_end')

    def s2_role(s):
        a = s.a
        a.c("---------------- S2 (u 0..7): x1 slice (32 cols, 8 per wave); later out slice = x1 + gb*(sum of w2 partials + b2)")
        a('s_lshl_b32 %s, %s, 3' % (sJ, sG))
        a('s_add_u32 %s, %s, %s' % (sJ, sJ, sU))
        XA, GA, GB, B2, A1, A2, A3, XO, OO, P = 8, 10, 12, 14, 16, 17, 18, 19, 20, 24
        a('v_and_b32 %s, 3, v0' % v(XO))
        a('v_lshlrev_b32 %s, 2, %s' % (v(XO), v(XO)))
        a('s_lshl_b32 %s, %s, 4' % (sT0, sR))
        a('v_add_u32 %s, %s, %s' % (v(XO), sT0, v(XO)))
        a('s_lshl_b32 %s, %s, 6' % (sT1, sJ))
        a('v_add_u32 %s, %s, %s' % (v(OO), sT1, v(XO)))
        a('global_load_dword v6, %s, %s' % (v(OO), sp(P_X)))
        a('global_load_dword v7, %s, %s' % (v(OO), sp(P_B2)))
        a('v_and_b32 v5, 15, v0')
        a('v_lshlrev_b32 v4, 4, v5')
        a('s_lshl_b32 %s, %s, 8' % (sC2, sJ))
        a('s_add_u32 %s, %s, 0x%x' % (sC2, sC2, OFF_G))
        s.poll([(P, 'v4', sC2, 0)], sleep=s.nsleep)
        a('v_mov_b32 %s, %s' % (v(P + 1), v(P + 2)))
        a('v_lshlrev_b32 v5, 3, v5')
        a('ds_write_b64 v5, %s offset:%d' % (v(P, 2), L_G))
        a('ds_read_b32 %s, %s offset:%d' % (v(P + 4), v(XO), L_G))
        a('ds_read_b32 %s, %s offset:%d' % (v(P + 5), v(XO), L_G + 64))
        a('s_waitcnt lgkmcnt(0)')
        s.unpack(6, XA, XA + 1)
        s.unpack(7, B2, B2 + 1)
        s.unpack(P + 4, GA, GA + 1)
        s.unpack(P + 5, GB, GB + 1)
        a('v_lshrrev_b32 v5, 1, v0')
        a('v_and_b32 v4, 1, v0')
        a('v_lshlrev_b32 v4, 4, v4')
        a('v_add_u32 %s, 32, v5' % v(A2))
        a('v_min_u32 %s, 55, %s' % (v(A2), v(A2)))
        a('v_lshl_add_u32 %s, v5, 12, v4' % v(A1))
        a('v_lshl_add_u32 %s, %s, 12, v4' % (v(A2), v(A2)))
        a('v_add_u32 %s, 192, v0' % v(A3))
        a('v_min_u32 %s, 223, %s' % (v(A3), v(A3)))
        a('v_lshlrev_b32 %s, 4, %s' % (v(A3), v(A3)))
        s.stamp(1)
        s.warm_stream(40)
        if s.dry:
            s.dry_call('L_s2_seg', 4)
            a('s_lshl_b32 %s, %s, 3' % (sJ, sG))
            a('s_add_u32 %s, %s, %s' % (sJ, sJ, sU))
        a.label('L_s2_seg')
        a('s_lshl_b32 %s, %s, 14' % (sC2, sJ))
        a('s_lshl_b32 %s, %s, 12' % (sT0, sR))
        a('s_add_u32 %s, %s, %s' % (sC2, sC2, sT0))
        a('s_add_u32 %s, %s, 0x%x' % (sC2, sC2, OFF_A))
        a('s_lshl_b32 %s, %s, 7' % (sC3, sJ))
        a('s_lshl_b32 %s, %s, 5' % (sT0, sR))
        a('s_add_u32 %s, %s, %s' % (sC3, sC3, sT0))
        a('s_add_u32 %s, %s, 0x%x' % (sC3, sC3, OFF_X1))
        a('s_mul_i32 %s, %s, 14336' % (sC0, sJ))
        a('s_mul_i32 %s, %s, 3584' % (sT0, sR))
        a('s_add_u32 %s, %s, %s' % (sC0, sC0, sT0))
        a('s_add_u32 %s, %s, 0x%x' % (sC0, sC0, OFF_HH))
        s.wait_lds(CNT_PUB, 8, sleep=1)
        s.stamp(4)
        Q = P + 20
        def reduce():
            a('v_add_f32 %s, %s, %s' % (v(Q), v(P), v(P + 4)))
            a('v_add_f32 %s, %s, %s' % (v(Q + 1), v(P + 2), v(P + 6)))
            a('v_add_f32 %s, %s, %s' % (v(Q), v(Q), v(P + 8)))
            a('v_add_f32 %s, %s, %s' % (v(Q + 1), v(Q + 1), v(P + 10)))
        def reduce2():
            for st in (4, 8):
                for r in (Q, Q + 1):
                    a('v_add_f32_dpp %s, %s, %s row_ror:%d row_mask:0xf bank_mask:0xf' % (v(r), v(r), v(r), st))
            s.bfly('v_add_f32', [Q, Q + 1], [Q + 2, Q + 3], [16, 32])
            s.rnd2(Q, Q + 1, Q + 2)
        G = P + 16
        a('v_mov_b32 %s, %s' % (v(G + 1), sTAG))
        a('v_mov_b32 %s, %s' % (v(G + 3), sTAG))
        if s.s2sleep: a('s_sleep %d' % s.s2sleep)
        s.ppoll([(P + 4 * k, 'v2', sC2, 1024 * k) for k in range(4)], s.pd)
        s.stamp(5)
        reduce()
        a('v_add_f32 %s, %s, %s' % (v(Q), v(Q), v(P + 12)))
        a('v_add_f32 %s, %s, %s' % (v(Q + 1), v(Q + 1), v(P + 14)))
        reduce2()
        a('v_mul_f32 %s, %s, %s' % (v(Q), v(Q), v(GA)))
        a('v_mul_f32 %s, %s, %s' % (v(Q + 1), v(Q + 1), v(GA + 1)))
        s.rnd2(Q, Q + 1, Q + 2)
        a('v_add_f32 %s, %s, %s' % (v(Q), v(Q), v(XA)))
        a('v_add_f32 %s, %s, %s' % (v(Q + 1), v(Q + 1), v(XA + 1)))
        a('v_cvt_pk_bf16_f32 %s, %s, %s' % (v(Q + 2), v(Q), v(Q + 1)))
        a('v_mov_b32_dpp %s, %s quad_perm:[0,2,0,2] row_mask:0xf bank_mask:0xf' % (v(G), v(Q + 2)))
        a('v_mov_b32_dpp %s, %s quad_perm:[1,3,1,3] row_mask:0xf bank_mask:0xf' % (v(G + 2), v(Q + 2)))
        s.st_ws(G, v(A1), sC3)
        s.st_ws(G, v(A2), sC3)
        s.unpack(Q + 2, XA, XA + 1)
        s.stamp(6)
        a('s_waitcnt vmcnt(0)')
        a('s_sleep %d' % s.fsleep)
        s.ppoll([(P + 4 * k, 'v2', sC0, 1024 * k) for k in range(3)] + [(P + 12, v(A3), sC0, 0)], s.pd)
        s.stamp(2)
        reduce()
        s.ex('lo32')
        a('v_add_f32 %s, %s, %s' % (v(Q), v(Q), v(P + 12)))
        a('v_add_f32 %s, %s, %s' % (v(Q + 1), v(Q + 1), v(P + 14)))
        s.ex(-1)
        reduce2()
        a('v_add_f32 %s, %s, %s' % (v(Q), v(Q), v(B2)))
        a('v_add_f32 %s, %s, %s' % (v(Q + 1), v(Q + 1), v(B2 + 1)))
        s.rnd2(Q, Q + 1, Q + 2)
        a('v_mul_f32 %s, %s, %s' % (v(Q), v(Q), v(GB)))
        a('v_mul_f32 %s, %s, %s' % (v(Q + 1), v(Q + 1), v(GB + 1)))
        s.rnd2(Q, Q + 1, Q + 2)
        a('v_add_f32 %s, %s, %s' % (v(Q), v(Q), v(XA)))
        a('v_add_f32 %s, %s, %s' % (v(Q + 1), v(Q + 1), v(XA + 1)))
        a('v_cvt_pk_bf16_f32 %s, %s, %s' % (v(Q + 2), v(Q), v(Q + 1)))
        s.ex(0xf)
        a('buffer_store_dword %s, %s, %s, 0 offen' % (v(Q + 2), v(OO), SRD_OUT))
        s.ex(-1)
        a('s_cmp_lg_u32 s2, 0')
        a('s_cbranch_scc1 L_end')
        a('s_cmp_lg_u32 %s, 0' % sR)
        a('s_cbranch_scc1 L_end')
        a('v_mov_b32 v4, %s' % sTAG)
        s.ex(1)
        a('buffer_store_dword v4, v3, %s, 0 offen sc1' % SRD_WS)
        s.ex(-1)
        a('s_branch L_end')

    def s3_role(s):
        a = s.a
        a.c('---------------- S3 (u 8..21): w2 rows -> LDS; x1 -> LN -> modulate -> LN -> y ; partial y @ w1[:, 64 cols]')
        F = s.R[3]
        TB = [s.X] + s.R[:3]
        a('s_mul_i32 %s, %s, 14' % (sJ, sG))
        a('s_add_u32 %s, %s, %s' % (sJ, sJ, sU))
        a('s_sub_u32 %s, %s, 8' % (sJ, sJ))
        a('s_lshl_b32 %s, %s, 7' % (sT1, sJ))
        a('v_and_b32 v5, 15, v0')
        a('v_lshlrev_b32 v5, 3, v5')
        a('v_add_u32 v4, %s, v5' % sT1)
        a('global_load_dwordx2 v[6:7], v4, %s' % sp(P_B1))
        if s.s3wait: s.wait_lds(CNT_K, s.kqn, sleep=2)
        if s.w2late:
            a('s_waitcnt vmcnt(0)')
            a('ds_write_b64 v5, v[6:7] offset:%d' % L_B1)
        else:
            s.srd(SRD_W, P_W2, 3584 * 2048)
            s.w2_voff()
            s.tile_load(4, 'v1', 's7', 16 * 2048, 2048, s.Wt)
            s.tile_transpose(4)
            a('s_waitcnt vmcnt(0)')
            a('ds_write_b64 v5, v[6:7] offset:%d' % L_B1)
            a('s_lshl_b32 %s, %s, 15' % (sT0, sR))
            a('s_add_u32 %s, %s, %d' % (sT0, sT0, L_W2))
            a('v_add_u32 v5, %s, v2' % sT0)
            for b in range(4):
                if b == 3:
                    a('s_cmp_eq_u32 %s, 3' % sR)
                    a('s_cbranch_scc1 L_s3_w')
                for e in range(8):
                    a('ds_write_b128 v5, %s offset:%d' % (v(TB[b] + 4 * e, 4), 8192 * b + 1024 * e))
            a.label('L_s3_w')
        s.signal(CNT_W)
        a('s_lshl_b32 %s, %s, 7' % (sT1, sJ))
        s.gemvC_setup(P_W1, 7168, 1024 * 7168, sT1, s.Wt)
        s.afragC_addr()
        s.tile_transpose(4)
        s.stamp(1)
        a('s_lshl_b32 %s, %s, 13' % (sC2, sJ))
        a('s_lshl_b32 %s, %s, 10' % (sT0, sR))
        a('s_add_u32 %s, %s, %s' % (sC2, sC2, sT0))
        a('s_add_u32 %s, %s, 0x%x' % (sC2, sC2, OFF_SBCB))
        a('s_add_u32 %s, %s, 4096' % (sC3, sC2))
        s.poll([(F, 'v2', sC2, 0), (F + 4, 'v2', sC3, 0)], sleep=s.nsleep)
        SB, CB, XX, T = F + 8, F + 12, F + 4, F + 16
        s.unpack(F, SB, SB + 1); s.unpack(F + 2, SB + 2, SB + 3)
        s.unpack(F + 4, CB, CB + 1); s.unpack(F + 6, CB + 2, CB + 3)
        for c in range(4): a('v_add_f32 %s, 1.0, %s' % (v(CB + c), v(CB + c)))
        s.rnd2(CB, CB + 1, T); s.rnd2(CB + 2, CB + 3, T)
        s.xw_addr('v6')
        a('s_lshl_b32 %s, %s, 3' % (sT0, sR))
        a('v_mov_b32 v7, %s' % sT0)
        s.stamp(2)
        s.warm_stream(50)
        if s.dry:
            s.dry_call('L_s3_seg', 5)
            a('s_mul_i32 %s, %s, 14' % (sJ, sG))
            a('s_add_u32 %s, %s, %s' % (sJ, sJ, sU))
            a('s_sub_u32 %s, %s, 8' % (sJ, sJ))
        a.label('L_s3_seg')
        a('s_lshl_b32 %s, %s, 12' % (sC2, sJ))
        a('s_lshl_b32 %s, %s, 10' % (sT0, sR))
        a('s_add_u32 %s, %s, %s' % (sC2, sC2, sT0))
        a('s_add_u32 %s, %s, 0x%x' % (sC2, sC2, OFF_X1))
        s.wait_lds(CNT_PUB, 8, sleep=1)
        s.stamp(4)
        if s.s3sleep: a('s_sleep %d' % s.s3sleep)
        s.ppoll([(F, 'v2', sC2, 0)], s.pd)
        s.stamp(5)
        s.unpack(F, XX, XX + 1); s.unpack(F + 2, XX + 2, XX + 3)
        S1, S2, MEAN, DD, RR, RD = F + 18, F + 19, F + 20, F + 21, F + 22, F + 24
        xs = [XX, XX + 1, XX + 2, XX + 3]
        for rnd, cnt in ((0, CNT_R2), (1, CNT_R3)):
            a('v_add_f32 %s, %s, %s' % (v(S1), v(XX), v(XX + 1)))
            a('v_mul_f32 %s, %s, %s' % (v(S2), v(XX), v(XX)))
            a('v_fmac_f32 %s, %s, %s' % (v(S2), v(XX + 1), v(XX + 1)))
            for k in (2, 3):
                a('v_add_f32 %s, %s, %s' % (v(S1), v(S1), v(XX + k)))
                a('v_fmac_f32 %s, %s, %s' % (v(S2), v(XX + k), v(XX + k)))
            s.bfly('v_add_f32', [S1, S2], [T, T + 1], [1, 2, 4, 8, 16, 32])
            s.ex(1)
            a('ds_write_b64 v7, %s offset:%d' % (v(S1, 2), L_ST + 32 * rnd))
            s.ex(-1)
            s.lds_spin(['ds_read_b128 %s, v3 offset:%d' % (v(RD, 4), L_ST + 32 * rnd),
                        'ds_read_b128 %s, v3 offset:%d' % (v(RD + 4, 4), L_ST + 32 * rnd + 16)], [RD + 1, RD + 3, RD + 5, RD + 7], 4)
            a('v_add_f32 %s, %s, %s' % (v(S1), v(RD), v(RD + 2)))
            a('v_add_f32 %s, %s, %s' % (v(S2), v(RD + 1), v(RD + 3)))
            a('v_add_f32 %s, %s, %s' % (v(RD), v(RD + 4), v(RD + 6)))
            a('v_add_f32 %s, %s, %s' % (v(RD + 1), v(RD + 5), v(RD + 7)))
            a('v_add_f32 %s, %s, %s' % (v(S1), v(S1), v(RD)))
            a('v_add_f32 %s, %s, %s' % (v(S2), v(S2), v(RD + 1)))
            s.ln_stats(S1, S2, MEAN, DD, RR, T)
            s.ln_apply(xs, MEAN, DD, RR, [T, T + 1])
            if rnd == 0:
                for c in range(4): a('v_mul_f32 %s, %s, %s' % (v(XX + c), v(XX + c), v(CB + c)))
                s.rnd2(XX, XX + 1, T); s.rnd2(XX + 2, XX + 3, T + 1)
                for c in range(4): a('v_add_f32 %s, %s, %s' % (v(XX + c), v(XX + c), v(SB + c)))
                s.rnd2(XX, XX + 1, T); s.rnd2(XX + 2, XX + 3, T + 1)
        a('v_cvt_pk_bf16_f32 %s, %s, %s' % (v(T), v(XX), v(XX + 1)))
        a('v_cvt_pk_bf16_f32 %s, %s, %s' % (v(T + 1), v(XX + 2), v(XX + 3)))
        a('ds_write_b64 v6, %s' % v(T, 2))
        s.stamp(6)
        a('s_waitcnt vmcnt(0)')
        acc = s.tile_mfma(4, 'v1', 128)
        s.gemvC_partial(acc, sR)
        a('s_branch L_end')

if __name__ == '__main__':
    import argparse
    ap = argparse.ArgumentParser()
    ap.add_argument('-o', default='k.s')
    ap.add_argument('--W', type=int, default=4)
    ap.add_argument('--W2', type=int, default=8)
    ap.add_argument('--slow', type=int, default=0)
    ap.add_argument('--stamps', action='store_true')
    ap.add_argument('--skip', default='')
    ap.add_argument('--dry', action='store_true')
    ap.add_argument('--kq', type=int, default=22)
    ap.add_argument('--Wt', type=int, default=16)
    ap.add_argument('--NL', type=int, default=15)
    ap.add_argument('--tkg', type=int, default=1)
    ap.add_argument('--pd', type=int, default=1)
    ap.add_argument('--mlfirst', action='store_true')
    ap.add_argument('--s1sleep', type=int, default=0)
    ap.add_argument('--w2ramp', type=int, default=0)
    ap.add_argument('--qpts', default='20,26,32')
    ap.add_argument('--w2pace', type=int, default=0)
    ap.add_argument('--w2early', action='store_true')
    ap.add_argument('--ND3', type=int, default=2)
    ap.add_argument('--touch', action='store_true')
    ap.add_argument('--hold', type=int, default=1)
    ap.add_argument('--ND', type=int, default=2)
    ap.add_argument('--s2sleep', type=int, default=0)
    ap.add_argument('--s3sleep', type=int, default=0)
    ap.add_argument('--finst', action='store_true')
    ap.add_argument('--finsleep', type=int, default=2)
    ap.add_argument('--tsleep', type=int, default=0)
    ap.add_argument('--fsleep', type=int, default=20)
    ap.add_argument('--s3wait', action='store_true')
    ap.add_argument('--nos3dyn', action='store_true')
    ap.add_argument('--classes', default='')
    ap.add_argument('--nsleep', type=int, default=100)
    ap.add_argument('--psleep', type=int, default=0)
    ap.add_argument('--kqn', type=int, default=8)
    ap.add_argument('--qsleep', type=int, default=16)
    args = ap.parse_args()
    if args.classes:
        for i, x in enumerate(args.classes.split(',')): CLASSES[i] = (CLASSES[i][0], CLASSES[i][1], int(x))
    g = Gen(W=args.W, W2=args.W2, slow=args.slow, stamps=args.stamps, qsleep=args.qsleep)
    g.dry = args.dry; g.kq = args.kq; g.Wt = args.Wt; g.NL = args.NL; g.tkg = args.tkg; g.pd = args.pd; g.mlfirst = args.mlfirst; g.s1sleep = args.s1sleep; g.w2ramp = args.w2ramp; g.qpts = tuple(int(x) for x in args.qpts.split(',') if x); g.w2pace = args.w2pace; g.w2late = not args.w2early; g.ND3 = args.ND3; g.touch = args.touch; g.hold = args.hold; g.ND = args.ND; g.s2sleep = args.s2sleep; g.s3sleep = args.s3sleep; g.finst = args.finst; g.finsleep = args.finsleep; g.tsleep = args.tsleep; g.fsleep = args.fsleep; g.s3wait = args.s3wait; g.s3dyn = not args.nos3dyn; g.nsleep = args.nsleep; g.psleep = args.psleep; g.kqn = args.kqn
    for x in args.skip.split(','):
        if x == 'wm': g.skip.add(12288)
        if x == 'wq': g.skip.add(8192)
        if x == 'w1': g.skip.add(7168)
        if x == 'wo': g.skip.add((2048, 16 * 2048))
    open(args.o, 'w').write(g.build())
```

```python
import sys, math
sys.path.insert(0, 'work')
from asmlib import Asm
NAME = 'adaLN_cond__gqa_block_cached__mixer_channel_mlp__decode'

OFF_MOD, OFF_Q, OFF_SBCB, OFF_G, OFF_ML = 0x010000, 0x100000, 0x200000, 0x280000, 0x290000
OFF_O, OFF_A, OFF_X1, OFF_HH, OFF_TS = 0x300000, 0x500000, 0x580000, 0x600000, 0x8000000
OFF_P = 0x2a0000
OFF_H = OFF_MOD
CNT_Q, CNT_ATT, CNT_R1, CNT_R2, CNT_R3, CNT_X, CNT_S, CNT_T, CNT_W, CNT_K, CNT_PUB = 0, 4, 8, 12, 16, 20, 24, 28, 32, 36, 40
L_ZERO, L_Q, L_X, L_RED, L_ML, L_ST, L_O, L_G, L_B1, L_H, L_OB = 64, 256, 2304, 4352, 5376, 5888, 5952, 7424, 7552, 7680, 8192
L_W2 = L_OB + 8 * 4096
LDS_BYTES = L_W2 + 15 * 8192
assert LDS_BYTES <= 163840
CLASSES = [(0, 8, 26), (8, 14, 24), (22, 2, 28), (24, 8, 24), (32, 16, 26), (48, 16, 26)]
OFF_CNT = 0x2b0000
sWG, sWAVE, sTAG = 's2', 's3', 's4'
sR = 's5'
sJ = 's6'
sU, sG = 's24', 's25'
sLIVE = 's[26:27]'
sRET, sPASS = 's69', 's100'
sLAST, sH2, sL0 = 's100', 's101', 's28'
SRD_K, SRD_V, SRD_WS, SRD_W, SRD_OUT = 's[8:11]', 's[12:15]', 's[16:19]', 's[20:23]', 's[28:31]'
P_X, P_K, P_V, P_WQ, P_WO, P_W1, P_B1, P_W2, P_B2, P_C, P_WM, P_OUT, P_DBG, P_WS = 32, 34, 36, 38, 40, 44, 46, 48, 50, 52, 54, 56, 58, 60
sSELLO, sSELHI = 's62', 's63'
sT0, sT1, sT2, sT3, sTO = 's64', 's65', 's66', 's67', 's68'
sACC = 's[70:71]'
sM0, sM1, sM2 = 's[72:73]', 's[74:75]', 's[76:77]'
sC0, sC1, sC2, sC3 = 's78', 's79', 's80', 's81'
TS0 = 84
NSTAMP = 8
LOG2E = 0x3fb8aa3b
def f32(x):
    import struct
    return '0x%08x' % struct.unpack('<I', struct.pack('<f', x))[0]

def v(i, n=1): return 'v%d' % i if n == 1 else 'v[%d:%d]' % (i, i + n - 1)
def sp(i): return 's[%d:%d]' % (i, i + 1)

class Gen:
    def __init__(s, W=4, W2=8, slow=3, stamps=False, qsleep=8, nt=True):
        s.a = Asm(); s.W = W; s.W2 = W2; s.slow = slow; s.stamps = stamps; s.qsleep = qsleep
        s.nt = 'nt' if nt else ''
        s.skip = set(); s.rets = []; s.dry = True; s.kq = 22; s.kqn = 8; s.Wt = 4; s.tkg = 1; s.pd = 1; s.halfdyn = False; s.mlfirst = False; s.s1sleep = 0; s.w2ramp = 0; s.qpts = (20, 26, 32); s.w2pace = 0; s.w2late = True; s.ND3 = 8; s.touch = False; s.hold = 1; s.ND = 4; s.s2sleep = 0; s.s3sleep = 0; s.finst = False; s.finsleep = 2; s.tsleep = 0; s.fsleep = 20; s.qsleep0 = 40; s.s3wait = False; s.s3dyn = True; s.NL = 15; s.nsleep = 64; s.psleep = 0
    def stamp(s, i):
        if s.stamps:
            s.a('s_memrealtime %s' % sp(TS0 + 2 * i))
    def srd(s, srd, ptr, nbytes):
        a = s.a; b = int(srd[2:srd.index(':')])
        a('s_mov_b32 s%d, s%d' % (b, ptr)); a('s_and_b32 s%d, s%d, 0xffff' % (b + 1, ptr + 1))
        a('s_mov_b32 s%d, 0x%x' % (b + 2, nbytes)); a('s_mov_b32 s%d, 0x20000' % (b + 3))
    def ex(s, m):
        a = s.a
        if m == -1: a('s_mov_b64 exec, %s' % sLIVE)
        elif m == 'lo32': a('s_mov_b32 exec_lo, s26'); a('s_mov_b32 exec_hi, 0')
        elif isinstance(m, str): a('s_and_b64 exec, %s, %s' % (sLIVE, m))
        else: a('s_and_b64 exec, %s, 0x%x' % (sLIVE, m))
    def dry_call(s, seg, rid):
        a = s.a
        a('s_mov_b32 %s, %d' % (sRET, rid))
        a('s_mov_b64 %s, 0' % sLIVE)
        a('s_mov_b64 exec, 0')
        a('s_branch %s' % seg)
        a.label('L_dret%d' % rid)
        a('s_mov_b64 %s, -1' % sLIVE)
        a('s_mov_b64 exec, -1')
        s.rets.append(rid)
    def seg_end(s):
        s.a('s_cbranch_execz L_dryret')
    def vmwait(s, n):
        a = s.a; L = a.newlabel('vw')
        a('s_cbranch_execz %s' % L)
        a('s_waitcnt vmcnt(%d)' % n)
        a.label(L)
    def signal(s, cnt, vz='v3', vone='v4'):
        a = s.a
        a('v_mov_b32 %s, 1' % vone)
        a('s_waitcnt lgkmcnt(0)')
        s.ex(1)
        a('ds_add_u32 %s, %s offset:%d' % (vz, vone, cnt))
        s.ex(-1)
    def wait_lds(s, cnt, target, vz='v3', vt='v4', sleep=0):
        a = s.a; L = a.newlabel('w'); LD = a.newlabel('wd')
        a('s_mov_b32 %s, 0' % sTO)
        a.label(L)
        if sleep: a('s_sleep %d' % sleep)
        a('s_add_u32 %s, %s, 1' % (sTO, sTO))
        a('s_cmp_gt_u32 %s, 0x400000' % sTO)
        a('s_cbranch_scc1 L_fail')
        a('ds_read_b32 %s, %s offset:%d' % (vt, vz, cnt))
        a('s_waitcnt lgkmcnt(0)')
        a('v_readfirstlane_b32 %s, %s' % (sT3, vt))
        a('s_cmp_ge_u32 %s, %s' % (sT3, target))
        a('s_cbranch_execz %s' % LD)
        a('s_cbranch_scc0 %s' % L)
        a.label(LD)
    def poll(s, loads, sleep=0):
        a = s.a; L = a.newlabel('p'); n = len(loads)
        a('s_mov_b32 %s, 0' % sTO)
        a.label(L)
        a('s_add_u32 %s, %s, 1' % (sTO, sTO))
        a('s_cmp_gt_u32 %s, 0x40000' % sTO)
        a('s_cbranch_scc1 L_fail')
        LS = a.newlabel('ps')
        a('s_cbranch_execz %s' % LS)
        for d, vo, so, imm in loads:
            a('buffer_load_dwordx4 %s, %s, %s, %s offen offset:%d sc1' % (v(d, 4), vo, SRD_WS, so, imm))
        a('s_waitcnt vmcnt(%d)' % (n - 1))
        a.label(LS)
        a('s_mov_b64 %s, -1' % sACC)
        for i, (d, vo, so, imm) in enumerate(loads):
            if i: s.vmwait(n - 1 - i)
            a('v_cmp_eq_u32 vcc, %s, %s' % (sTAG, v(d + 1)))
            a('v_cmp_eq_u32 %s, %s, %s' % (sM2, sTAG, v(d + 3)))
            a('s_and_b64 %s, %s, vcc' % (sACC, sACC))
            a('s_and_b64 %s, %s, %s' % (sACC, sACC, sM2))
        a('s_cmp_eq_u64 %s, -1' % sACC)
        L2 = a.newlabel('pd')
        a('s_cbranch_execz %s' % L2)
        if sleep:
            a('s_cbranch_scc1 %s' % L2)
            a('s_sleep %d' % sleep)
            a('s_branch %s' % L)
        else:
            a('s_cbranch_scc0 %s' % L)
        a.label(L2)
    def ppoll(s, loads, depth=3, gap=5):
        a = s.a; L = a.newlabel('pp'); n = len(loads)
        def sweep():
            for d, vo, so, imm in loads:
                a('buffer_load_dwordx4 %s, %s, %s, %s offen offset:%d sc1' % (v(d, 4), vo, SRD_WS, so, imm))
        for i in range(depth - 1):
            sweep()
            a('s_sleep %d' % gap)
        a('s_mov_b32 %s, 0' % sTO)
        a.label(L)
        sweep()
        a('s_add_u32 %s, %s, 1' % (sTO, sTO))
        a('s_cmp_gt_u32 %s, 0x80000' % sTO)
        a('s_cbranch_scc1 L_fail')
        a('s_mov_b64 %s, -1' % sACC)
        a('s_waitcnt vmcnt(%d)' % ((depth - 1) * n))
        for i, (d, vo, so, imm) in enumerate(loads):
            a('v_cmp_eq_u32 vcc, %s, %s' % (sTAG, v(d + 1)))
            a('v_cmp_eq_u32 %s, %s, %s' % (sM2, sTAG, v(d + 3)))
            a('s_and_b64 %s, %s, vcc' % (sACC, sACC))
            a('s_and_b64 %s, %s, %s' % (sACC, sACC, sM2))
        a('s_cmp_eq_u64 %s, -1' % sACC)
        if s.tsleep:
            L2 = a.newlabel('ppd')
            a('s_cbranch_scc1 %s' % L2)
            a('s_sleep %d' % s.tsleep)
            a('s_branch %s' % L)
            a.label(L2)
        else:
            a('s_cbranch_scc0 %s' % L)
        if depth > 1: a('s_nop 7')
    def lds_spin(s, reads, checks, tmp, sleep=0):
        a = s.a; L = a.newlabel('ls')
        a('s_mov_b32 %s, 0' % sTO)
        a.label(L)
        if sleep: a('s_sleep %d' % sleep)
        for r_ in reads: a(r_)
        a('s_add_u32 %s, %s, 1' % (sTO, sTO))
        a('s_cmp_gt_u32 %s, 0x400000' % sTO)
        a('s_cbranch_scc1 L_fail')
        a('s_waitcnt lgkmcnt(0)')
        c = list(checks)
        a('v_max3_u32 %s, %s, %s, %s' % (v(tmp), v(c[0]), v(c[1]), v(c[2])))
        c = c[3:]
        while len(c) >= 2:
            a('v_max3_u32 %s, %s, %s, %s' % (v(tmp), v(tmp), v(c[0]), v(c[1]))); c = c[2:]
        if c: a('v_max_u32 %s, %s, %s' % (v(tmp), v(tmp), v(c[0])))
        a('v_cmp_eq_u32 vcc, -1, %s' % v(tmp))
        a('s_cmp_eq_u64 vcc, 0')
        a('s_cbranch_scc0 %s' % L)
    def bfly(s, op, regs, tmps, steps):
        a = s.a
        for st in steps:
            if st in (1, 2, 4, 8):
                mod = {1: 'quad_perm:[1,0,3,2]', 2: 'quad_perm:[2,3,0,1]', 4: None, 8: 'row_ror:8'}[st]
                for r, t in zip(regs, tmps):
                    if st == 4:
                        a('%s_dpp %s, %s, %s row_half_mirror row_mask:0xf bank_mask:0xf' % (op, v(r), v(r), v(r)))
                    else:
                        a('%s_dpp %s, %s, %s %s row_mask:0xf bank_mask:0xf' % (op, v(r), v(r), v(r), mod))
            else:
                sw = 'v_permlane16_swap_b32' if st == 16 else 'v_permlane32_swap_b32'
                for r, t in zip(regs, tmps): a('v_mov_b32 %s, %s' % (v(t), v(r)))
                for r, t in zip(regs, tmps): a('%s %s, %s' % (sw, v(r), v(t)))
                for r, t in zip(regs, tmps): a('%s %s, %s, %s' % (op, v(r), v(r), v(t)))
    def rnd2(s, x, y, t):
        a = s.a
        a('v_cvt_pk_bf16_f32 %s, %s, %s' % (v(t), v(x), v(y)))
        a('v_lshlrev_b32 %s, 16, %s' % (v(x), v(t)))
        a('v_and_b32 %s, 0xffff0000, %s' % (v(y), v(t)))
    def rnd1(s, x):
        a = s.a
        a('v_cvt_pk_bf16_f32 %s, %s, %s' % (v(x), v(x), v(x)))
        a('v_and_b32 %s, 0xffff0000, %s' % (v(x), v(x)))
    def unpack(s, src, lo, hi):
        a = s.a
        a('v_lshlrev_b32 %s, 16, %s' % (v(lo), v(src)))
        a('v_and_b32 %s, 0xffff0000, %s' % (v(hi), v(src)))
    def div(s, xs, d, r, t):
        a = s.a
        for x in xs:
            a('v_mul_f32 %s, %s, %s' % (v(t[0]), v(x), v(r)))
            a('v_fma_f32 %s, -%s, %s, %s' % (v(t[1]), v(t[0]), v(d), v(x)))
            a('v_fma_f32 %s, %s, %s, %s' % (v(x), v(t[1]), v(r), v(t[0])))
    def ln_stats(s, s1, s2, mean, d, r, t):
        a = s.a
        a('v_mul_f32 %s, %s, %s' % (v(mean), f32(1.0 / 1024), v(s1)))
        a('v_mul_f32 %s, %s, %s' % (v(d), f32(1.0 / 1024), v(s2)))
        a('v_fma_f32 %s, -%s, %s, %s' % (v(d), v(mean), v(mean), v(d)))
        a('v_max_f32 %s, 0, %s' % (v(d), v(d)))
        s.rnd2(mean, d, t)
        a('v_add_f32 %s, %s, %s' % (v(d), f32(1e-5), v(d)))
        s.rnd1(d)
        a('v_sqrt_f32 %s, %s' % (v(d), v(d)))
        s.rnd1(d)
        a('v_rcp_f32 %s, %s' % (v(r), v(d)))
    def ln_apply(s, xs, mean, d, r, t):
        a = s.a
        for x in xs: a('v_sub_f32 %s, %s, %s' % (v(x), v(x), v(mean)))
        for i in range(0, len(xs), 2): s.rnd2(xs[i], xs[i + 1], t[0])
        s.div(xs, d, r, t)
        for i in range(0, len(xs), 2): s.rnd2(xs[i], xs[i + 1], t[0])
    R = [8, 40, 72, 104]; X = 136
    def tile_load(s, nblk, voff, sbase, step_blk, step_t, pace=0, rowf=None, first=0):
        a = s.a
        if step_t in s.skip or (step_t, step_blk) in s.skip: return
        for b in range(nblk):
            for t in range(8):
                if 8 * b + t < first: continue
                a('s_add_u32 %s, %s, 0x%x' % (sT0, sbase, rowf(b, t) * step_t if rowf else b * step_blk + t * step_t))
                if pace and 8 * b + t >= pace: a('s_waitcnt vmcnt(%d)' % (pace - 1))
                a('buffer_load_dwordx4 %s, %s, %s, %s offen %s' % (v(s.R[b] + 4 * t, 4), voff, SRD_W, sT0, s.nt))
    def tile_transpose(s, nblk, later=0, landed=None):
        a = s.a
        TB = [s.X] + s.R[:3]
        for b in range(nblk):
            s.vmwait((nblk - 1 - b) * 8 + later)
            if b == nblk - 1 and landed: landed()
            for e in range(8):
                for j in range(4):
                    a('v_perm_b32 %s, %s, %s, %s' % (v(TB[b] + 4 * e + j), v(s.R[b] + 4 * (2 * j + 1) + (e >> 1)),
                                                     v(s.R[b] + 4 * (2 * j) + (e >> 1)), sSELHI if e & 1 else sSELLO))
    def tile_mfma(s, nblk, vaddr, step, spin=False):
        a = s.a
        TB = [s.X] + s.R[:3]
        F = s.R[3]
        AF = F + 16
        rd = ['ds_read_b128 %s, %s offset:%d' % (v(AF + 4 * b, 4), vaddr, b * step) for b in range(nblk)]
        if spin: s.lds_spin(rd, [AF + 4 * b for b in range(nblk)], 4, sleep=1)
        else:
            for r_ in rd: a(r_)
        acc = [F + 4 * e for e in range(4)] + [TB[0] + 4 * e for e in range(4)]
        LS = a.newlabel('ms')
        a('s_cbranch_execz %s' % LS)
        for half in range(2):
            for b in range(nblk):
                if half == 0: a('s_waitcnt lgkmcnt(%d)' % (nblk - 1 - b))
                for e in range(4 * half, 4 * half + 4):
                    c = '0' if b == 0 else v(acc[e], 4)
                    a('v_mfma_f32_16x16x32_bf16 %s, %s, %s, %s' % (v(acc[e], 4), v(AF + 4 * b, 4), v(TB[b] + 4 * e, 4), c))
        a.label(LS)
        return acc
    def gemvC_partial(s, acc, slot_sgpr):
        a = s.a
        AF = s.R[3] + 16
        for e in range(8):
            a('v_add_f32_dpp %s, %s, %s row_ror:8 row_mask:0xf bank_mask:0xf' % (v(AF + e), v(acc[e] + 1), v(acc[e])))
        a('s_lshl_b32 %s, %s, 8' % (sT0, slot_sgpr))
        a('v_lshlrev_b32 v5, 5, v0')
        a('v_add_u32 v5, %s, v5' % sT0)
        s.ex(0xff)
        a('ds_write_b128 v5, %s offset:%d' % (v(AF, 4), L_RED))
        a('ds_write_b128 v5, %s offset:%d' % (v(AF + 4, 4), L_RED + 16))
        s.ex(-1)
    def gemvC_gather(s, nsrc, dst, tmp, slot0='0', spin=False):
        a = s.a
        a('v_and_b32 v5, 15, v0')
        a('v_lshlrev_b32 v5, 4, v5')
        if slot0 != '0': a('v_add_u32 v5, %s, v5' % slot0)
        rd = ['ds_read_b128 %s, v5 offset:%d' % (v(tmp + 4 * w, 4), L_RED + 256 * w) for w in range(nsrc)]
        if spin: s.lds_spin(rd, [tmp + 4 * w for w in range(nsrc)], 4, sleep=1)
        else:
            for r_ in rd: a(r_)
        for w in range(1, nsrc):
            a('s_waitcnt lgkmcnt(%d)' % (nsrc - 1 - w))
            for c in range(4):
                a('v_add_f32 %s, %s, %s' % (v(dst + c), v(tmp + c) if w == 1 else v(dst + c), v(tmp + 4 * w + c)))
    def mk_granule(s, g, x):
        a = s.a
        a('v_cvt_pk_bf16_f32 %s, %s, %s' % (v(g), v(x), v(x + 1)))
        a('v_cvt_pk_bf16_f32 %s, %s, %s' % (v(g + 2), v(x + 2), v(x + 3)))
        a('v_mov_b32 %s, %s' % (v(g + 1), sTAG))
        a('v_mov_b32 %s, %s' % (v(g + 3), sTAG))
    def st_ws(s, g, voff, soff, imm=0):
        L = s.a.newlabel('st')
        s.a('s_cbranch_execz %s' % L)
        s.a('buffer_store_dwordx4 %s, %s, %s, %s offen offset:%d sc1' % (v(g, 4), voff, SRD_WS, soff, imm))
        s.a.label(L)

    def build(s):
        a = s.a
        for l_ in '''fused adaLN + GQA decode attention (split-K flash decoding) + channel MLP, one persistent launch
(generated by a python script of mine; 256 workgroups = one per CU, 8 stream waves + 4 role waves each)
stream waves: prefetch K/V (registers + LDS) while the role waves of other workgroups compute q; QK^T and PV run on MFMA,
  softmax uses the true running max; the last key groups are handed out by ticket so that all dies finish together
role waves: the small GEMVs (w_mod, wq, wo, w1, w2) on MFMA with the weight tile held in registers
hand-offs between workgroups: 16-byte granules {data, tag, data, tag} in d_ws, written and polled with sc1 accesses;
  tag = (word 0 of d_ws at entry) + 1, that word is advanced at the end (only tells this launch's hand-offs from older ones)
every wait loop is bounded'''.split('\n'): a.raw('; ' + l_)
        a.raw('; @launch grid=(256,1,1) block=(768,1,1) lds=%d' % LDS_BYTES)
        if s.stamps: a.raw('; TS 0x%x:%d:%d' % (OFF_TS, 256 * 12, NSTAMP))
        a.raw('.amdgcn_target "amdgcn-amd-amdhsa--gfx950"')
        a.raw('.text')
        a.raw('.globl %s_kernel' % NAME)
        a.raw('.p2align 8')
        a.raw('.type %s_kernel,@function' % NAME)
        a.raw('%s_kernel:' % NAME)
        a('s_cmp_ge_u32 s2, 256')
        a('s_cbranch_scc1 L_exit')
        if s.stamps:
            for i in range(NSTAMP): a('s_mov_b64 %s, 0' % sp(TS0 + 2 * i))
        s.stamp(0)
        a('s_load_dwordx16 s[32:47], s[0:1], 0')
        a('s_load_dwordx8 s[48:55], s[0:1], 64')
        a('s_load_dwordx4 s[56:59], s[0:1], 96')
        a('s_load_dwordx2 s[60:61], s[0:1], 112')
        a('v_lshrrev_b32 v1, 6, v0')
        a('v_and_b32 v0, 63, v0')
        a('v_mov_b32 v3, 0')
        a('v_readfirstlane_b32 s3, v1')
        a('v_lshlrev_b32 v2, 4, v0')
        a('s_mov_b32 %s, 0x05040100' % sSELLO)
        a('s_mov_b32 %s, 0x07060302' % sSELHI)
        a('s_and_b32 %s, s2, 63' % sU)
        a('s_lshr_b32 %s, s2, 6' % sG)
        a('s_mov_b64 %s, -1' % sLIVE)
        a('s_mov_b32 %s, 0' % sRET)
        a('s_cmp_ge_u32 s3, 8')
        a('s_cbranch_scc1 L_role')
        s.stream()
        a.label('L_role')
        s.role()
        a.label('L_dryret')
        if not s.rets: a('s_branch L_end')
        for rid in s.rets[:-1]:
            a('s_cmp_eq_u32 %s, %d' % (sRET, rid))
            a('s_cbranch_scc1 L_dret%d' % rid)
        if s.rets: a('s_branch L_dret%d' % s.rets[-1])
        a.label('L_fail')
        a('v_mov_b32 v4, 0xdead')
        a('v_mov_b32 v5, 0')
        a('s_mov_b64 exec, 1')
        a('global_store_dword v5, v4, %s' % sp(P_DBG))
        a('s_mov_b64 exec, -1')
        a.label('L_end')
        if s.stamps:
            s.stamp(NSTAMP - 1)
            a('s_mul_i32 %s, s2, 12' % sT0)
            a('s_add_u32 %s, %s, s3' % (sT0, sT0))
            a('s_mul_i32 %s, %s, %d' % (sT0, sT0, NSTAMP * 8))
            a('s_add_u32 %s, %s, 0x%x' % (sT0, sT0, OFF_TS))
            a('v_mov_b32 v5, 0')
            a('s_waitcnt lgkmcnt(0)')
            a('s_mov_b64 exec, 1')
            for i in range(0, NSTAMP, 2):
                for k in range(4): a('v_mov_b32 v%d, s%d' % (8 + k, TS0 + 2 * i + k))
                a('buffer_store_dwordx4 v[8:11], v5, %s, %s offen offset:%d' % (SRD_WS, sT0, 8 * i))
        a.label('L_exit')
        a('s_endpgm')
        a.raw('.section .rodata,"a"')
        a.raw('.p2align 6')
        a.raw('.amdhsa_kernel %s_kernel' % NAME)
        a.raw('  .amdhsa_next_free_vgpr 168')
        a.raw('  .amdhsa_next_free_sgpr 102')
        a.raw('  .amdhsa_accum_offset 168')
        a.raw('  .amdhsa_group_segment_fixed_size 0')
        a.raw('  .amdhsa_kernarg_size 120')
        a.raw('  .amdhsa_user_sgpr_count 2')
        a.raw('  .amdhsa_user_sgpr_kernarg_segment_ptr 1')
        a.raw('  .amdhsa_system_sgpr_workgroup_id_x 1')
        a.raw('.end_amdhsa_kernel')
        return a.finish()

    SP, O, T, BUF, NB, TK = 8, 28, 60, 76, 23, 27
    def tag_ready(s):
        s.a('s_waitcnt lgkmcnt(0)')
        s.a('s_add_u32 %s, %s, 1' % (sTAG, sTAG))
    def ptrs_ready(s):
        a = s.a
        a('s_waitcnt lgkmcnt(0)')
        a('s_load_dword %s, %s, 0' % (sTAG, sp(P_WS)))
        s.srd(SRD_WS, P_WS, 0x10000000)
    def stream(s):
        a = s.a
        a.c('---------------- stream wave')
        a('s_mov_b32 %s, s3' % sR)
        base = 0
        for ci, (u0, cnt, G) in enumerate(CLASSES):
            a('s_mul_i32 %s, %s, %d' % (sT1, sU, G))
            a('s_add_u32 %s, %s, 0x%x' % (sT1, sT1, (base - u0 * G) & 0xffffffff))
            if ci == 0:
                a('s_mov_b32 %s, %s' % (sT0, sT1)); a('s_mov_b32 %s, %d' % (sT2, G))
            else:
                a('s_cmp_ge_u32 %s, %d' % (sU, u0))
                a('s_cselect_b32 %s, %s, %s' % (sT0, sT1, sT0))
                a('s_cselect_b32 %s, %d, %s' % (sT2, G, sT2))
            base += cnt * G
        s.static = base
        assert max(c_[2] for c_ in CLASSES) <= 32
        assert (2048 - base) % s.ND == 0, base
        s.PS = (2048 - base) // s.ND
        assert min(c_[2] for c_ in CLASSES if c_[2] > 8) >= 24
        a('s_lshl_b32 s7, %s, 13' % sT0)
        a('s_lshl_b32 %s, %s, 24' % (sT0, sG))
        a('s_add_u32 s7, s7, %s' % sT0)
        a('s_lshl_b32 %s, s3, 12' % sT0)
        a('s_add_u32 s7, s7, %s' % sT0)
        a('s_and_b32 %s, %s, 7' % (sT1, sT2))
        a('s_lshr_b32 %s, %s, 3' % (sT2, sT2))
        a('s_sub_u32 %s, 8, %s' % (sT3, sT1))
        a('s_lshl_b32 %s, %s, 12' % (sLAST, sT1))
        a('s_lshl_b32 %s, %s, 12' % (sL0, sT3))
        a('s_cmp_ge_u32 s3, %s' % sT3)
        a('s_cselect_b32 %s, %s, 0x8000' % (sLAST, sLAST))
        a('s_cselect_b32 %s, %s, 0' % (sL0, sL0))
        a('s_addc_u32 %s, %s, 0' % (sT2, sT2))
        a('s_sub_u32 %s, %s, 1' % (sT0, sT2))
        a('s_lshl_b32 %s, %s, 16' % (sT0, sT0))
        a('s_add_u32 %s, %s, s7' % (sT0, sT0))
        a('s_sub_u32 %s, %s, %s' % (sL0, sT0, sL0))
        a('s_add_u32 %s, %s, %s' % (sLAST, sLAST, sL0))
        a('s_add_u32 %s, s7, 0x18000' % sH2)
        a('s_cmp_eq_u32 %s, 2' % sT2)
        a('s_cselect_b32 %s, %s, %s' % (sH2, sLAST, sH2))
        a('v_bfe_u32 v1, v0, 2, 2')
        a('v_lshlrev_b32 v1, 8, v1')
        a('v_lshrrev_b32 v4, 4, v0')
        a('v_lshl_add_u32 v1, v4, 6, v1')
        a('v_and_b32 v4, 3, v0')
        a('v_lshl_add_u32 v1, v4, 4, v1')
        a('v_and_b32 v5, 7, v0')
        a('v_lshlrev_b32 v5, 8, v5')
        a('v_lshrrev_b32 v6, 4, v0')
        a('v_lshl_add_u32 v5, v6, 6, v5')
        a('v_bfe_u32 v6, v0, 3, 1')
        a('v_lshl_add_u32 v5, v6, 4, v5')
        a('s_mov_b32 %s, %s' % (sC0, f32(128 ** -0.5)))
        a('s_mov_b32 %s, 0x%x' % (sC1, LOG2E))
        a('s_lshl_b32 %s, s3, 9' % sT0)
        a('v_lshlrev_b32 v24, 3, v0')
        a('v_add_u32 v24, %s, v24' % sT0)
        a('v_lshrrev_b32 v26, 5, v0')
        a('v_lshlrev_b32 v26, 10, v26')
        a('v_lshrrev_b32 v4, 3, v0')
        a('v_subrev_u32 v4, s3, v4')
        a('v_and_b32 v4, 7, v4')
        a('v_and_b32 v25, 3, v4')
        a('v_lshlrev_b32 v25, 4, v25')
        a('v_lshrrev_b32 v4, 2, v4')
        a('v_lshl_add_u32 v25, v4, 13, v25')
        a('v_and_b32 v4, 1, v0')
        a('v_lshl_add_u32 v25, v4, 14, v25')
        a('v_bfe_u32 v4, v0, 1, 1')
        a('v_lshl_add_u32 v25, v4, 6, v25')
        a('v_bfe_u32 v4, v0, 2, 1')
        a('v_lshl_add_u32 v25, v4, 15, v25')
        a('s_lshl_b32 %s, %s, 3' % (sT0, sG))
        a('s_add_u32 %s, %s, s3' % (sT0, sT0))
        a('s_lshl_b32 s82, %s, 16' % sT0)
        a('s_lshl_b32 %s, %s, 7' % (sT1, sU))
        a('s_add_u32 s82, s82, %s' % sT1)
        a('s_add_u32 s82, s82, 0x%x' % OFF_O)
        a('s_lshl_b32 s83, %s, 11' % sT0)
        a('s_lshl_b32 %s, %s, 4' % (sT1, sU))
        a('s_add_u32 s83, s83, %s' % sT1)
        a('s_add_u32 s83, s83, 0x%x' % OFF_ML)
        s.ptrs_ready()
        s.srd(SRD_K, P_K, 0x4000000)
        s.srd(SRD_V, P_V, 0x4000000)
        W, NB = s.W, s.NB
        def pre(j):
            so = sH2
            if j < 12:
                a('s_add_u32 %s, s7, 0x%x' % (sT0, (j >> 3) * 65536 + ((j >> 2) & 1) * 32768)); so = sT0
            a('buffer_load_dwordx4 %s, v1, %s, %s offen offset:%d %s' % (v(s.BUF + 4 * j, 4), SRD_K, so, (j & 3) * 1024, s.nt))
        a('s_sub_u32 %s, %s, 8' % (sT0, sU))
        if CLASSES[1][2] <= 8:
            a('s_cmp_lt_u32 %s, 14' % sT0)
            a('s_cbranch_scc1 L_st_dynonly')
        if s.hold >= 2:
            a('s_cmp_lt_u32 %s, 16' % sT0)
            a('s_cbranch_scc1 L_st_hold')
            a('s_cmp_ge_u32 %s, 32' % sU)
            a('s_cbranch_scc1 L_st_hold')
        elif s.hold == 1:
            a('s_sub_u32 %s, %s, 32' % (sT0, sU))
            a('s_cmp_lt_u32 %s, 16' % sT0)
            a('s_cbranch_scc1 L_st_hold')
        pre(0)
        a('s_barrier')
        for j in range(1, s.slow + 1):
            a('s_waitcnt vmcnt(0)')
            pre(j)
        a('s_branch L_st_go')
        a.label('L_st_hold')
        a('s_barrier')
        s.wait_lds(CNT_T, 4, sleep=1)
        for j in range(0, s.slow + 1): pre(j)
        a.label('L_st_go')
        for j in range(s.slow + 1, 16):
            a('s_waitcnt vmcnt(%d)' % (W - 1))
            pre(j)
            if j == 8: s.tag_ready()
            if j == s.kq: s.signal(CNT_K)
        s3norm = CLASSES[1][2] >= 24 and s.w2late
        if not s3norm:
            a('s_sub_u32 %s, %s, 8' % (sT0, sU))
            a('s_cmp_lt_u32 %s, 14' % sT0)
            a('s_cbranch_scc1 L_st_s3')
        a('s_cmp_eq_u32 %s, 3' % sT2)
        a('s_cbranch_scc1 L_st_n3l')
        s.stream_body(4, s.NL, 'a')
        a('s_branch L_st_dyn')
        a.label('L_st_n3l')
        s.stream_body(3, s.NL, 'b')
        a('s_branch L_st_dyn')
        a.label('L_st_s3')
        g3 = CLASSES[1][2]
        lo = g3 >> 3
        if s3norm:
            pass
        elif g3 <= 8:
            a.label('L_st_dynonly')
            a('s_waitcnt lgkmcnt(0)')
            a('s_barrier')
            if g3:
                s.wait_lds(CNT_T, 4, sleep=1)
                a('s_add_u32 %s, s7, 0x8000' % sT1)
                for i in range(8):
                    a('buffer_load_dwordx4 %s, v1, %s, %s offen offset:%d %s' % (v(s.BUF + 4 * i, 4), SRD_K, 's7' if i < 4 else sT1, (i & 3) * 1024, s.nt))
                    if i >= 3: a('s_waitcnt vmcnt(3)')
                for i in range(8):
                    a('buffer_load_dwordx4 %s, v2, %s, %s offen offset:%d %s' % (v(s.BUF + 32 + 4 * i, 4), SRD_V, 's7' if i < 4 else sT1, (i & 3) * 1024, s.nt))
                    a('s_waitcnt vmcnt(3)')
            a('s_add_u32 %s, %s, 1' % (sTAG, sTAG))
            for r_ in range(32): a('v_mov_b32 %s, 0' % v(s.O + r_))
            a('v_mov_b32 v6, %s' % f32(-3.0e38))
            a('v_mov_b32 v7, 0')
            s.stamp(1)
            a('s_cmp_ge_u32 s3, 4')
            a('s_cbranch_scc1 L_st_qwz')
            s.q_wait(s.BUF + 64, sleep=s.qsleep0)
            a.label('L_st_qwz')
            s.wait_lds(CNT_Q, 4, sleep=4)
            s.stamp(2)
            a('s_waitcnt vmcnt(0)')
            s.first_ticket(s.ND3)
        else:
            if g3 & 7:
                a('s_cmp_eq_u32 %s, %d' % (sT2, lo))
                a('s_cbranch_scc1 L_st_n3')
                s.stream_body(lo + 1, 0, 'c')
                a('s_branch L_st_dyn')
                a.label('L_st_n3')
            s.stream_body(lo, 0, 'd')
            if not s.s3dyn: a('s_branch L_st_fin')
        a.label('L_st_dyn')
        s.dyn_loop()
        a.label('L_st_fin')
        s.stream_fin()

    def first_ticket(s, nd=None):
        a = s.a; L = a.newlabel('tk')
        a('v_mov_b32 %s, -1' % v(s.TK))
        a('s_cmp_ge_u32 s3, %d' % (nd or s.ND))
        a('s_cbranch_scc1 %s' % L)
        if s.halfdyn:
            a('s_bitcmp1_b32 %s, 3' % sU)
            a('s_cbranch_scc0 %s' % L)
        s.ticket_addr()
        s.ticket()
        a.label(L)
    def ticket_addr(s):
        a = s.a
        a('s_lshl_b32 %s, %s, 3' % (sH2, sG))
        a('s_and_b32 %s, s3, %d' % (sT0, s.ND - 1))
        a('s_add_u32 %s, %s, %s' % (sH2, sH2, sT0))
        a('s_lshl_b32 %s, %s, 8' % (sH2, sH2))
        a('s_add_u32 %s, %s, 0x%x' % (sH2, sH2, OFF_CNT))
    def ticket(s):
        a = s.a
        a('v_mov_b32 %s, 1' % v(s.TK))
        s.ex(1)
        a('buffer_atomic_add %s, v3, %s, %s offen sc0 sc1' % (v(s.TK), SRD_WS, sH2))
        s.ex(-1)

    def dyn_loop(s):
        a = s.a
        SP, O, T, BUF = s.SP, s.O, s.T, s.BUF
        if s.PS == 0: return
        KS = [BUF + 4 * i for i in range(8)]; VS = [BUF + 32 + 4 * i for i in range(8)]
        D = BUF + 64; TU = BUF + 80; AL = BUF + 84; X0 = BUF + 88
        a('s_and_b32 %s, s3, %d' % (sT0, s.ND - 1))
        a('s_mul_i32 %s, %s, %d' % (sT0, sT0, s.PS))
        a('s_add_u32 %s, %s, %d' % (sT0, sT0, 2 * s.static))
        a('s_lshl_b32 s7, %s, 12' % sT0)
        a('s_lshl_b32 %s, %s, 24' % (sT0, sG))
        a('s_add_u32 s7, s7, %s' % sT0)
        a('v_and_b32 v5, 7, v0')
        a('v_lshlrev_b32 v5, 8, v5')
        a('v_lshrrev_b32 v4, 4, v0')
        a('v_lshl_add_u32 v5, v4, 6, v5')
        a('v_bfe_u32 v4, v0, 3, 1')
        a('v_lshl_add_u32 v5, v4, 4, v5')
        if CLASSES[1][2] == 8:
            a('s_sub_u32 %s, %s, 8' % (sT0, sU))
            a('s_cmp_lt_u32 %s, 14' % sT0)
            a('s_cbranch_scc1 L_dyn_have')
        a.label('L_dyn')
        a('s_waitcnt vmcnt(0)')
        a('v_readfirstlane_b32 %s, %s' % (sT1, v(s.TK)))
        a('s_cmp_ge_u32 %s, %d' % (sT1, s.PS))
        a('s_cbranch_scc1 L_st_fin')
        a('s_lshl_b32 %s, %s, 12' % (sT1, sT1))
        a('s_add_u32 %s, %s, s7' % (sT0, sT1))
        a('s_add_u32 %s, %s, %d' % (sT1, sT0, s.PS * s.ND * 4096))
        for i in range(8):
            a('buffer_load_dwordx4 %s, v1, %s, %s offen offset:%d %s' % (v(KS[i], 4), SRD_K, sT0 if i < 4 else sT1, (i & 3) * 1024, s.nt))
        for i in range(8):
            a('buffer_load_dwordx4 %s, v2, %s, %s offen offset:%d %s' % (v(VS[i], 4), SRD_V, sT0 if i < 4 else sT1, (i & 3) * 1024, s.nt))
        s.ticket()
        a.label('L_dyn_have')
        a('ds_read_b128 %s, v5 offset:%d' % (v(T, 4), L_Q))
        a('ds_read_b128 %s, v5 offset:%d' % (v(T + 4, 4), L_Q + 32))
        a('s_waitcnt lgkmcnt(0)')
        for n in range(4):
            a('s_waitcnt vmcnt(%d)' % (6 - 2 * n + 9))
            for bb in range(2):
                for m in range(2):
                    a('v_mfma_f32_16x16x32_bf16 %s, %s, %s, 0' % (v(D + 8 * bb + 4 * m, 4), v(KS[2 * n + bb], 4), v(T + 4 * m, 4)))
            for bb in range(2):
                d0 = D + 8 * bb; d1 = d0 + 4
                a('v_add_f32 %s, %s, %s' % (v(TU + 2 * bb), v(d0), v(d1 + 2)))
                a('v_add_f32 %s, %s, %s' % (v(TU + 2 * bb + 1), v(d0 + 1), v(d1 + 3)))
            a('v_add_f32_dpp %s, %s, %s row_ror:8 row_mask:0xf bank_mask:0x3' % (v(SP + n), v(TU + 1), v(TU)))
            a('v_add_f32_dpp %s, %s, %s row_ror:8 row_mask:0xf bank_mask:0xc' % (v(SP + n), v(TU + 2), v(TU + 3)))
        for n in (0, 2):
            s.rnd2(SP + n, SP + n + 1, X0)
            a('v_mul_f32 %s, %s, %s' % (v(SP + n), sC0, v(SP + n)))
            a('v_mul_f32 %s, %s, %s' % (v(SP + n + 1), sC0, v(SP + n + 1)))
            s.rnd2(SP + n, SP + n + 1, X0)
        a('v_max3_f32 %s, %s, %s, %s' % (v(X0), v(SP), v(SP + 1), v(SP + 2)))
        a('v_max3_f32 %s, %s, %s, v6' % (v(X0), v(X0), v(SP + 3)))
        s.bfly('v_max_f32', [X0], [X0 + 1], [8, 16, 32])
        a('v_sub_f32 %s, v6, %s' % (v(X0 + 2), v(X0)))
        a('v_mul_f32 %s, %s, %s' % (v(X0 + 2), sC1, v(X0 + 2)))
        a('v_exp_f32 %s, %s' % (v(X0 + 2), v(X0 + 2)))
        a('v_mov_b32 v6, %s' % v(X0))
        a('v_mul_f32 %s, %s, %s' % (v(X0 + 1), sC1, v(X0)))
        for n in range(4): a('v_fma_f32 %s, %s, %s, -%s' % (v(SP + n), v(SP + n), sC1, v(X0 + 1)))
        for n in range(4): a('v_exp_f32 %s, %s' % (v(SP + n), v(SP + n)))
        a('v_add_f32 %s, %s, %s' % (v(X0), v(SP), v(SP + 1)))
        a('v_add_f32 %s, %s, %s' % (v(X0 + 1), v(SP + 2), v(SP + 3)))
        a('v_add_f32 %s, %s, %s' % (v(X0), v(X0), v(X0 + 1)))
        a('v_cvt_pk_bf16_f32 %s, %s, %s' % (v(SP), v(SP), v(SP + 1)))
        a('v_cvt_pk_bf16_f32 %s, %s, %s' % (v(SP + 1), v(SP + 2), v(SP + 3)))
        s.bfly('v_add_f32', [X0], [X0 + 1], [8, 16, 32])
        a('v_mov_b32_dpp %s, %s row_ror:8 row_mask:0xf bank_mask:0xf' % (v(SP + 2), v(SP)))
        a('v_mov_b32_dpp %s, %s row_ror:8 row_mask:0xf bank_mask:0xf' % (v(SP + 3), v(SP + 1)))
        a('v_fma_f32 v7, v7, %s, %s' % (v(X0 + 2), v(X0)))
        for e in range(8):
            for r in range(4):
                a('v_mul_f32 %s, %s, %s' % (v(O + 4 * e + r), v(O + 4 * e + r), v(X0 + 2)))
        a('s_waitcnt vmcnt(1)')
        beta = [0, 2, 4, 6, 1, 3, 5, 7]
        src = [VS[beta[t]] for t in range(8)]
        for half in range(2):
            for e in range(4 * half, 4 * half + 4):
                for j in range(4):
                    a('v_perm_b32 %s, %s, %s, %s' % (v(T + 4 * (e & 3) + j), v(src[2 * j + 1] + (e >> 1)), v(src[2 * j] + (e >> 1)),
                                                     sSELHI if e & 1 else sSELLO))
            for e in range(4 * half, 4 * half + 4):
                a('v_mfma_f32_16x16x32_bf16 %s, %s, %s, %s' % (v(O + 4 * e, 4), v(T + 4 * (e & 3), 4), v(SP, 4), v(O + 4 * e, 4)))
        a('s_branch L_dyn')

    def stream_body(s, ng, NL, tag):
        a = s.a
        SP, O, T, BUF, NB, W, W2 = s.SP, s.O, s.T, s.BUF, s.NB, s.W, s.W2
        QF = T; TU = T + 8
        nk = 8 * ng
        def addr(j, full):
            blk = j % nk
            imm = (blk & 3) * 1024
            if blk >= nk - 4: base, o = sLAST, 0
            elif blk >= nk - 8: base, o = sL0, 0
            else: base, o = 's7', (blk >> 3) * 65536 + ((blk >> 2) & 1) * 32768
            if full: o += imm; imm = 0
            a('s_add_u32 %s, %s, 0x%x' % (sT0, base, o))
            return imm
        assert all(b_ - a_ >= W + 1 for a_, b_ in zip(s.qpts, s.qpts[1:]))
        def qpoint(j):
            if (j - W - 1) in s.qpts:
                L = a.newlabel('qc')
                a('s_cmp_lg_u32 s29, 0')
                a('s_cbranch_scc1 %s' % L)
                a('v_cmp_eq_u32 vcc, %s, %s' % (sTAG, v(O + 1)))
                a('v_cmp_eq_u32 %s, %s, %s' % (sM2, sTAG, v(O + 3)))
                a('s_and_b64 vcc, vcc, %s' % sM2)
                a('s_cmp_eq_u64 vcc, -1')
                a('s_cbranch_scc0 %s' % L)
                s.q_store(O)
                a('s_mov_b32 s29, 1')
                a.label(L)
            if j in s.qpts:
                L = a.newlabel('qi')
                a('s_cmp_lg_u32 s29, 0')
                a('s_cbranch_scc1 %s' % L)
                a('buffer_load_dwordx4 %s, v2, %s, %s offen sc1' % (v(O, 4), SRD_WS, sC2))
                a.label(L)
        s.q_addr()
        a('s_cmp_ge_u32 s3, 4')
        a('s_cselect_b32 s29, 1, 0')
        for j in range(16, NB):
            o = addr(j, False)
            a('s_waitcnt vmcnt(%d)' % (W - 1))
            a('buffer_load_dwordx4 %s, %s, %s, %s offen offset:%d %s' % (v(BUF + 4 * j, 4), 'v1' if j < nk else 'v2',
                                                                        SRD_K if j < nk else SRD_V, sT0, o, s.nt))
            if j == s.kq: s.signal(CNT_K)
            qpoint(j)
        if NL:
            a('s_mul_i32 %s, s3, %d' % (sT1, NL * 1024))
            a('s_add_u32 %s, %s, %d' % (sT1, sT1, L_W2))
            for i in range(NL):
                j = NB + i
                addr(j, True)
                a('s_add_u32 m0, %s, %d' % (sT1, i * 1024))
                a('s_waitcnt vmcnt(%d)' % (W - 1))
                a('buffer_load_dwordx4 %s, %s, %s offen %s lds' % ('v1' if j < nk else 'v2', SRD_K if j < nk else SRD_V, sT0, s.nt))
                qpoint(j)
        s.stamp(1)
        LQ = 'L_st_qw' + tag
        a('s_cmp_lg_u32 s29, 0')
        a('s_cbranch_scc1 %s' % LQ)
        s.q_wait(s.O)
        a.label(LQ)
        s.wait_lds(CNT_Q, 4, sleep=2)
        s.stamp(2)
        a('ds_read_b128 %s, v5 offset:%d' % (v(s.T, 4), L_Q))
        a('ds_read_b128 %s, v5 offset:%d' % (v(s.T + 4, 4), L_Q + 32))
        if NL:
            a('s_mul_i32 %s, s3, %d' % (sT1, NL * 1024))
            a('s_add_u32 %s, %s, %d' % (sT1, sT1, L_W2))
            a('v_add_u32 v4, %s, v2' % sT1)
        issued = [NB + NL]
        where = {j: BUF + 4 * j for j in range(NB)}
        free = []
        pend = [False]; tk = [False]
        def slot(j): return where[j]
        def inlds(j): return NB <= j < NB + NL
        def landed(j):
            a('s_waitcnt vmcnt(%d)' % (issued[0] - 1 - j))
        def stage(j):
            r = free.pop(0); where[j] = r
            landed(j)
            a('ds_read_b128 %s, v4 offset:%d' % (v(r, 4), (j - NB) * 1024))
            pend[0] = True
        def issue():
            j = issued[0]
            r = free.pop(0); where[j] = r
            o = addr(j, False)
            a('s_waitcnt vmcnt(%d)' % (W2 - 1))
            a('buffer_load_dwordx4 %s, %s, %s, %s offen offset:%d %s' % (v(r, 4), 'v1' if j < nk else 'v2',
                                                                        SRD_K if j < nk else SRD_V, sT0, o, s.nt))
            issued[0] += 1
        def need(j0, j1):
            for j in range(j0, j1 + 1):
                if j not in where:
                    assert free, (ng, NL, j)
                    if inlds(j): stage(j)
                    else:
                        assert j == issued[0]
                        issue()
            top = max([j for j in range(j0, j1 + 1) if not inlds(j)], default=None)
            if top is not None: landed(top)
            if pend[0] and any(inlds(j) for j in range(j0, j1 + 1)):
                a('s_waitcnt lgkmcnt(0)'); pend[0] = False
        def done(j0, j1, look):
            for j in range(j0, j1 + 1): free.append(where[j])
            for j in range(j1 + 1, j1 + 1 + look):
                if inlds(j) and j not in where and free: stage(j)
            while free and issued[0] < 2 * nk:
                un = [j for j in range(NB, NB + NL) if j not in where]
                unk = [j for j in un if j < nk]; unv = [j for j in un if j >= nk]
                kleft = len([j for j in range(j1 + 1, nk) if j in where])
                res = min(len(unk), 2) + max(0, len(unv) - kleft)
                if len(free) <= res: break
                issue()
        a('s_waitcnt lgkmcnt(0)')
        npair = 4 * ng
        def qk_post(n):
            D = O + 16 * (n & 1)
            for bb in range(2):
                d0 = D + 8 * bb; d1 = d0 + 4
                t, u = TU + 2 * bb, TU + 2 * bb + 1
                a('v_add_f32 %s, %s, %s' % (v(t), v(d0), v(d1 + 2)))
                a('v_add_f32 %s, %s, %s' % (v(u), v(d0 + 1), v(d1 + 3)))
            a('v_add_f32_dpp %s, %s, %s row_ror:8 row_mask:0xf bank_mask:0x3' % (v(SP + n), v(TU + 1), v(TU)))
            a('v_add_f32_dpp %s, %s, %s row_ror:8 row_mask:0xf bank_mask:0xc' % (v(SP + n), v(TU + 2), v(TU + 3)))
        for n in range(npair):
            need(2 * n, 2 * n + 1)
            D = O + 16 * (n & 1)
            for bb in range(2):
                for m in range(2):
                    a('v_mfma_f32_16x16x32_bf16 %s, %s, %s, 0' % (v(D + 8 * bb + 4 * m, 4), v(slot(2 * n + bb), 4), v(QF + 4 * m, 4)))
            if n > 0: qk_post(n - 1)
            done(2 * n, 2 * n + 1, 2 if n < npair - 4 else 8)
        qk_post(npair - 1)
        s.stamp(3)
        for n in range(0, npair, 2):
            t = O + (n >> 1)
            s.rnd2(SP + n, SP + n + 1, t)
            a('v_mul_f32 %s, %s, %s' % (v(SP + n), sC0, v(SP + n)))
            a('v_mul_f32 %s, %s, %s' % (v(SP + n + 1), sC0, v(SP + n + 1)))
            s.rnd2(SP + n, SP + n + 1, t)
        a('v_max3_f32 v6, %s, %s, %s' % (v(SP), v(SP + 1), v(SP + 2)))
        for n in range(3, npair - 1, 2):
            a('v_max3_f32 v6, v6, %s, %s' % (v(SP + n), v(SP + n + 1)))
        a('v_max_f32 v6, v6, %s' % v(SP + npair - 1))
        s.bfly('v_max_f32', [6], [5], [8, 16, 32])
        a('v_mul_f32 v5, %s, v6' % sC1)
        for n in range(npair):
            a('v_fma_f32 %s, %s, %s, -v5' % (v(SP + n), v(SP + n), sC1))
        for n in range(npair):
            a('v_exp_f32 %s, %s' % (v(SP + n), v(SP + n)))
        a('v_add_f32 v7, %s, %s' % (v(SP), v(SP + 1)))
        for n in range(2, npair):
            a('v_add_f32 v7, v7, %s' % v(SP + n))
        for G in range(ng):
            p = SP + 4 * G
            a('v_cvt_pk_bf16_f32 %s, %s, %s' % (v(p), v(p), v(p + 1)))
            a('v_cvt_pk_bf16_f32 %s, %s, %s' % (v(p + 1), v(p + 2), v(p + 3)))
        for G in range(ng):
            p = SP + 4 * G
            a('v_mov_b32_dpp %s, %s row_ror:8 row_mask:0xf bank_mask:0xf' % (v(p + 2), v(p)))
            a('v_mov_b32_dpp %s, %s row_ror:8 row_mask:0xf bank_mask:0xf' % (v(p + 3), v(p + 1)))
        s.bfly('v_add_f32', [7], [5], [8, 16, 32])
        s.stamp(4)
        beta = [0, 2, 4, 6, 1, 3, 5, 7]
        for G in range(ng):
            if s.PS and G == ng - s.tkg and (NL or s.s3dyn):
                tk[0] = True
                s.first_ticket()
            need(nk + 8 * G, nk + 8 * G + 7)
            src = [slot(nk + 8 * G + beta[t]) for t in range(8)]
            for half in range(2):
                for e in range(4 * half, 4 * half + 4):
                    for j in range(4):
                        a('v_perm_b32 %s, %s, %s, %s' % (v(T + 4 * (e & 3) + j), v(src[2 * j + 1] + (e >> 1)), v(src[2 * j] + (e >> 1)),
                                                         sSELHI if e & 1 else sSELLO))
                for e in range(4 * half, 4 * half + 4):
                    c = '0' if G == 0 else v(O + 4 * e, 4)
                    a('v_mfma_f32_16x16x32_bf16 %s, %s, %s, %s' % (v(O + 4 * e, 4), v(T + 4 * (e & 3), 4), v(SP + 4 * G, 4), c))
            done(nk + 8 * G, nk + 8 * G + 7, 8)
        pass

    def stream_fin(s):
        a = s.a
        O = s.O
        s.stamp(5)
        AD = s.BUF + 64
        a('v_and_b32 v4, 7, v0')
        a('v_lshlrev_b32 v5, 9, v4')
        a('v_lshlrev_b32 v4, 6, v4')
        a('v_lshrrev_b32 %s, 4, v0' % v(AD))
        a('v_lshl_add_u32 v5, %s, 4, v5' % v(AD))
        a('s_lshl_b32 %s, s3, 12' % sT0)
        a('v_add_u32 v5, %s, v5' % sT0)
        a('s_movk_i32 %s, 0x1c0' % sT2)
        for e in range(8):
            a('v_add_u32 %s, %d, v4' % (v(AD + e), 64 * e))
            a('v_and_or_b32 %s, %s, %s, v5' % (v(AD + e), v(AD + e), sT2))
        a('s_lshl_b32 %s, s3, 3' % sT1)
        a('v_add_u32 v4, %s, v4' % sT1)
        a('s_mov_b32 %s, 0x00ff00ff' % sT0); a('s_mov_b32 %s, 0x00ff00ff' % sT1)
        s.ex('s[64:65]')
        for e in range(8):
            a('ds_write_b128 %s, %s offset:%d' % (v(AD + e), v(O + 4 * e, 4), L_OB))
        s.ex(0xff)
        a('ds_write_b64 v4, v[6:7] offset:%d' % L_ML)
        s.ex(-1)
        a('s_lshl_b32 %s, s3, 6' % sT0)
        a('v_mov_b32 v5, %s' % sT0)
        ML = 76; OB = 92; F = 108; G_ = 116
        for k in (1, 3, 5, 7): a('v_mov_b32 %s, %s' % (v(G_ + k), sTAG))
        a('s_mov_b32 %s, 1' % sT0); a('s_mov_b32 %s, 1' % sT1)
        s.lds_spin(['ds_read_b128 %s, v5 offset:%d' % (v(ML + 4 * k, 4), L_ML + 16 * k) for k in range(4)],
                   [ML + 2 * w + 1 for w in range(8)], 4, sleep=s.finsleep)
        for w in range(8):
            a('ds_read_b64 %s, v24 offset:%d' % (v(OB + 2 * w, 2), L_OB + 4096 * w))
        if s.finst: s.stamp(1)
        M = G_ + 4
        a('v_max3_f32 %s, %s, %s, %s' % (v(M), v(ML), v(ML + 2), v(ML + 4)))
        a('v_max3_f32 %s, %s, %s, %s' % (v(M), v(M), v(ML + 6), v(ML + 8)))
        a('v_max3_f32 %s, %s, %s, %s' % (v(M), v(M), v(ML + 10), v(ML + 12)))
        a('v_max_f32 %s, %s, %s' % (v(M), v(M), v(ML + 14)))
        for w in range(8): a('v_sub_f32 %s, %s, %s' % (v(F + w), v(ML + 2 * w), v(M)))
        for w in range(8): a('v_mul_f32 %s, %s, %s' % (v(F + w), sC1, v(F + w)))
        for w in range(8): a('v_exp_f32 %s, %s' % (v(F + w), v(F + w)))
        Ls = G_ + 6
        a('v_mul_f32 %s, %s, %s' % (v(Ls), v(F), v(ML + 1)))
        for w in range(1, 8): a('v_fmac_f32 %s, %s, %s' % (v(Ls), v(F + w), v(ML + 2 * w + 1)))
        a('s_waitcnt lgkmcnt(0)')
        a('v_mul_f32 %s, %s, %s' % (v(G_), v(F), v(OB)))
        a('v_mul_f32 %s, %s, %s' % (v(G_ + 2), v(F), v(OB + 1)))
        for w in range(1, 8):
            a('v_fmac_f32 %s, %s, %s' % (v(G_), v(F + w), v(OB + 2 * w)))
            a('v_fmac_f32 %s, %s, %s' % (v(G_ + 2), v(F + w), v(OB + 2 * w + 1)))
        if s.finst: s.stamp(2)
        s.st_ws(G_, 'v25', 's82')
        s.ex('s[64:65]')
        s.st_ws(G_ + 4, 'v26', 's83')
        s.ex(-1)
        s.signal(CNT_PUB)
        s.stamp(6)
        a('s_cmp_ge_u32 %s, 48' % sU)
        a('s_cbranch_scc1 L_s1c')
        a('s_cbranch_execz L_w2')
        a('s_sub_u32 %s, %s, 8' % (sT0, sU))
        a('s_cmp_ge_u32 %s, 14' % sT0)
        a('s_cbranch_scc1 L_end')
        a('s_cmp_ge_u32 s3, 4')
        a('s_cbranch_scc1 L_end')
        a.label('L_w2')
        s.w2_stream()
        a.label('L_s1c')
        s.s1_combine()

    def s1_combine(s):
        a = s.a
        a.c('---------------- S1 combine (stream waves of u 48..63): wave w merges 8 dims of half a head over the 64 WGs of the kv head')
        a('s_lshl_b32 %s, %s, 4' % (sJ, sG))
        a('s_add_u32 %s, %s, %s' % (sJ, sJ, sU))
        a('s_sub_u32 %s, %s, 48' % (sJ, sJ))
        a('s_lshl_b32 %s, %s, 15' % (sC2, sJ))
        a('s_lshr_b32 %s, s3, 1' % sT0)
        a('s_lshl_b32 %s, %s, 13' % (sT0, sT0))
        a('s_add_u32 %s, %s, %s' % (sC2, sC2, sT0))
        a('s_and_b32 %s, s3, 1' % sT0)
        a('s_lshl_b32 %s, %s, 6' % (sT0, sT0))
        a('s_add_u32 %s, %s, %s' % (sC2, sC2, sT0))
        a('s_add_u32 %s, %s, 0x%x' % (sC2, sC2, OFF_O))
        a('s_add_u32 %s, %s, 4096' % (sC3, sC2))
        a('s_lshl_b32 %s, %s, 10' % (sC0, sJ))
        a('s_add_u32 %s, %s, 0x%x' % (sC0, sC0, OFF_ML))
        a('v_lshrrev_b32 v5, 2, v0')
        a('v_lshlrev_b32 v6, 2, v5')
        a('v_lshlrev_b32 v5, 7, v5')
        a('v_and_b32 v7, 3, v0')
        a('v_lshl_add_u32 v5, v7, 4, v5')
        a('v_lshlrev_b32 v7, 2, v7')
        a('s_lshl_b32 %s, s3, 4' % sT0)
        a('v_add_u32 v7, %s, v7' % sT0)
        P = 8; MLr = 24; W_ = 28
        s.wait_lds(CNT_PUB, 8)
        s.stamp(4)
        if s.mlfirst:
            s.poll([(MLr, 'v2', sC0, 0)], sleep=s.s1sleep)
            s.poll([(P + 4 * k, 'v5', sC2 if k < 2 else sC3, (k & 1) * 2048) for k in range(4)])
        else:
            s.poll([(MLr, 'v2', sC0, 0)] + [(P + 4 * k, 'v5', sC2 if k < 2 else sC3, (k & 1) * 2048) for k in range(4)], sleep=s.s1sleep)
        s.stamp(3)
        Mx, Fx, Lx, T_, FF, A0 = W_, W_ + 1, W_ + 2, W_ + 3, W_ + 4, W_ + 8
        a('v_mov_b32 %s, %s' % (v(Mx), v(MLr)))
        s.bfly('v_max_f32', [Mx], [T_], [1, 2, 4, 8, 16, 32])
        a('v_sub_f32 %s, %s, %s' % (v(Fx), v(MLr), v(Mx)))
        a('v_mul_f32 %s, %s, %s' % (v(Fx), sC1, v(Fx)))
        a('v_exp_f32 %s, %s' % (v(Fx), v(Fx)))
        for k in range(4):
            a('ds_bpermute_b32 %s, v6, %s offset:%d' % (v(FF + k), v(Fx), 64 * k))
        a('v_mul_f32 %s, %s, %s' % (v(Lx), v(MLr + 2), v(Fx)))
        s.bfly('v_add_f32', [Lx], [T_], [1, 2, 4, 8, 16, 32])
        a('v_rcp_f32 %s, %s' % (v(Mx), v(Lx)))
        a('s_waitcnt lgkmcnt(0)')
        a('v_mul_f32 %s, %s, %s' % (v(A0), v(P), v(FF)))
        a('v_mul_f32 %s, %s, %s' % (v(A0 + 1), v(P + 2), v(FF)))
        for k in range(1, 4):
            a('v_fmac_f32 %s, %s, %s' % (v(A0), v(P + 4 * k), v(FF + k)))
            a('v_fmac_f32 %s, %s, %s' % (v(A0 + 1), v(P + 4 * k + 2), v(FF + k)))
        for st in (4, 8):
            for r_ in (A0, A0 + 1):
                a('v_add_f32_dpp %s, %s, %s row_ror:%d row_mask:0xf bank_mask:0xf' % (v(r_), v(r_), v(r_), st))
        s.bfly('v_add_f32', [A0, A0 + 1], [A0 + 2, A0 + 3], [16, 32])
        s.div([A0, A0 + 1], Lx, Mx, [A0 + 2, A0 + 3])
        a('v_cvt_pk_bf16_f32 %s, %s, %s' % (v(A0), v(A0), v(A0 + 1)))
        s.ex(0xf)
        a('ds_write_b32 v7, %s offset:%d' % (v(A0), L_O))
        s.ex(-1)
        a('s_branch L_end')

    def gemvR_setup(s, xbase):
        a = s.a
        a('v_lshrrev_b32 v1, 5, v0')
        a('v_lshlrev_b32 v1, 4, v1')
        a('v_add_u32 v1, %s, v1' % xbase)
        a('v_lshrrev_b32 v4, 4, v0')
        a('v_xor_b32 v4, v4, v0')
        a('v_and_b32 v4, 1, v4')
        a('v_cmp_eq_u32 vcc, 0, v4')
        a('v_mov_b32 v4, %d' % L_ZERO)
        a('v_cndmask_b32 v1, v4, v1, vcc')
        a('v_lshrrev_b32 v4, 4, v0')
        a('v_cmp_eq_u32 %s, 1, v4' % sM0)
        a('v_cmp_eq_u32 %s, 2, v4' % sM1)
        a('v_cmp_eq_u32 s[82:83], 3, v4')
    def gemvR_publish(s, acc, voff):
        a = s.a
        G = s.R[3] + 16
        for mu in range(2):
            for k in range(2):
                d = G + 4 * mu + 2 * k
                a('v_cndmask_b32 %s, %s, %s, %s' % (v(d), v(acc[k] + mu), v(acc[2 + k] + mu), sM0))
                a('v_cndmask_b32 %s, %s, %s, %s' % (v(d), v(d), v(acc[4 + k] + mu), sM1))
                a('v_cndmask_b32 %s, %s, %s, %s' % (v(d), v(d), v(acc[6 + k] + mu), 's[82:83]'))
                a('v_mov_b32 %s, %s' % (v(d + 1), sTAG))
        s.st_ws(G, voff, sC2)
        s.st_ws(G + 4, voff, sC3)
    def w2_voff(s, sh=14):
        a = s.a
        a('v_lshrrev_b32 v1, 5, v0')
        a('v_lshlrev_b32 v1, %d, v1' % sh)
        a('v_and_b32 v4, 31, v0')
        a('v_lshl_add_u32 v1, v4, 4, v1')
        a('s_lshl_b32 s7, %s, 17' % sJ)
        a('s_lshl_b32 %s, %s, 9' % (sT0, sR))
        a('s_add_u32 s7, s7, %s' % sT0)

    def w2_stream(s):
        a = s.a
        a.c('---------------- W2 (stream waves 0..3 of S3 WGs): hh = gelu(.), partial out = hh @ w2[64 rows, 256 cols per wave]')
        F = s.R[3]
        TB = [s.X] + s.R[:3]
        a('s_mul_i32 %s, %s, 14' % (sJ, sG))
        a('s_add_u32 %s, %s, %s' % (sJ, sJ, sU))
        a('s_sub_u32 %s, %s, 8' % (sJ, sJ))
        s.srd(SRD_W, P_W2, 3584 * 2048)
        if s.w2late:
            s.w2_voff()
            s.wait_lds(CNT_PUB, 8, sleep=1)
            if s.w2ramp:
                for t in range(s.w2ramp):
                    a('s_add_u32 %s, s7, 0x%x' % (sT0, t * 2048))
                    a('buffer_load_dwordx4 %s, v1, %s, %s offen %s' % (v(s.R[0] + 4 * t, 4), SRD_W, sT0, s.nt))
                    a('s_waitcnt vmcnt(0)')
            s.tile_load(4, 'v1', 's7', 16 * 2048, 2048, s.w2pace, first=s.w2ramp)
            s.tile_transpose(4)
            s.wait_lds(CNT_W, 4, sleep=1)
        else:
            a('s_cbranch_execz L_w2a')
            a('s_cmp_lg_u32 s3, 3')
            a('s_cbranch_scc1 L_w2a')
            s.w2_voff()
            for t in range(8):
                a('s_add_u32 %s, s7, 0x%x' % (sT0, 3 * 16 * 2048 + t * 2048))
                a('buffer_load_dwordx4 %s, v1, %s, %s offen %s' % (v(F + 4 * t, 4), SRD_W, sT0, s.nt))
            a.label('L_w2a')
            s.wait_lds(CNT_W, 4, sleep=1)
            a('s_lshl_b32 %s, s3, 15' % sT0)
            a('s_add_u32 %s, %s, %d' % (sT0, sT0, L_W2))
            a('v_add_u32 v5, %s, v2' % sT0)
            for b in range(3):
                for e in range(8):
                    a('ds_read_b128 %s, v5 offset:%d' % (v(TB[b] + 4 * e, 4), 8192 * b + 1024 * e))
            a('s_cbranch_execz L_w2b')
            a('s_cmp_eq_u32 s3, 3')
            a('s_cbranch_scc1 L_w2c')
            a.label('L_w2b')
            for e in range(8):
                a('ds_read_b128 %s, v5 offset:%d' % (v(TB[3] + 4 * e, 4), 8192 * 3 + 1024 * e))
            a('s_cbranch_execnz L_w2d')
            a.label('L_w2c')
            s.vmwait(0)
            for e in range(8):
                for j in range(4):
                    a('v_perm_b32 %s, %s, %s, %s' % (v(TB[3] + 4 * e + j), v(F + 4 * (2 * j + 1) + (e >> 1)),
                                                     v(F + 4 * (2 * j) + (e >> 1)), sSELHI if e & 1 else sSELLO))
            a.label('L_w2d')
        a('s_lshl_b32 %s, s3, 7' % sT1)
        a('s_add_u32 %s, %s, %d' % (sT1, sT1, L_H))
        s.gemvR_setup(sT1)
        a('v_and_b32 v6, 15, v0')
        a('v_lshlrev_b32 v6, 3, v6')
        a('ds_read_b64 %s, v6 offset:%d' % (v(F + 30, 2), L_B1))
        a('v_add_u32 v6, %s, v6' % sT1)
        a('v_bfe_u32 v7, v0, 2, 2')
        a('v_mul_u32_u24 v7, 14336, v7')
        a('v_and_b32 v4, 3, v0')
        a('v_mul_u32_u24 v4, 3584, v4')
        a('v_add_u32 v7, v7, v4')
        a('v_lshrrev_b32 v4, 4, v0')
        a('v_lshl_add_u32 v7, v4, 4, v7')
        a('s_mul_i32 %s, s3, %d' % (sC2, 8 * 14336))
        a('s_lshl_b32 %s, %s, 6' % (sT0, sJ))
        a('s_add_u32 %s, %s, %s' % (sC2, sC2, sT0))
        a('s_add_u32 %s, %s, 0x%x' % (sC2, sC2, OFF_HH))
        a('s_add_u32 %s, %s, %d' % (sC3, sC2, 4 * 14336))
        a('s_mov_b32 %s, %s' % (sC0, f32(0.044715)))
        a('s_mov_b32 %s, %s' % (sC1, f32(-2.0 * math.sqrt(2.0 / math.pi) * math.log2(math.e))))
        a('s_waitcnt lgkmcnt(0)')
        B1 = F + 24; D = F + 16; TMP = F; T = F + 20
        s.unpack(F + 30, B1, B1 + 1); s.unpack(F + 31, B1 + 2, B1 + 3)
        s.gemvC_gather(4, D, TMP, spin=True)
        s.stamp(1)
        s.rnd2(D, D + 1, T); s.rnd2(D + 2, D + 3, T + 1)
        for c in range(4): a('v_add_f32 %s, %s, %s' % (v(D + c), v(D + c), v(B1 + c)))
        s.rnd2(D, D + 1, T); s.rnd2(D + 2, D + 3, T + 1)
        for c in range(4): a('v_mul_f32 %s, %s, %s' % (v(T + c), v(D + c), v(D + c)))
        for c in range(4): a('v_mul_f32 %s, %s, %s' % (v(T + c), v(T + c), v(D + c)))
        for c in range(4): a('v_fma_f32 %s, %s, %s, %s' % (v(T + c), v(T + c), sC0, v(D + c)))
        for c in range(4): a('v_mul_f32 %s, %s, %s' % (v(T + c), sC1, v(T + c)))
        for c in range(4): a('v_exp_f32 %s, %s' % (v(T + c), v(T + c)))
        for c in range(4): a('v_add_f32 %s, 1.0, %s' % (v(T + c), v(T + c)))
        for c in range(4): a('v_rcp_f32 %s, %s' % (v(T + c), v(T + c)))
        for c in range(4): a('v_mul_f32 %s, %s, %s' % (v(D + c), v(D + c), v(T + c)))
        a('v_cvt_pk_bf16_f32 %s, %s, %s' % (v(T), v(D), v(D + 1)))
        a('v_cvt_pk_bf16_f32 %s, %s, %s' % (v(T + 1), v(D + 2), v(D + 3)))
        s.ex(0xffff)
        a('ds_write_b64 v6, %s' % v(T, 2))
        s.ex(-1)
        acc = s.tile_mfma(4, 'v1', 32)
        s.gemvR_publish(acc, 'v7')
        s.seg_end()
        a('s_branch L_end')

    def role(s):
        a = s.a
        a.c('---------------- role wave')
        a('s_setprio 2')
        a('s_sub_u32 %s, s3, 8' % sR)
        a('v_lshlrev_b32 v4, 2, v0')
        a('ds_write_b32 v4, v3')
        for r_ in range(4): a('v_mov_b32 v%d, -1' % (8 + r_))
        a('ds_write_b128 v2, v[8:11] offset:%d' % L_RED)
        a('ds_write_b128 v2, v[8:11] offset:%d' % (L_RED + 1024))
        s.ptrs_ready()
        a('s_barrier')
        s.srd(SRD_OUT, P_OUT, 2048)
        a('s_mov_b32 %s, 0' % sPASS)
        for r_ in (16, 17, 18, 20): a('v_mov_b32 v%d, 0' % r_)
        a('s_cmp_lt_u32 %s, 8' % sU)
        a('s_cbranch_scc1 L_mod')
        a('s_cmp_lt_u32 %s, 24' % sU)
        a('s_cbranch_scc1 L_p1a')
        a('s_cmp_lt_u32 %s, 28' % sU)
        a('s_cbranch_scc1 L_p1b')
        a('s_cmp_lt_u32 %s, 32' % sU)
        a('s_cbranch_scc1 L_mod')
        a('s_cmp_lt_u32 %s, 48' % sU)
        a('s_cbranch_scc1 L_p2')
        a.label('L_p1a'); s.p1a_role()
        a.label('L_p1b'); s.p1b_role()
        a.label('L_mod'); s.tag_ready()
        a.label('L_mod2'); s.mod_role()
        a.label('L_p2'); s.p2_role()
        a.label('L_s1'); s.s1_role()
        a.label('L_s2'); s.s2_role()
        a.label('L_s3'); s.s3_role()
        a.label('L_warm_stream')
        s.warm_stream(20)
        a('s_branch L_end')

    def warm_stream(s, rid):
        if not s.dry: return
        s.dry_call('L_st_fin', rid)

    def gemvC_setup(s, ptr, pitch, nbytes, colbyte_sgpr, pace=0):
        a = s.a
        s.srd(SRD_W, ptr, nbytes)
        a('v_lshrrev_b32 v1, 3, v0')
        a('v_mul_u32_u24 v1, %d, v1' % (8 * pitch))
        a('v_and_b32 v4, 7, v0')
        a('v_lshl_add_u32 v1, v4, 4, v1')
        a('s_mul_i32 s7, %s, %d' % (sR, 256 * pitch))
        a('s_add_u32 s7, s7, %s' % colbyte_sgpr)
        s.tile_load(4, 'v1', 's7', 64 * pitch, pitch, pace)
    def afragC_addr(s):
        a = s.a
        a('v_lshrrev_b32 v1, 4, v0')
        a('v_lshlrev_b32 v1, 5, v1')
        a('v_and_b32 v4, 1, v0')
        a('v_lshl_add_u32 v1, v4, 4, v1')
        a('s_lshl_b32 %s, %s, 9' % (sT0, sR))
        a('s_add_u32 %s, %s, %d' % (sT0, sT0, L_X))
        a('v_add_u32 v1, %s, v1' % sT0)
    def xw_addr(s, dst):
        a = s.a
        a('s_lshl_b32 %s, %s, 9' % (sT0, sR))
        a('s_add_u32 %s, %s, %d' % (sT0, sT0, L_X))
        a('v_lshlrev_b32 %s, 3, v0' % dst)
        a('v_add_u32 %s, %s, %s' % (dst, sT0, dst))
    def q_addr(s):
        a = s.a
        a('s_lshl_b32 %s, s2, 12' % sC2)
        a('s_lshl_b32 %s, %s, 10' % (sT0, sR))
        a('s_add_u32 %s, %s, %s' % (sC2, sC2, sT0))
        a('s_add_u32 %s, %s, 0x%x' % (sC2, sC2, OFF_Q))
    def q_store(s, F):
        a = s.a
        a('v_mov_b32 %s, %s' % (v(F + 1), v(F + 2)))
        a('s_lshl_b32 %s, %s, 9' % (sT3, sR))
        a('v_lshlrev_b32 v4, 3, v0')
        a('v_add_u32 v4, %s, v4' % sT3)
        a('ds_write_b64 v4, %s offset:%d' % (v(F, 2), L_Q))
        s.signal(CNT_Q)
    def q_wait(s, F, sleep=None):
        s.q_addr()
        s.poll([(F, 'v2', sC2, 0)], sleep=s.qsleep if sleep is None else sleep)
        s.q_store(F)

    def mod_role(s):
        a = s.a
        a.c('---------------- M2: mod slice = silu(c) @ w_mod[:, 64 cols]; S2 WGs (u 0..7): block 32+8g+u ; M WGs (u 24..31): block 64+8g+u-24')
        a('s_lshl_b32 %s, %s, 3' % (sT0, sG))
        a('s_add_u32 %s, %s, %s' % (sT0, sT0, sU))
        a('s_add_u32 %s, %s, 32' % (sT1, sT0))
        a('s_add_u32 %s, %s, 40' % (sT0, sT0))
        a('s_cmp_ge_u32 %s, 24' % sU)
        a('s_cselect_b32 %s, %s, %s' % (sJ, sT0, sT1))
        s.wait_lds(CNT_K, s.kqn, sleep=2)
        a('s_lshl_b32 %s, %s, 9' % (sT0, sR))
        a('v_lshlrev_b32 v4, 3, v0')
        a('v_add_u32 v4, %s, v4' % sT0)
        a('global_load_dwordx2 v[6:7], v4, %s' % sp(P_C))
        a('s_lshl_b32 %s, %s, 7' % (sT1, sJ))
        s.gemvC_setup(P_WM, 12288, 1024 * 12288, sT1, s.Wt)
        a('s_waitcnt vmcnt(32)')
        s.silu()
        s.afragC_addr()
        s.tile_transpose(4)
        s.stamp(1)
        acc = s.tile_mfma(4, 'v1', 128)
        s.gemvC_partial(acc, sR)
        s.signal(CNT_R1)
        s.wait_lds(CNT_R1, 4)
        D = 8; TMP = 16; G = 12
        s.gemvC_gather(4, D, TMP)
        s.mk_granule(G, D)
        a('v_and_b32 v5, 15, v0')
        a('v_lshlrev_b32 v5, 4, v5')
        a('v_lshrrev_b32 v6, 4, v0')
        a('s_lshl_b32 %s, %s, 4' % (sT0, sR))
        a('v_add_u32 v6, %s, v6' % sT0)
        a('s_cmp_lt_u32 %s, 48' % sJ)
        a('s_cbranch_scc1 L_pub_g')
        a('s_cmp_ge_u32 %s, 80' % sJ)
        a('s_cbranch_scc1 L_pub_g')
        a('s_sub_u32 %s, %s, 48' % (sT0, sJ))
        a('s_lshl_b32 %s, %s, 8' % (sT0, sT0))
        a('s_add_u32 %s, %s, 0x%x' % (sT0, sT0, OFF_SBCB))
        for k in range(4):
            a('v_add_u32 v7, %d, v6' % (4 * k))
            a('v_min_u32 v7, 55, v7')
            a('v_lshl_add_u32 v7, v7, 13, v5')
            s.st_ws(G, 'v7', sT0)
        a('s_branch L_pub_done')
        a.label('L_pub_g')
        a('s_cmp_lg_u32 %s, 0' % sR)
        a('s_cbranch_scc1 L_pub_done')
        a('s_and_b32 %s, %s, 15' % (sT0, sJ))
        a('s_lshl_b32 %s, %s, 9' % (sT0, sT0))
        a('s_cmp_ge_u32 %s, 80' % sJ)
        a('s_cselect_b32 %s, 128, 0' % sT1)
        a('s_add_u32 %s, %s, %s' % (sT0, sT0, sT1))
        a('s_add_u32 %s, %s, 0x%x' % (sT0, sT0, OFF_G))
        a('v_bfe_u32 v7, v0, 3, 1')
        a('v_lshlrev_b32 v7, 8, v7')
        a('v_and_b32 v6, 7, v0')
        a('v_lshl_add_u32 v7, v6, 4, v7')
        s.ex(0xffff)
        s.st_ws(G, 'v7', sT0)
        s.ex(-1)
        a.label('L_pub_done')
        s.stamp(2)
        a('s_cmp_lt_u32 %s, 8' % sU)
        a('s_cbranch_scc1 L_s2')
        a('s_branch L_warm_stream')

    def silu(s):
        a = s.a; X = s.X
        s.unpack(6, X, X + 1); s.unpack(7, X + 2, X + 3)
        a('s_mov_b32 %s, 0x%x' % (sC1, LOG2E))
        for c in range(4): a('v_mul_f32 %s, %s, -%s' % (v(X + 4 + c), sC1, v(X + c)))
        for c in range(4): a('v_min_f32 %s, %s, %s' % (v(X + 4 + c), f32(120.0), v(X + 4 + c)))
        for c in range(4): a('v_exp_f32 %s, %s' % (v(X + 4 + c), v(X + 4 + c)))
        for c in range(4): a('v_add_f32 %s, 1.0, %s' % (v(X + 4 + c), v(X + 4 + c)))
        for c in range(4): a('v_rcp_f32 %s, %s' % (v(X + 8 + c), v(X + 4 + c)))
        for c in range(4): s.div([X + c], X + 4 + c, X + 8 + c, [X + 12, X + 13])
        a('v_cvt_pk_bf16_f32 v6, %s, %s' % (v(X), v(X + 1)))
        a('v_cvt_pk_bf16_f32 v7, %s, %s' % (v(X + 2), v(X + 3)))
        s.xw_addr('v4')
        a('ds_write_b64 v4, v[6:7]')

    def p1a_role(s):
        a = s.a
        a.c('---------------- P1a (u 8..23, 48..63): partial sa/ca block cb over rows 256g..256g+255 (one 64-row block per wave)')
        a('s_sub_u32 %s, %s, 8' % (sT0, sU))
        a('s_sub_u32 %s, %s, 32' % (sT1, sU))
        a('s_cmp_ge_u32 %s, 48' % sU)
        a('s_cselect_b32 %s, %s, %s' % (sJ, sT1, sT0))
        a('s_lshl_b32 %s, %s, 9' % (sT0, sG))
        a('v_lshlrev_b32 v4, 3, v0')
        a('v_add_u32 v4, %s, v4' % sT0)
        a('global_load_dwordx2 v[6:7], v4, %s' % sp(P_C))
        s.srd(SRD_W, P_WM, 1024 * 12288)
        a('v_lshrrev_b32 v1, 3, v0')
        a('v_mul_u32_u24 v1, %d, v1' % (8 * 12288))
        a('v_and_b32 v4, 7, v0')
        a('v_lshl_add_u32 v1, v4, 4, v1')
        a('s_lshl_b32 %s, %s, 2' % (sT0, sG))
        a('s_add_u32 %s, %s, %s' % (sT0, sT0, sR))
        a('s_mul_i32 s7, %s, %d' % (sT0, 64 * 12288))
        a('s_lshl_b32 %s, %s, 7' % (sT1, sJ))
        a('s_add_u32 s7, s7, %s' % sT1)
        s.tile_load(1, 'v1', 's7', 0, 12288)
        s.tag_ready()
        a('s_waitcnt vmcnt(%d)' % (0 if 12288 in s.skip else 8))
        s.silu()
        s.afragC_addr()
        a('s_lshl_b32 %s, %s, 7' % (sT0, sR))
        a('v_add_u32 v1, %s, v1' % sT0)
        a('s_and_b32 %s, %s, 15' % (sC2, sJ))
        a('s_lshl_b32 %s, %s, 12' % (sC2, sC2))
        a('s_lshr_b32 %s, %s, 4' % (sT0, sJ))
        a('s_lshl_b32 %s, %s, 11' % (sT0, sT0))
        a('s_add_u32 %s, %s, %s' % (sC2, sC2, sT0))
        a('s_lshl_b32 %s, %s, 9' % (sT0, sG))
        a('s_add_u32 %s, %s, %s' % (sC2, sC2, sT0))
        a('s_add_u32 %s, %s, 0x%x' % (sC2, sC2, OFF_P))
        a('v_lshlrev_b32 v7, 5, v0')
        a('s_add_u32 %s, %s, 8' % (sC3, sR))
        a('s_mov_b32 %s, 2048' % sC0)
        s.tile_transpose(1, landed=lambda: s.signal(CNT_T))
        acc = s.tile_mfma(1, 'v1', 128)
        s.gemvC_partial(acc, sC3)
        s.signal(CNT_R1)
        a('s_cmp_lg_u32 %s, 0' % sR)
        a('s_cbranch_scc1 L_p1a_done')
        s.wait_lds(CNT_R1, 4)
        D = 8; TMP = 16; G = 32
        s.gemvC_gather(4, D, TMP, slot0=sC0)
        for k in range(4):
            a('v_mov_b32 %s, %s' % (v(G + 2 * k), v(D + k)))
            a('v_mov_b32 %s, %s' % (v(G + 2 * k + 1), sTAG))
        s.ex(0xffff)
        s.st_ws(G, 'v7', sC2)
        s.st_ws(G + 4, 'v7', sC2, 16)
        s.ex(-1)
        a.label('L_p1a_done')
        s.stamp(3)
        a('s_cmp_ge_u32 %s, 48' % sU)
        a('s_cbranch_scc1 L_s1')
        a('s_cmp_lt_u32 %s, 22' % sU)
        a('s_cbranch_scc1 L_s3')
        a('s_branch L_warm_stream')

    def p1b_role(s):
        a = s.a
        a.c('---------------- P1b (u 24..27): sum partial sa/ca of 64 columns, h = LN(x)*(1+ca)+sa, send to the 64 P2 WGs')
        X = s.X; F = s.R[3]
        a('s_lshl_b32 %s, %s, 2' % (sJ, sG))
        a('s_add_u32 %s, %s, %s' % (sJ, sJ, sU))
        a('s_sub_u32 %s, %s, 24' % (sJ, sJ))
        a('v_lshlrev_b32 v4, 5, v0')
        a('global_load_dwordx4 %s, v4, %s' % (v(X, 4), sp(P_X)))
        a('global_load_dwordx4 %s, v4, %s offset:16' % (v(X + 4, 4), sp(P_X)))
        a('s_lshl_b32 %s, %s, 7' % (sT0, sJ))
        a('v_and_b32 v4, 31, v0')
        a('v_lshlrev_b32 v4, 2, v4')
        a('v_add_u32 v4, %s, v4' % sT0)
        a('global_load_dword v6, v4, %s' % sp(P_X))
        a('s_lshl_b32 %s, %s, 11' % (sT0, sG))
        a('s_add_u32 %s, %s, 0x%x' % (sT0, sT0, OFF_CNT))
        a('v_lshlrev_b32 v4, 8, v0')
        s.ex(0xff)
        a('buffer_store_dword v3, v4, %s, %s offen sc0 sc1' % (SRD_WS, sT0))
        s.ex(-1)
        s.tag_ready()
        a('s_waitcnt vmcnt(0)')
        U = X + 8; S1 = X + 24; S2 = X + 25
        for k in range(8): s.unpack(X + k, U + 2 * k, U + 2 * k + 1)
        a('v_add_f32 %s, %s, %s' % (v(S1), v(U), v(U + 1)))
        a('v_mul_f32 %s, %s, %s' % (v(S2), v(U), v(U)))
        a('v_fmac_f32 %s, %s, %s' % (v(S2), v(U + 1), v(U + 1)))
        for k in range(2, 16):
            a('v_add_f32 %s, %s, %s' % (v(S1), v(S1), v(U + k)))
            a('v_fmac_f32 %s, %s, %s' % (v(S2), v(U + k), v(U + k)))
        s.bfly('v_add_f32', [S1, S2], [X + 26, X + 27], [1, 2, 4, 8, 16, 32])
        MEAN, DD, RR = X + 28, X + 29, X + 30
        s.ln_stats(S1, S2, MEAN, DD, RR, X + 31)
        s.unpack(6, X, X + 1)
        s.ln_apply([X, X + 1], MEAN, DD, RR, [X + 4, X + 5])
        a('s_lshl_b32 %s, %s, 12' % (sC2, sJ))
        a('s_add_u32 %s, %s, 0x%x' % (sC2, sC2, OFF_P))
        a('v_and_b32 v5, 15, v0')
        a('v_lshlrev_b32 v6, 3, v5')
        a('v_lshlrev_b32 v5, 4, v5')
        a('v_lshrrev_b32 v7, 4, v0')
        a('v_lshl_add_u32 v7, v7, 12, v5')
        a('s_lshl_b32 %s, %s, 16' % (sC3, sR))
        a('s_lshl_b32 %s, %s, 8' % (sT0, sJ))
        a('s_add_u32 %s, %s, %s' % (sC3, sC3, sT0))
        a('s_add_u32 %s, %s, 0x%x' % (sC3, sC3, OFF_H))
        G = F + 16
        a('v_mov_b32 %s, %s' % (v(G + 1), sTAG))
        a('v_mov_b32 %s, %s' % (v(G + 3), sTAG))
        s.poll([(F + 4 * k, 'v2', sC2, 1024 * k) for k in range(4)], sleep=s.psleep)
        s.stamp(3)
        a('v_add_f32 %s, %s, %s' % (v(F), v(F), v(F + 4)))
        a('v_add_f32 %s, %s, %s' % (v(F + 1), v(F + 2), v(F + 6)))
        a('v_add_f32 %s, %s, %s' % (v(F + 2), v(F + 8), v(F + 12)))
        a('v_add_f32 %s, %s, %s' % (v(F + 3), v(F + 10), v(F + 14)))
        s.bfly('v_add_f32', [F, F + 1, F + 2, F + 3], [F + 4, F + 5, F + 6, F + 7], [32])
        s.rnd2(F, F + 1, F + 4); s.rnd2(F + 2, F + 3, F + 5)
        a('v_add_f32 %s, 1.0, %s' % (v(F + 2), v(F + 2)))
        a('v_add_f32 %s, 1.0, %s' % (v(F + 3), v(F + 3)))
        s.rnd2(F + 2, F + 3, F + 5)
        a('v_mul_f32 %s, %s, %s' % (v(F + 2), v(F + 2), v(X)))
        a('v_mul_f32 %s, %s, %s' % (v(F + 3), v(F + 3), v(X + 1)))
        s.rnd2(F + 2, F + 3, F + 5)
        a('v_add_f32 %s, %s, %s' % (v(F), v(F), v(F + 2)))
        a('v_add_f32 %s, %s, %s' % (v(F + 1), v(F + 1), v(F + 3)))
        a('v_cvt_pk_bf16_f32 %s, %s, %s' % (v(F), v(F), v(F + 1)))
        a('ds_bpermute_b32 %s, v6, %s' % (v(G), v(F)))
        a('ds_bpermute_b32 %s, v6, %s offset:4' % (v(G + 2), v(F)))
        a('s_waitcnt lgkmcnt(0)')
        for k in range(4):
            a('s_add_u32 %s, %s, 0x%x' % (sT1, sC3, 4 * k * 4096))
            s.st_ws(G, 'v7', sT1)
        s.stamp(4)
        a('s_branch L_mod2')

    def p2_role(s):
        a = s.a
        a.c('---------------- P2 (wg 0..63): q slice = h @ wq[:, 64 cols]')
        F = s.R[3]; X = s.X
        a('s_lshl_b32 %s, %s, 4' % (sJ, sG))
        a('s_add_u32 %s, %s, %s' % (sJ, sJ, sU))
        a('s_sub_u32 %s, %s, 32' % (sJ, sJ))
        a('s_lshl_b32 %s, %s, 7' % (sT1, sJ))
        s.gemvC_setup(P_WQ, 8192, 1024 * 8192, sT1)
        s.tag_ready()
        s.afragC_addr()
        s.tile_transpose(4, landed=lambda: s.signal(CNT_T))
        s.stamp(1)
        a('s_lshl_b32 %s, %s, 12' % (sC2, sJ))
        a('s_lshl_b32 %s, %s, 10' % (sT0, sR))
        a('s_add_u32 %s, %s, %s' % (sC2, sC2, sT0))
        a('s_add_u32 %s, %s, 0x%x' % (sC2, sC2, OFF_H))
        s.xw_addr('v5')
        s.poll([(F, 'v2', sC2, 0)], sleep=s.psleep)
        s.stamp(4)
        a('v_mov_b32 %s, %s' % (v(F + 1), v(F + 2)))
        a('ds_write_b64 v5, %s' % v(F, 2))
        acc = s.tile_mfma(4, 'v1', 128)
        s.gemvC_partial(acc, sR)
        s.signal(CNT_R1)
        s.wait_lds(CNT_R1, 4)
        D = 8; TMP = 16; G = 12
        s.gemvC_gather(4, D, TMP)
        s.mk_granule(G, D)
        a('v_and_b32 v5, 15, v0')
        a('v_lshlrev_b32 v5, 4, v5')
        a('v_lshrrev_b32 v6, 4, v0')
        a('v_lshl_add_u32 v7, v6, 12, v5')
        a('s_lshr_b32 %s, %s, 4' % (sT0, sJ))
        a('s_lshl_b32 %s, %s, 18' % (sT0, sT0))
        a('s_lshl_b32 %s, %s, 16' % (sT1, sR))
        a('s_add_u32 %s, %s, %s' % (sT0, sT0, sT1))
        a('s_and_b32 %s, %s, 15' % (sT1, sJ))
        a('s_lshl_b32 %s, %s, 8' % (sT1, sT1))
        a('s_add_u32 %s, %s, %s' % (sT0, sT0, sT1))
        a('s_add_u32 %s, %s, 0x%x' % (sT0, sT0, OFF_Q))
        for k in range(4):
            a('s_add_u32 %s, %s, 0x%x' % (sT1, sT0, 4 * k * 4096))
            s.st_ws(G, 'v7', sT1)
        s.seg_end()
        s.stamp(2)
        a('s_branch L_warm_stream')

    def s1_role(s):
        a = s.a
        a.c('---------------- S1 (wg 64..127): combine half a head over 64 WGs, partial attn = o_slice @ wo[64 rows, :]')
        F = s.R[3]
        a('s_lshl_b32 %s, %s, 4' % (sJ, sG))
        a('s_add_u32 %s, %s, %s' % (sJ, sJ, sU))
        a('s_sub_u32 %s, %s, 48' % (sJ, sJ))
        if s.touch:
            a('s_lshl_b32 %s, %s, 15' % (sC2, sJ))
            a('s_lshl_b32 %s, %s, 13' % (sT0, sR))
            a('s_add_u32 %s, %s, %s' % (sC2, sC2, sT0))
            a('s_add_u32 %s, %s, 0x%x' % (sC2, sC2, OFF_O))
            a('s_add_u32 %s, %s, 4096' % (sC3, sC2))
            a('s_lshl_b32 %s, %s, 10' % (sC0, sJ))
            a('s_add_u32 %s, %s, 0x%x' % (sC0, sC0, OFF_ML))
            for k in range(8):
                a('buffer_load_dwordx4 %s, v2, %s, %s offen offset:%d sc1' % (v(F + 4 * k, 4), SRD_WS, sC2 if k < 4 else sC3, (k & 3) * 1024))
            a('buffer_load_dwordx4 %s, v2, %s, %s offen sc1' % (v(s.X, 4), SRD_WS, sC0))
            a('s_waitcnt vmcnt(0)')
        s.wait_lds(CNT_K, s.kqn, sleep=2)
        s.srd(SRD_W, P_WO, 4096 * 2048)
        s.w2_voff(16)
        s.tile_load(4, 'v1', 's7', 16 * 2048, 2048, s.Wt, rowf=lambda b, t: 16 * (b >> 1) + 4 * (b & 1) + 8 * (t & 1) + (t >> 1))
        s.tile_transpose(4)
        s.stamp(1)
        s.gemvR_setup('%d' % L_O)
        a('v_bfe_u32 v5, v0, 2, 2')
        a('v_lshlrev_b32 v5, 14, v5')
        a('v_and_b32 v6, 3, v0')
        a('v_lshl_add_u32 v5, v6, 12, v5')
        a('v_lshrrev_b32 v6, 4, v0')
        a('v_lshl_add_u32 v5, v6, 4, v5')
        a('s_lshl_b32 %s, %s, 17' % (sC2, sR))
        a('s_lshl_b32 %s, %s, 6' % (sT0, sJ))
        a('s_add_u32 %s, %s, %s' % (sC2, sC2, sT0))
        a('s_add_u32 %s, %s, 0x%x' % (sC2, sC2, OFF_A))
        a('s_add_u32 %s, %s, 0x10000' % (sC3, sC2))
        s.wait_lds(CNT_PUB, 8, sleep=1)
        s.stamp(4)
        acc = s.tile_mfma(4, 'v1', 32, spin=True)
        s.gemvR_publish(acc, 'v5')
        s.seg_end()
        s.stamp(6)
        a('s_branch L_end')

    def s2_role(s):
        a = s.a
        a.c("---------------- S2 (u 0..7): x1 slice (32 cols, 8 per wave); later out slice = x1 + gb*(sum of w2 partials + b2)")
        a('s_lshl_b32 %s, %s, 3' % (sJ, sG))
        a('s_add_u32 %s, %s, %s' % (sJ, sJ, sU))
        XA, GA, GB, B2, A1, A2, A3, XO, OO, P = 8, 10, 12, 14, 16, 17, 18, 19, 20, 24
        a('v_and_b32 %s, 3, v0' % v(XO))
        a('v_lshlrev_b32 %s, 2, %s' % (v(XO), v(XO)))
        a('s_lshl_b32 %s, %s, 4' % (sT0, sR))
        a('v_add_u32 %s, %s, %s' % (v(XO), sT0, v(XO)))
        a('s_lshl_b32 %s, %s, 6' % (sT1, sJ))
        a('v_add_u32 %s, %s, %s' % (v(OO), sT1, v(XO)))
        a('global_load_dword v6, %s, %s' % (v(OO), sp(P_X)))
        a('global_load_dword v7, %s, %s' % (v(OO), sp(P_B2)))
        a('v_and_b32 v5, 15, v0')
        a('v_lshlrev_b32 v4, 4, v5')
        a('s_lshl_b32 %s, %s, 8' % (sC2, sJ))
        a('s_add_u32 %s, %s, 0x%x' % (sC2, sC2, OFF_G))
        s.poll([(P, 'v4', sC2, 0)], sleep=s.nsleep)
        a('v_mov_b32 %s, %s' % (v(P + 1), v(P + 2)))
        a('v_lshlrev_b32 v5, 3, v5')
        a('ds_write_b64 v5, %s offset:%d' % (v(P, 2), L_G))
        a('ds_read_b32 %s, %s offset:%d' % (v(P + 4), v(XO), L_G))
        a('ds_read_b32 %s, %s offset:%d' % (v(P + 5), v(XO), L_G + 64))
        a('s_waitcnt lgkmcnt(0)')
        s.unpack(6, XA, XA + 1)
        s.unpack(7, B2, B2 + 1)
        s.unpack(P + 4, GA, GA + 1)
        s.unpack(P + 5, GB, GB + 1)
        a('v_lshrrev_b32 v5, 1, v0')
        a('v_and_b32 v4, 1, v0')
        a('v_lshlrev_b32 v4, 4, v4')
        a('v_add_u32 %s, 32, v5' % v(A2))
        a('v_min_u32 %s, 55, %s' % (v(A2), v(A2)))
        a('v_lshl_add_u32 %s, v5, 12, v4' % v(A1))
        a('v_lshl_add_u32 %s, %s, 12, v4' % (v(A2), v(A2)))
        a('v_add_u32 %s, 192, v0' % v(A3))
        a('v_min_u32 %s, 223, %s' % (v(A3), v(A3)))
        a('v_lshlrev_b32 %s, 4, %s' % (v(A3), v(A3)))
        s.stamp(1)
        s.warm_stream(40)
        if s.dry:
            s.dry_call('L_s2_seg', 4)
            a('s_lshl_b32 %s, %s, 3' % (sJ, sG))
            a('s_add_u32 %s, %s, %s' % (sJ, sJ, sU))
        a.label('L_s2_seg')
        a('s_lshl_b32 %s, %s, 14' % (sC2, sJ))
        a('s_lshl_b32 %s, %s, 12' % (sT0, sR))
        a('s_add_u32 %s, %s, %s' % (sC2, sC2, sT0))
        a('s_add_u32 %s, %s, 0x%x' % (sC2, sC2, OFF_A))
        a('s_lshl_b32 %s, %s, 7' % (sC3, sJ))
        a('s_lshl_b32 %s, %s, 5' % (sT0, sR))
        a('s_add_u32 %s, %s, %s' % (sC3, sC3, sT0))
        a('s_add_u32 %s, %s, 0x%x' % (sC3, sC3, OFF_X1))
        a('s_mul_i32 %s, %s, 14336' % (sC0, sJ))
        a('s_mul_i32 %s, %s, 3584' % (sT0, sR))
        a('s_add_u32 %s, %s, %s' % (sC0, sC0, sT0))
        a('s_add_u32 %s, %s, 0x%x' % (sC0, sC0, OFF_HH))
        s.wait_lds(CNT_PUB, 8, sleep=1)
        s.stamp(4)
        Q = P + 20
        def reduce():
            a('v_add_f32 %s, %s, %s' % (v(Q), v(P), v(P + 4)))
            a('v_add_f32 %s, %s, %s' % (v(Q + 1), v(P + 2), v(P + 6)))
            a('v_add_f32 %s, %s, %s' % (v(Q), v(Q), v(P + 8)))
            a('v_add_f32 %s, %s, %s' % (v(Q + 1), v(Q + 1), v(P + 10)))
        def reduce2():
            for st in (4, 8):
                for r in (Q, Q + 1):
                    a('v_add_f32_dpp %s, %s, %s row_ror:%d row_mask:0xf bank_mask:0xf' % (v(r), v(r), v(r), st))
            s.bfly('v_add_f32', [Q, Q + 1], [Q + 2, Q + 3], [16, 32])
            s.rnd2(Q, Q + 1, Q + 2)
        G = P + 16
        a('v_mov_b32 %s, %s' % (v(G + 1), sTAG))
        a('v_mov_b32 %s, %s' % (v(G + 3), sTAG))
        if s.s2sleep: a('s_sleep %d' % s.s2sleep)
        s.ppoll([(P + 4 * k, 'v2', sC2, 1024 * k) for k in range(4)], s.pd)
        s.stamp(5)
        reduce()
        a('v_add_f32 %s, %s, %s' % (v(Q), v(Q), v(P + 12)))
        a('v_add_f32 %s, %s, %s' % (v(Q + 1), v(Q + 1), v(P + 14)))
        reduce2()
        a('v_mul_f32 %s, %s, %s' % (v(Q), v(Q), v(GA)))
        a('v_mul_f32 %s, %s, %s' % (v(Q + 1), v(Q + 1), v(GA + 1)))
        s.rnd2(Q, Q + 1, Q + 2)
        a('v_add_f32 %s, %s, %s' % (v(Q), v(Q), v(XA)))
        a('v_add_f32 %s, %s, %s' % (v(Q + 1), v(Q + 1), v(XA + 1)))
        a('v_cvt_pk_bf16_f32 %s, %s, %s' % (v(Q + 2), v(Q), v(Q + 1)))
        a('v_mov_b32_dpp %s, %s quad_perm:[0,2,0,2] row_mask:0xf bank_mask:0xf' % (v(G), v(Q + 2)))
        a('v_mov_b32_dpp %s, %s quad_perm:[1,3,1,3] row_mask:0xf bank_mask:0xf' % (v(G + 2), v(Q + 2)))
        s.st_ws(G, v(A1), sC3)
        s.st_ws(G, v(A2), sC3)
        s.unpack(Q + 2, XA, XA + 1)
        s.stamp(6)
        a('s_waitcnt vmcnt(0)')
        if s.fsleep: a('s_sleep %d' % s.fsleep)
        s.ppoll([(P + 4 * k, 'v2', sC0, 1024 * k) for k in range(3)] + [(P + 12, v(A3), sC0, 0)], s.pd)
        s.stamp(2)
        reduce()
        s.ex('lo32')
        a('v_add_f32 %s, %s, %s' % (v(Q), v(Q), v(P + 12)))
        a('v_add_f32 %s, %s, %s' % (v(Q + 1), v(Q + 1), v(P + 14)))
        s.ex(-1)
        reduce2()
        a('v_add_f32 %s, %s, %s' % (v(Q), v(Q), v(B2)))
        a('v_add_f32 %s, %s, %s' % (v(Q + 1), v(Q + 1), v(B2 + 1)))
        s.rnd2(Q, Q + 1, Q + 2)
        a('v_mul_f32 %s, %s, %s' % (v(Q), v(Q), v(GB)))
        a('v_mul_f32 %s, %s, %s' % (v(Q + 1), v(Q + 1), v(GB + 1)))
        s.rnd2(Q, Q + 1, Q + 2)
        a('v_add_f32 %s, %s, %s' % (v(Q), v(Q), v(XA)))
        a('v_add_f32 %s, %s, %s' % (v(Q + 1), v(Q + 1), v(XA + 1)))
        a('v_cvt_pk_bf16_f32 %s, %s, %s' % (v(Q + 2), v(Q), v(Q + 1)))
        s.ex(0xf)
        a('buffer_store_dword %s, %s, %s, 0 offen' % (v(Q + 2), v(OO), SRD_OUT))
        s.ex(-1)
        a('s_cmp_lg_u32 s2, 0')
        a('s_cbranch_scc1 L_end')
        a('s_cmp_lg_u32 %s, 0' % sR)
        a('s_cbranch_scc1 L_end')
        a('v_mov_b32 v4, %s' % sTAG)
        s.ex(1)
        a('buffer_store_dword v4, v3, %s, 0 offen sc1' % SRD_WS)
        s.ex(-1)
        a('s_branch L_end')

    def s3_role(s):
        a = s.a
        a.c('---------------- S3 (u 8..21): w2 rows -> LDS; x1 -> LN -> modulate -> LN -> y ; partial y @ w1[:, 64 cols]')
        F = s.R[3]
        TB = [s.X] + s.R[:3]
        a('s_mul_i32 %s, %s, 14' % (sJ, sG))
        a('s_add_u32 %s, %s, %s' % (sJ, sJ, sU))
        a('s_sub_u32 %s, %s, 8' % (sJ, sJ))
        a('s_lshl_b32 %s, %s, 7' % (sT1, sJ))
        a('v_and_b32 v5, 15, v0')
        a('v_lshlrev_b32 v5, 3, v5')
        a('v_add_u32 v4, %s, v5' % sT1)
        a('global_load_dwordx2 v[6:7], v4, %s' % sp(P_B1))
        if s.s3wait: s.wait_lds(CNT_K, s.kqn, sleep=2)
        if s.w2late:
            a('s_waitcnt vmcnt(0)')
            a('ds_write_b64 v5, v[6:7] offset:%d' % L_B1)
        else:
            s.srd(SRD_W, P_W2, 3584 * 2048)
            s.w2_voff()
            s.tile_load(4, 'v1', 's7', 16 * 2048, 2048, s.Wt)
            s.tile_transpose(4)
            a('s_waitcnt vmcnt(0)')
            a('ds_write_b64 v5, v[6:7] offset:%d' % L_B1)
            a('s_lshl_b32 %s, %s, 15' % (sT0, sR))
            a('s_add_u32 %s, %s, %d' % (sT0, sT0, L_W2))
            a('v_add_u32 v5, %s, v2' % sT0)
            for b in range(4):
                if b == 3:
                    a('s_cmp_eq_u32 %s, 3' % sR)
                    a('s_cbranch_scc1 L_s3_w')
                for e in range(8):
                    a('ds_write_b128 v5, %s offset:%d' % (v(TB[b] + 4 * e, 4), 8192 * b + 1024 * e))
            a.label('L_s3_w')
        s.signal(CNT_W)
        a('s_lshl_b32 %s, %s, 7' % (sT1, sJ))
        s.gemvC_setup(P_W1, 7168, 1024 * 7168, sT1, s.Wt)
        s.afragC_addr()
        s.tile_transpose(4)
        s.stamp(1)
        a('s_lshl_b32 %s, %s, 13' % (sC2, sJ))
        a('s_lshl_b32 %s, %s, 10' % (sT0, sR))
        a('s_add_u32 %s, %s, %s' % (sC2, sC2, sT0))
        a('s_add_u32 %s, %s, 0x%x' % (sC2, sC2, OFF_SBCB))
        a('s_add_u32 %s, %s, 4096' % (sC3, sC2))
        s.poll([(F, 'v2', sC2, 0), (F + 4, 'v2', sC3, 0)], sleep=s.nsleep)
        SB, CB, XX, T = F + 8, F + 12, F + 4, F + 16
        s.unpack(F, SB, SB + 1); s.unpack(F + 2, SB + 2, SB + 3)
        s.unpack(F + 4, CB, CB + 1); s.unpack(F + 6, CB + 2, CB + 3)
        for c in range(4): a('v_add_f32 %s, 1.0, %s' % (v(CB + c), v(CB + c)))
        s.rnd2(CB, CB + 1, T); s.rnd2(CB + 2, CB + 3, T)
        s.xw_addr('v6')
        a('s_lshl_b32 %s, %s, 3' % (sT0, sR))
        a('v_mov_b32 v7, %s' % sT0)
        s.stamp(2)
        s.warm_stream(50)
        if s.dry:
            s.dry_call('L_s3_seg', 5)
            a('s_mul_i32 %s, %s, 14' % (sJ, sG))
            a('s_add_u32 %s, %s, %s' % (sJ, sJ, sU))
            a('s_sub_u32 %s, %s, 8' % (sJ, sJ))
        a.label('L_s3_seg')
        a('s_lshl_b32 %s, %s, 12' % (sC2, sJ))
        a('s_lshl_b32 %s, %s, 10' % (sT0, sR))
        a('s_add_u32 %s, %s, %s' % (sC2, sC2, sT0))
        a('s_add_u32 %s, %s, 0x%x' % (sC2, sC2, OFF_X1))
        s.wait_lds(CNT_PUB, 8, sleep=1)
        s.stamp(4)
        if s.s3sleep: a('s_sleep %d' % s.s3sleep)
        s.ppoll([(F, 'v2', sC2, 0)], s.pd)
        s.stamp(5)
        s.unpack(F, XX, XX + 1); s.unpack(F + 2, XX + 2, XX + 3)
        S1, S2, MEAN, DD, RR, RD = F + 18, F + 19, F + 20, F + 21, F + 22, F + 24
        xs = [XX, XX + 1, XX + 2, XX + 3]
        for rnd, cnt in ((0, CNT_R2), (1, CNT_R3)):
            a('v_add_f32 %s, %s, %s' % (v(S1), v(XX), v(XX + 1)))
            a('v_mul_f32 %s, %s, %s' % (v(S2), v(XX), v(XX)))
            a('v_fmac_f32 %s, %s, %s' % (v(S2), v(XX + 1), v(XX + 1)))
            for k in (2, 3):
                a('v_add_f32 %s, %s, %s' % (v(S1), v(S1), v(XX + k)))
                a('v_fmac_f32 %s, %s, %s' % (v(S2), v(XX + k), v(XX + k)))
            s.bfly('v_add_f32', [S1, S2], [T, T + 1], [1, 2, 4, 8, 16, 32])
            s.ex(1)
            a('ds_write_b64 v7, %s offset:%d' % (v(S1, 2), L_ST + 32 * rnd))
            s.ex(-1)
            s.lds_spin(['ds_read_b128 %s, v3 offset:%d' % (v(RD, 4), L_ST + 32 * rnd),
                        'ds_read_b128 %s, v3 offset:%d' % (v(RD + 4, 4), L_ST + 32 * rnd + 16)], [RD + 1, RD + 3, RD + 5, RD + 7], 4)
            a('v_add_f32 %s, %s, %s' % (v(S1), v(RD), v(RD + 2)))
            a('v_add_f32 %s, %s, %s' % (v(S2), v(RD + 1), v(RD + 3)))
            a('v_add_f32 %s, %s, %s' % (v(RD), v(RD + 4), v(RD + 6)))
            a('v_add_f32 %s, %s, %s' % (v(RD + 1), v(RD + 5), v(RD + 7)))
            a('v_add_f32 %s, %s, %s' % (v(S1), v(S1), v(RD)))
            a('v_add_f32 %s, %s, %s' % (v(S2), v(S2), v(RD + 1)))
            s.ln_stats(S1, S2, MEAN, DD, RR, T)
            s.ln_apply(xs, MEAN, DD, RR, [T, T + 1])
            if rnd == 0:
                for c in range(4): a('v_mul_f32 %s, %s, %s' % (v(XX + c), v(XX + c), v(CB + c)))
                s.rnd2(XX, XX + 1, T); s.rnd2(XX + 2, XX + 3, T + 1)
                for c in range(4): a('v_add_f32 %s, %s, %s' % (v(XX + c), v(XX + c), v(SB + c)))
                s.rnd2(XX, XX + 1, T); s.rnd2(XX + 2, XX + 3, T + 1)
        a('v_cvt_pk_bf16_f32 %s, %s, %s' % (v(T), v(XX), v(XX + 1)))
        a('v_cvt_pk_bf16_f32 %s, %s, %s' % (v(T + 1), v(XX + 2), v(XX + 3)))
        a('ds_write_b64 v6, %s' % v(T, 2))
        s.stamp(6)
        a('s_waitcnt vmcnt(0)')
        acc = s.tile_mfma(4, 'v1', 128)
        s.gemvC_partial(acc, sR)
        a('s_branch L_end')

if __name__ == '__main__':
    import argparse
    ap = argparse.ArgumentParser()
    ap.add_argument('-o', default='k.s')
    ap.add_argument('--W', type=int, default=4)
    ap.add_argument('--W2', type=int, default=8)
    ap.add_argument('--slow', type=int, default=0)
    ap.add_argument('--stamps', action='store_true')
    ap.add_argument('--skip', default='')
    ap.add_argument('--dry', action='store_true')
    ap.add_argument('--kq', type=int, default=22)
    ap.add_argument('--Wt', type=int, default=16)
    ap.add_argument('--NL', type=int, default=15)
    ap.add_argument('--tkg', type=int, default=1)
    ap.add_argument('--pd', type=int, default=1)
    ap.add_argument('--halfdyn', default='')
    ap.add_argument('--mlfirst', action='store_true')
    ap.add_argument('--s1sleep', type=int, default=0)
    ap.add_argument('--w2ramp', type=int, default=0)
    ap.add_argument('--qpts', default='20,26,32')
    ap.add_argument('--w2pace', type=int, default=0)
    ap.add_argument('--w2early', action='store_true')
    ap.add_argument('--ND3', type=int, default=2)
    ap.add_argument('--touch', action='store_true')
    ap.add_argument('--hold', type=int, default=1)
    ap.add_argument('--ND', type=int, default=2)
    ap.add_argument('--s2sleep', type=int, default=0)
    ap.add_argument('--s3sleep', type=int, default=0)
    ap.add_argument('--finst', action='store_true')
    ap.add_argument('--finsleep', type=int, default=2)
    ap.add_argument('--tsleep', type=int, default=0)
    ap.add_argument('--fsleep', type=int, default=0)
    ap.add_argument('--s3wait', action='store_true')
    ap.add_argument('--nos3dyn', action='store_true')
    ap.add_argument('--classes', default='')
    ap.add_argument('--nsleep', type=int, default=100)
    ap.add_argument('--psleep', type=int, default=0)
    ap.add_argument('--kqn', type=int, default=8)
    ap.add_argument('--qsleep', type=int, default=16)
    args = ap.parse_args()
    if args.classes:
        for i, x in enumerate(args.classes.split(',')): CLASSES[i] = (CLASSES[i][0], CLASSES[i][1], int(x))
    if args.halfdyn:
        gs, gd = [int(x) for x in args.halfdyn.split(',')]
        CLASSES[:] = [(0, 8, gs), (8, 8, gd), (16, 6, gs - 2), (22, 2, gs + 2), (24, 8, gd), (32, 8, gs), (40, 8, gd), (48, 8, gs), (56, 8, gd)]
    g = Gen(W=args.W, W2=args.W2, slow=args.slow, stamps=args.stamps, qsleep=args.qsleep)
    g.dry = args.dry; g.kq = args.kq; g.Wt = args.Wt; g.NL = args.NL; g.tkg = args.tkg; g.pd = args.pd; g.halfdyn = bool(args.halfdyn); g.mlfirst = args.mlfirst; g.s1sleep = args.s1sleep; g.w2ramp = args.w2ramp; g.qpts = tuple(int(x) for x in args.qpts.split(',') if x); g.w2pace = args.w2pace; g.w2late = not args.w2early; g.ND3 = args.ND3; g.touch = args.touch; g.hold = args.hold; g.ND = args.ND; g.s2sleep = args.s2sleep; g.s3sleep = args.s3sleep; g.finst = args.finst; g.finsleep = args.finsleep; g.tsleep = args.tsleep; g.fsleep = args.fsleep; g.s3wait = args.s3wait; g.s3dyn = not args.nos3dyn; g.nsleep = args.nsleep; g.psleep = args.psleep; g.kqn = args.kqn
    for x in args.skip.split(','):
        if x == 'wm': g.skip.add(12288)
        if x == 'wq': g.skip.add(8192)
        if x == 'w1': g.skip.add(7168)
        if x == 'wo': g.skip.add((2048, 16 * 2048))
    open(args.o, 'w').write(g.build())
```
